```python
import torch

def _softmax(x, axis=-1):
    return torch.softmax(x, dim=axis)
def _gelu(x):
    return torch.nn.functional.gelu(x, approximate="tanh")
def _silu(x):
    return torch.nn.functional.silu(x)
def _sigmoid(x):
    return torch.sigmoid(x)
def _layernorm(x, axis=-1, eps=1e-5):
    m = x.mean(dim=axis, keepdim=True)
    v = x.var(dim=axis, keepdim=True, unbiased=False)
    return (x - m) / torch.sqrt(v + eps)
def _scatter_add(tgt, idx, src, axis=0):
    return tgt.clone().index_add_(axis, idx, src)
def _segment_sum(src, seg, n):
    out = torch.zeros((n,) + src.shape[1:], dtype=src.dtype)
    return out.index_add_(0, seg, src)
def _pad(x, pw):
    flat = tuple(v for pair in reversed(pw) for v in pair)
    return torch.nn.functional.pad(x, flat)

kernel_name = 'sequential_preLN__mha_block_cached__moe_arch_mod__decode'

def setup_inputs():

    _w = (lambda a: (lambda t: t.to(torch.bfloat16) if t.is_floating_point() else t)(torch.as_tensor(a)))
    def _A_setup():
        B, Sq, D = 1, 1, 640
        H, Sk, Dh = 32, 32768, 192
        return {
            "x": _w((lambda *s: torch.randn(*s, dtype=torch.bfloat16) * 0.05)(B, Sq, D)),
            "k_cache": _w((lambda *s: torch.randn(*s, dtype=torch.bfloat16) * 3.2)(B, H, Sk, Dh)),
            "v_cache": _w((lambda *s: torch.randn(*s, dtype=torch.bfloat16) * 0.4)(B, H, Sk, Dh)),
            "wq": _w((lambda *s: torch.randn(*s, dtype=torch.bfloat16) * 3.2)(D, H * Dh) * (D ** -0.5)),
            "wo": _w((lambda *s: torch.randn(*s, dtype=torch.bfloat16) * 0.4)(H * Dh, D) * ((H * Dh) ** -0.5)),
        }
    _A_in = _A_setup()

    def _B_setup():
        B, S, D, F, C = 1, 1, 640, 1536, 1
        return {
            "x": _w((lambda *s: torch.randn(*s, dtype=torch.bfloat16) * 0.05)(B, S, D)),
            "w_r": _w((lambda *s: torch.randn(*s, dtype=torch.bfloat16) * 0.05)(D)),
            "w_gate": _w((lambda *s: torch.randn(*s, dtype=torch.bfloat16) * 0.05)(D, F)),
            "w_up": _w((lambda *s: torch.randn(*s, dtype=torch.bfloat16) * 0.05)(D, F)),
            "w_down": _w((lambda *s: torch.randn(*s, dtype=torch.bfloat16) * 0.05)(F, D)),
        }
    _B_in = _B_setup()

    return {
        "A_x": _A_in["x"],
        "A_k_cache": _A_in["k_cache"],
        "A_v_cache": _A_in["v_cache"],
        "A_wq": _A_in["wq"],
        "A_wo": _A_in["wo"],
        "B_x": _B_in["x"],
        "B_w_r": _B_in["w_r"],
        "B_w_gate": _B_in["w_gate"],
        "B_w_up": _B_in["w_up"],
        "B_w_down": _B_in["w_down"],
    }

def reference(A_x, A_k_cache, A_v_cache, A_wq, A_wo, B_x, B_w_r, B_w_gate, B_w_up, B_w_down):
    def _A_ref(x, k_cache, v_cache, wq, wo):
        B, Sq, D = x.shape
        H, Dh = 32, 192
        q = (lambda x, *d: x.permute(*d))((x @ wq).reshape(B, Sq, H, Dh), 0, 2, 1, 3)
        scores = torch.einsum("bhqd,bhkd->bhqk", q, k_cache) * (Dh ** -0.5)
        p = _softmax(scores, axis=-1)
        o = torch.einsum("bhqk,bhkd->bhqd", p, v_cache)
        return (lambda x, *d: x.permute(*d))(o, 0, 2, 1, 3).reshape(B, Sq, H * Dh) @ wo

    def _B_ref(x, w_r, w_gate, w_up, w_down):
        B, S, D = x.shape
        C = 1
        r = x @ w_r
        idx = torch.argsort(-r, axis=-1)[:, :C]
        idx_e = (lambda x, n, axis: torch.repeat_interleave(x, n, dim=axis))(idx.reshape(B, C, 1), D, axis=2)
        x_sel = (lambda x, i, axis: torch.take_along_dim(x, i, dim=axis))(x, idx_e, axis=1)
        g = _silu(x_sel @ w_gate)
        u = x_sel @ w_up
        y = (g * u) @ w_down
        r_sel = _sigmoid((lambda x, i, axis: torch.take_along_dim(x, i, dim=axis))(r, idx, axis=1))
        y = y * r_sel.reshape(B, C, 1)
        b_off = (torch.arange(B) * S).reshape(B, 1)
        flat_idx = (idx + b_off).reshape(B * C)
        zero = (x * 0.0).reshape(B * S, D)
        upd = _scatter_add(zero, flat_idx, y.reshape(B * C, D), axis=0)
        return x + upd.reshape(B, S, D)

    x = A_x
    h = x + _A_ref(_layernorm(x, axis=-1), A_k_cache, A_v_cache, A_wq, A_wo)
    h2 = h + _B_ref(_layernorm(h, axis=-1), B_w_r, B_w_gate, B_w_up, B_w_down)
    return h2
```

```python
NAME_BASE = "sequential_preLN__mha_block_cached__moe_arch_mod__decode"
REF = 'cdna_kernels/' + NAME_BASE + '.s.ref'
class Asm:
    def __init__(self):
        self.lines = []
        self.uid = 0
    def __call__(self, s, *more):
        for x in (s,) + more:
            for l in x.split('\n'):
                l = l.rstrip()
                if not l.strip(): continue
                if l.lstrip().endswith(':') or l.lstrip().startswith('.') or l.lstrip().startswith(';'):
                    self.lines.append(l.lstrip())
                else:
                    self.lines.append('    ' + l.strip())
    def label(self, base):
        self.uid += 1
        return f'L_{base}_{self.uid}'
    def text(self):
        return '\n'.join(self.lines) + '\n'
def header(launch_lines):
    out = []
    for l in open(REF).read().split('\n'):
        if l.startswith('; @launch'):
            out += launch_lines
        elif l.startswith(';'):
            out.append(l)
        else:
            break
    return out
def kernel_desc(name, vgpr, sgpr, agpr=0):
    acc = (vgpr + 3) // 4 * 4
    acc = max(4, min(256, acc))
    nfv = acc + agpr if agpr else vgpr
    return f'''.amdhsa_kernel {name}
  .amdhsa_next_free_vgpr {nfv}
  .amdhsa_next_free_sgpr {sgpr}
  .amdhsa_accum_offset {acc}
  .amdhsa_group_segment_fixed_size 0
  .amdhsa_kernarg_size 104
  .amdhsa_user_sgpr_count 2
  .amdhsa_user_sgpr_kernarg_segment_ptr 1
  .amdhsa_system_sgpr_workgroup_id_x 1
.end_amdhsa_kernel
'''
```

```python
import struct, math, sys
from asmlib import *

def f2u(x): return struct.unpack('<I', struct.pack('<f', x))[0]
SCALE = f2u(192 ** -0.5)
LOG2E = f2u(1.4426950408889634)
INV640 = f2u(1.0/640)
EPS = f2u(1e-5)
NEGBIG = 0xFF7FFFFF & 0xFF000000 | 0x00000000
NEGBIG = f2u(-3.0e38)
KV_BYTES = 402653184
HEAD_BYTES = 12582912
QP, CNT, OP, HP, YP, WS_USED = 0x00000, 0x40000, 0x50000, 0x90000, 0xA0000, 0x100000
SENT = 0xFFFFFFFF
L_RED = 0
L_XN  = 24576
L_H   = 29696
L_SM  = 34816
L_OV  = 35840
LDS_BYTES = 38912
S_WAVE = 3
SRD_K, SRD_V, SRD_WS, SRD_A, SRD_B = 8, 12, 16, 20, 24
P_X, P_K, P_V, P_WQ, P_WO, P_BX, P_WR, P_WG = 36, 38, 40, 42, 44, 46, 48, 50
P_WU, P_WD, P_OUT, P_DBG, P_WS = 52, 54, 56, 58, 60
S_HEAD, S_MEM, S_SCALE, S_LOG2E = 28, 29, 30, 31
S_T0, S_T1, S_T2, S_T3 = 32, 33, 34, 35
S_OFF, S_HB, S_CNT, S_NX = 62, 63, 64, 65
S_SPIN = 66
S_M = 67
V_TID, V_LANE, V_OFFB, V_ZERO = 0, 1, 2, 3
V_Q = 4
V_ACC = 16
V_M, V_L = 40, 41
V_T = 42
V_ATOM = 56
V_RING = 64

def srd(a, reg, ptr, size):
    a(f's_mov_b32 s{reg}, s{ptr}')
    a(f's_and_b32 s{reg+1}, s{ptr+1}, 0xffff')
    a(f's_mov_b32 s{reg+2}, {size}')
    a(f's_mov_b32 s{reg+3}, 0x20000')

def prologue(a, nwg, endlabel):
    a(f's_cmp_ge_u32 s2, {nwg}', f's_cbranch_scc1 {endlabel}')
    a('s_load_dwordx16 s[36:51], s[0:1], 0')
    a('s_load_dwordx8 s[52:59], s[0:1], 64')
    a('s_load_dwordx2 s[60:61], s[0:1], 96')
    a(f'v_lshrrev_b32 v{V_LANE}, 6, v0', 's_nop 0', f'v_readfirstlane_b32 s{S_WAVE}, v{V_LANE}')
    a(f'v_and_b32 v{V_LANE}, 63, v0')
    a(f'v_mov_b32 v{V_ZERO}, 0')
    a(f'v_lshrrev_b32 v{V_T}, 3, v{V_LANE}', f'v_mul_u32_u24 v{V_T}, 384, v{V_T}', f'v_and_b32 v{V_T+1}, 7, v{V_LANE}',
      f'v_lshl_add_u32 v{V_OFFB}, v{V_T+1}, 4, v{V_T}')
    a(f's_mov_b32 s{S_SCALE}, 0x{SCALE:08x}', f's_mov_b32 s{S_LOG2E}, 0x{LOG2E:08x}')
    a(f's_lshr_b32 s{S_T0}, s2, 3', f's_and_b32 s{S_MEM}, s2, 7', f's_lshl_b32 s{S_T1}, s{S_MEM}, 2',
      f's_add_u32 s{S_T0}, s{S_T0}, s{S_T1}', f's_and_b32 s{S_HEAD}, s{S_T0}, 31')
    a('s_waitcnt lgkmcnt(0)')
    srd(a, SRD_WS, P_WS, WS_USED)

def bf16r(a, dst, src):
    a(f'v_cvt_pk_bf16_f32 v{dst}, v{src}, v{src}', f'v_and_b32 v{dst}, 0xffff0000, v{dst}')

def wave_red(a, v, t, op='add'):
    ins = 'v_add_f32' if op == 'add' else 'v_max_f32'
    for d in ('quad_perm:[1,0,3,2]', 'quad_perm:[2,3,0,1]', 'row_half_mirror', 'row_mirror'):
        a('s_nop 1', f'{ins}_dpp v{v}, v{v}, v{v} {d} row_mask:0xf bank_mask:0xf')
    for p in ('v_permlane16_swap_b32', 'v_permlane32_swap_b32'):
        a(f'v_mov_b32 v{t}, v{v}', 's_nop 1', f'{p} v{t}, v{v}', f's_nop 0', f'{ins} v{v}, v{v}, v{t}')

def groups_red(a, v, t, op='add'):
    ins = 'v_add_f32' if op == 'add' else 'v_max_f32'
    a('s_nop 1', f'{ins}_dpp v{v}, v{v}, v{v} row_ror:8 row_mask:0xf bank_mask:0xf')
    for p in ('v_permlane16_swap_b32', 'v_permlane32_swap_b32'):
        a(f'v_mov_b32 v{t}, v{v}', 's_nop 1', f'{p} v{t}, v{v}', f's_nop 0', f'{ins} v{v}, v{v}, v{t}')

def layernorm(a, x, t):
    s, u, mean, sd, rs, e = t, t+1, t+2, t+3, t+4, t+5
    a(f'v_add_f32 v{s}, v{x}, v{x+1}')
    for i in range(2, 10): a(f'v_add_f32 v{s}, v{s}, v{x+i}')
    wave_red(a, s, u)
    a(f'v_mul_f32 v{mean}, 0x{INV640:08x}, v{s}')
    a(f'v_sub_f32 v{u}, v{x}, v{mean}', f'v_mul_f32 v{s}, v{u}, v{u}')
    for i in range(1, 10):
        a(f'v_sub_f32 v{u}, v{x+i}, v{mean}', f'v_fmac_f32 v{s}, v{u}, v{u}')
    wave_red(a, s, u)
    a(f'v_mul_f32 v{s}, 0x{INV640:08x}, v{s}')
    bf16r(a, s, s)
    a(f'v_add_f32 v{s}, 0x{EPS:08x}, v{s}')
    bf16r(a, s, s)
    a(f'v_sqrt_f32 v{sd}, v{s}', 's_nop 0')
    bf16r(a, sd, sd)
    a(f'v_rcp_f32 v{rs}, v{sd}')
    bf16r(a, mean, mean)
    for i in range(10):
        a(f'v_sub_f32 v{x+i}, v{x+i}, v{mean}')
        bf16r(a, x+i, x+i)
        a(f'v_mul_f32 v{u}, v{x+i}, v{rs}', f'v_fma_f32 v{e}, -v{u}, v{sd}, v{x+i}', f'v_fma_f32 v{x+i}, v{e}, v{rs}, v{u}')

def unpack5(a, src, dst):
    for j in range(5):
        a(f'v_lshlrev_b32 v{dst+2*j}, 16, v{src+j}', f'v_and_b32 v{dst+2*j+1}, 0xffff0000, v{src+j}')

def pv_unit(a, vreg, plo, phi, acc=V_ACC):
    for j in range(3):
        for i in range(4):
            a(f'v_dot2_f32_bf16 v{acc+8*j+2*i}, v{vreg+4*j+i}, v{plo}, v{acc+8*j+2*i}')
            a(f'v_dot2_f32_bf16 v{acc+8*j+2*i+1}, v{vreg+4*j+i}, v{phi}, v{acc+8*j+2*i+1}')

def red_write(a, t):
    a(f'v_lshrrev_b32 v{t}, 3, v{V_LANE}', f'v_mul_u32_u24 v{t}, 768, v{t}', f'v_and_b32 v{t+1}, 7, v{V_LANE}',
      f'v_lshl_add_u32 v{t}, v{t+1}, 5, v{t}', f's_mul_i32 s{S_T0}, s{S_WAVE}, 6144', f'v_add_u32 v{t}, s{S_T0}, v{t}')
    for j in range(3):
        a(f'ds_write_b128 v{t}, v[{V_ACC+8*j}:{V_ACC+8*j+3}] offset:{L_RED+256*j}')
        a(f'ds_write_b128 v{t}, v[{V_ACC+8*j+4}:{V_ACC+8*j+7}] offset:{L_RED+256*j+16}')

def red_read(a, tmp, outs):
    a(f'v_lshlrev_b32 v{V_T}, 2, v0')
    for k in range(32):
        a(f'ds_read_b32 v{tmp+k}, v{V_T} offset:{L_RED+768*k}')
    a('s_waitcnt lgkmcnt(0)')
    for w in range(4):
        b = tmp + 8*w
        a(f'v_add_f32 v{outs+w}, v{b}, v{b+1}')
        for g in range(2, 8): a(f'v_add_f32 v{outs+w}, v{outs+w}, v{b+g}')

def phase_q(a):
    X = 64; W = 80
    XF = 70
    srd(a, SRD_A, P_X, 1280)
    srd(a, SRD_B, P_WQ, 7864320)
    a(f'v_lshlrev_b32 v{V_T}, 2, v{V_LANE}')
    for j in range(5): a(f'buffer_load_dword v{X+j}, v{V_T}, s[{SRD_A}:{SRD_A+3}], 0 offen offset:{256*j}')
    a(f'v_lshrrev_b32 v{V_T+1}, 3, v{V_LANE}', f'v_mul_u32_u24 v{V_T+1}, 12288, v{V_T+1}', f'v_and_b32 v{V_T+2}, 7, v{V_LANE}',
      f'v_lshl_add_u32 v{V_T+1}, v{V_T+2}, 4, v{V_T+1}')
    a(f's_mul_i32 s{S_T0}, s{S_MEM}, 80', f's_lshl_b32 s{S_T1}, s{S_WAVE}, 3', f's_add_u32 s{S_T0}, s{S_T0}, s{S_T1}',
      f's_mul_i32 s{S_T1}, s{S_T0}, 12288', f's_mul_i32 s{S_T2}, s{S_HEAD}, 384', f's_add_u32 s{S_T1}, s{S_T1}, s{S_T2}')
    third = a.label('q3')
    for u in range(3):
        if u == 2:
            a(f's_cmp_ge_u32 s{S_WAVE}, 2', f's_cbranch_scc1 {third}')
        for j in range(3):
            a(f'buffer_load_dwordx4 v[{W+12*u+4*j}:{W+12*u+4*j+3}], v{V_T+1}, s[{SRD_B}:{SRD_B+3}], s{S_T1} offen offset:{128*j} nt')
        a(f's_add_u32 s{S_T1}, s{S_T1}, {32*12288}')
    a(f'{third}:')
    for i in range(24): a(f'v_mov_b32 v{V_ACC+i}, 0')
    a('s_waitcnt vmcnt(6)')
    unpack5(a, X, XF)
    layernorm(a, XF, V_T+4)
    for j in range(5): a(f'v_cvt_pk_bf16_f32 v{X+j}, v{XF+2*j}, v{XF+2*j+1}')
    a(f's_mul_i32 s{S_T2}, s{S_WAVE}, 1280', f'v_lshlrev_b32 v{V_T}, 2, v{V_LANE}', f'v_add_u32 v{V_T}, s{S_T2}, v{V_T}')
    for j in range(5): a(f'ds_write_b32 v{V_T}, v{X+j} offset:{L_XN+256*j}')
    a(f's_lshl_b32 s{S_T0}, s{S_T0}, 1', f's_add_u32 s{S_T0}, s{S_T0}, s{S_T2}',
      f'v_lshrrev_b32 v{V_T}, 3, v{V_LANE}', f'v_lshlrev_b32 v{V_T}, 1, v{V_T}', f'v_add_u32 v{V_T}, s{S_T0}, v{V_T}')
    a('s_waitcnt lgkmcnt(0)')
    for u in range(3): a(f'ds_read_u16 v{X+u}, v{V_T} offset:{L_XN+64*u}')
    a('s_waitcnt lgkmcnt(0) vmcnt(0)')
    skip = a.label('q3b')
    for u in range(3):
        if u == 2:
            a(f's_cmp_ge_u32 s{S_WAVE}, 2', f's_cbranch_scc1 {skip}')
        a(f'v_lshlrev_b32 v{X+4}, 16, v{X+u}')
        pv_unit(a, W+12*u, X+u, X+4)
    a(f'{skip}:')
    a('s_nop 2')
    red_write(a, V_T)
    a('s_waitcnt lgkmcnt(0)', 's_barrier')
    done = a.label('qd')
    a(f's_cmp_ge_u32 s{S_WAVE}, 3', f's_cbranch_scc1 {done}')
    red_read(a, 64, 96)
    a('v_add_f32 v96, v96, v97', 'v_add_f32 v98, v98, v99', 'v_add_f32 v96, v96, v98')
    a(f's_lshl_b32 s{S_T0}, s{S_HEAD}, 3', f's_add_u32 s{S_T0}, s{S_T0}, s{S_MEM}', f's_lshl_b32 s{S_T0}, s{S_T0}, 10',
      f's_add_u32 s{S_T0}, s{S_T0}, {QP}', f'v_lshlrev_b32 v{V_T}, 2, v0')
    a(f'buffer_store_dword v96, v{V_T}, s[{SRD_WS}:{SRD_WS+3}], s{S_T0} offen sc1')
    a(f'{done}:')

def phase_init(a):
    a(f'v_mov_b32 v{V_T+2}, -1', f'v_lshlrev_b32 v{V_T}, 2, v0', f's_lshl_b32 s{S_T0}, s2, 10', f's_add_u32 s{S_T1}, s{S_T0}, {OP}')
    a(f'buffer_store_dword v{V_T+2}, v{V_T}, s[{SRD_WS}:{SRD_WS+3}], s{S_T1} offen sc1')
    a(f's_add_u32 s{S_T1}, s{S_T0}, {YP}')
    a(f'buffer_store_dword v{V_T+2}, v{V_T}, s[{SRD_WS}:{SRD_WS+3}], s{S_T1} offen sc1')
    l1 = a.label('ih'); l2 = a.label('ic')
    a('s_cmp_ge_u32 s2, 20', f's_cbranch_scc1 {l1}')
    a(f's_add_u32 s{S_T1}, s{S_T0}, {HP}')
    a(f'buffer_store_dword v{V_T+2}, v{V_T}, s[{SRD_WS}:{SRD_WS+3}], s{S_T1} offen sc1')
    a(f's_branch {l2}')
    a(f'{l1}:')
    a('s_cmp_ge_u32 s2, 28', f's_cbranch_scc1 {l2}')
    a(f's_add_u32 s{S_T1}, s{S_T0}, {CNT-20*1024}')
    a(f'buffer_store_dword v{V_ZERO}, v{V_T}, s[{SRD_WS}:{SRD_WS+3}], s{S_T1} offen sc1')
    a(f'{l2}:')

def spin_begin(a, lbl):
    a(f's_mov_b32 s{S_SPIN}, 0', f'{lbl}:')
def spin_end(a, lbl, regs, t):
    ok = a.label('ok')
    a(f'v_mov_b32 v{t}, v{regs[0]}')
    rest = regs[1:]
    while len(rest) >= 2:
        a(f'v_max3_u32 v{t}, v{t}, v{rest[0]}, v{rest[1]}'); rest = rest[2:]
    if rest: a(f'v_max_u32 v{t}, v{t}, v{rest[0]}')
    a(f'v_cmp_eq_u32 vcc, -1, v{t}')
    a(f's_cbranch_vccz {ok}')
    a(f's_add_u32 s{S_SPIN}, s{S_SPIN}, 1', f's_cmp_lt_u32 s{S_SPIN}, 200000', f's_cbranch_scc1 {lbl}')
    a(f'{ok}:')

def phase_qgather(a, poll):
    skip = a.label('qg')
    a(f's_cmp_ge_u32 s{S_WAVE}, 3', f's_cbranch_scc1 {skip}')
    a(f's_lshl_b32 s{S_T0}, s{S_HEAD}, 13', f's_add_u32 s{S_T0}, s{S_T0}, {QP}', f's_add_u32 s{S_T1}, s{S_T0}, 4096', f'v_lshlrev_b32 v{V_T}, 2, v0')
    lbl = a.label('qspin')
    if poll: spin_begin(a, lbl)
    T = 44
    for s in range(8):
        a(f'buffer_load_dword v{T+s}, v{V_T}, s[{SRD_WS}:{SRD_WS+3}], s{S_T0 if s<4 else S_T1} offen offset:{1024*(s&3)} sc1')
    a('s_waitcnt vmcnt(0)')
    if poll: spin_end(a, lbl, list(range(T, T+8)), 54)
    for s in range(1, 8): a(f'v_add_f32 v{T}, v{T}, v{T+s}')
    a(f'v_cvt_pk_bf16_f32 v{T}, v{T}, v{T}', f'v_lshlrev_b32 v{V_T}, 1, v0', f'ds_write_b16 v{V_T}, v{T} offset:{L_SM+64}')
    a(f'{skip}:')
    a('s_waitcnt lgkmcnt(0)', 's_barrier')
    a(f'v_and_b32 v{V_T}, 7, v{V_LANE}', f'v_lshlrev_b32 v{V_T}, 4, v{V_T}')
    for j in range(3): a(f'ds_read_b128 v[{V_Q+4*j}:{V_Q+4*j+3}], v{V_T} offset:{L_SM+64+128*j}')
    a('s_waitcnt lgkmcnt(0)')

def compute_unit(a, r):
    K, V = r, r+12
    t0, t1, t2, t3, t4, t5 = V_T, V_T+1, V_T+2, V_T+3, V_T+4, V_T+5
    for i in range(4):
        for j, t in enumerate((t0, t1, t2)):
            c = '0' if i == 0 else f'v{t}'
            a(f'v_dot2_f32_bf16 v{t}, v{K+4*j+i}, v{V_Q+4*j+i}, {c}')
    a('s_nop 2')
    a(f'v_add_f32 v{t0}, v{t0}, v{t1}', f'v_add_f32 v{t0}, v{t0}, v{t2}')
    for d in ('quad_perm:[1,0,3,2]', 'quad_perm:[2,3,0,1]', 'row_half_mirror'):
        a('s_nop 1', f'v_add_f32_dpp v{t0}, v{t0}, v{t0} {d} row_mask:0xf bank_mask:0xf')
    bf16r(a, t0, t0)
    a(f'v_mul_f32 v{t0}, s{S_SCALE}, v{t0}')
    bf16r(a, t0, t0)
    a(f'v_max_f32 v{t1}, v{V_M}, v{t0}')
    a(f'v_sub_f32 v{t2}, v{V_M}, v{t1}', f'v_sub_f32 v{t3}, v{t0}, v{t1}')
    a(f'v_mul_f32 v{t2}, s{S_LOG2E}, v{t2}', f'v_mul_f32 v{t3}, s{S_LOG2E}, v{t3}')
    a(f'v_exp_f32 v{t2}, v{t2}', f'v_exp_f32 v{t3}, v{t3}', f'v_mov_b32 v{V_M}, v{t1}')
    a(f'v_fma_f32 v{V_L}, v{V_L}, v{t2}, v{t3}')
    a(f'v_cvt_pk_bf16_f32 v{t4}, v{t3}, 0', f'v_cvt_pk_bf16_f32 v{t5}, 0, v{t3}')
    for i in range(12):
        a(f'v_pk_mul_f32 v[{V_ACC+2*i}:{V_ACC+2*i+1}], v[{V_ACC+2*i}:{V_ACC+2*i+1}], v[{t2}:{t2+1}] op_sel_hi:[1,0]')
    pv_unit(a, V, t4, t5)

def phase_stream(a, F, C, ldflags='nt'):
    S = F + 1
    assert C >= F and 4096 % C == 0
    nch = 4096 // C
    U = S * C // math.gcd(S, C)
    fl = (' ' + ldflags) if ldflags else ''
    srd(a, SRD_K, P_K, KV_BYTES); srd(a, SRD_V, P_V, KV_BYTES)
    a(f's_mul_i32 s{S_HB}, s{S_HEAD}, {HEAD_BYTES}')
    a(f's_lshl_b32 s{S_CNT}, s{S_HEAD}, 8', f's_add_u32 s{S_CNT}, s{S_CNT}, {CNT}')
    a(f's_lshl_b32 s{S_NX}, s{S_MEM}, 2', f's_add_u32 s{S_NX}, s{S_NX}, s{S_WAVE}')
    def atomic():
        a(f'v_mov_b32 v{V_ATOM}, 1', 's_mov_b64 exec, 1')
        a(f'buffer_atomic_add v{V_ATOM}, v{V_ZERO}, s[{SRD_WS}:{SRD_WS+3}], s{S_CNT} offen sc0')
        a('s_mov_b64 exec, -1')
    def setoff():
        a(f's_mul_i32 s{S_OFF}, s{S_NX}, {C*3072}', f's_add_u32 s{S_OFF}, s{S_OFF}, s{S_HB}')
    def issue(slot):
        r = V_RING + 24*slot
        for j in range(3): a(f'buffer_load_dwordx4 v[{r+4*j}:{r+4*j+3}], v{V_OFFB}, s[{SRD_K}:{SRD_K+3}], s{S_OFF} offen offset:{128*j}{fl}')
        for j in range(3): a(f'buffer_load_dwordx4 v[{r+12+4*j}:{r+12+4*j+3}], v{V_OFFB}, s[{SRD_V}:{SRD_V+3}], s{S_OFF} offen offset:{128*j}{fl}')
        a(f's_add_u32 s{S_OFF}, s{S_OFF}, 3072')
    return dict(S=S, nch=nch, U=U, atomic=atomic, setoff=setoff, issue=issue, F=F, C=C)

def stream_prologue(a, st):
    st['atomic'](); st['setoff']()
    for n in range(st['F']): st['issue'](n % st['S'])

def stream_loop(a, st):
    F, C, S, U, nch = st['F'], st['C'], st['S'], st['U'], st['nch']
    for i in range(24): a(f'v_mov_b32 v{V_ACC+i}, 0')
    a(f'v_mov_b32 v{V_M}, 0x{NEGBIG:08x}', f'v_mov_b32 v{V_L}, 0')
    loop = a.label('loop'); done = a.label('sdone')
    drains = []
    a(f'{loop}:')
    for t in range(U):
        nat = sum(1 for k in range(1, F) if ((t - k) + F) % C == 0)
        a(f's_waitcnt vmcnt({6*(F-1) + nat})')
        if (t + F) % C == 0:
            dl = a.label('drain'); drains.append((dl, t))
            a(f'v_readfirstlane_b32 s{S_NX}, v{V_ATOM}', 's_nop 0', f's_add_u32 s{S_NX}, s{S_NX}, 32',
              f's_cmp_ge_u32 s{S_NX}, {nch}', f's_cbranch_scc1 {dl}')
            st['atomic'](); st['setoff']()
        st['issue']((t + F) % S)
        compute_unit(a, V_RING + 24*(t % S))
    a(f's_branch {loop}')
    for dl, t in drains:
        a(f'{dl}:')
        for k in range(F):
            if k > 0: a(f's_waitcnt vmcnt({6*(F-1-k)})')
            compute_unit(a, V_RING + 24*((t + k) % S))
        a(f's_branch {done}')
    a(f'{done}:')

def phase_t1(a):
    t = V_T
    a('s_nop 2')
    a(f'v_mov_b32 v{t+2}, v{V_M}')
    groups_red(a, t+2, t+3, 'max')
    a(f'v_sub_f32 v{t+4}, v{V_M}, v{t+2}', f'v_mul_f32 v{t+4}, s{S_LOG2E}, v{t+4}', f'v_exp_f32 v{t+4}, v{t+4}', 's_nop 0')
    for i in range(12):
        a(f'v_pk_mul_f32 v[{V_ACC+2*i}:{V_ACC+2*i+1}], v[{V_ACC+2*i}:{V_ACC+2*i+1}], v[{t+4}:{t+5}] op_sel_hi:[1,0]')
    a(f'v_mul_f32 v{V_L}, v{V_L}, v{t+4}')
    groups_red(a, V_L, t+3, 'add')
    a(f'v_mov_b32 v{t+3}, v{V_L}')
    red_write(a, t+6)
    a(f's_lshl_b32 s{S_T0}, s{S_WAVE}, 3', f'v_mov_b32 v{t+6}, s{S_T0}', f'ds_write_b64 v{t+6}, v[{t+2}:{t+3}] offset:{L_SM}')
    a('s_waitcnt lgkmcnt(0)', 's_barrier')
    done = a.label('t1d')
    a(f's_cmp_ge_u32 s{S_WAVE}, 3', f's_cbranch_scc1 {done}')
    a(f'ds_read_b128 v[100:103], v{V_ZERO} offset:{L_SM}', f'ds_read_b128 v[104:107], v{V_ZERO} offset:{L_SM+16}')
    red_read(a, 64, 96)
    a('v_max_f32 v108, v100, v102', 'v_max3_f32 v108, v108, v104, v106')
    for w in range(4):
        a(f'v_sub_f32 v{110+w}, v{100+2*w}, v108', f'v_mul_f32 v{110+w}, s{S_LOG2E}, v{110+w}', f'v_exp_f32 v{110+w}, v{110+w}')
    a('s_nop 0')
    a('v_mul_f32 v96, v96, v110', 'v_mul_f32 v109, v101, v110')
    for w in range(1, 4):
        a(f'v_fmac_f32 v96, v{96+w}, v{110+w}', f'v_fmac_f32 v109, v{101+2*w}, v{110+w}')
    a(f's_lshl_b32 s{S_T0}, s{S_HEAD}, 3', f's_add_u32 s{S_T0}, s{S_T0}, s{S_MEM}', f's_lshl_b32 s{S_T0}, s{S_T0}, 10',
      f's_add_u32 s{S_T0}, s{S_T0}, {OP}', f'v_lshlrev_b32 v{V_T}, 2, v0')
    a(f'buffer_store_dword v96, v{V_T}, s[{SRD_WS}:{SRD_WS+3}], s{S_T0} offen sc1')
    a('v_mov_b32 v110, v108', 'v_mov_b32 v111, v109', 'v_cmp_eq_u32 vcc, 0, v0', 's_and_saveexec_b64 s[34:35], vcc')
    sk = a.label('t1s')
    a(f's_cbranch_execz {sk}')
    a(f'buffer_store_dwordx2 v[110:111], v{V_ZERO}, s[{SRD_WS}:{SRD_WS+3}], s{S_T0} offen offset:768 sc1')
    a(f'{sk}:', 's_mov_b64 exec, s[34:35]')
    a(f'{done}:')

W_W = 160
def phase_w_load(a):
    srd(a, SRD_A, P_WO, 7864320)
    a(f's_and_b32 s{S_T0}, s2, 7', f's_lshr_b32 s{S_T1}, s2, 3')
    a(f's_mul_i32 s{S_T0}, s{S_T0}, {768*1280}', f's_lshl_b32 s{S_T1}, s{S_T1}, 6', f's_add_u32 s{S_T0}, s{S_T0}, s{S_T1}')
    a(f'v_lshrrev_b32 v{V_T}, 2, v0', f'v_mul_u32_u24 v{V_T}, 1280, v{V_T}', f'v_and_b32 v{V_T+1}, 3, v0', f'v_lshl_add_u32 v{V_T}, v{V_T+1}, 4, v{V_T}')
    for p in range(12):
        a(f'buffer_load_dwordx4 v[{W_W+4*p}:{W_W+4*p+3}], v{V_T}, s[{SRD_A}:{SRD_A+3}], s{S_T0} offen')
        if p < 11: a(f's_add_u32 s{S_T0}, s{S_T0}, {64*1280}')

def phase_w(a, poll):
    O = 64
    ML = 88
    a(f's_and_b32 s{S_T0}, s2, 7', f's_lshl_b32 s{S_T0}, s{S_T0}, 2', f's_add_u32 s{S_T0}, s{S_T0}, s{S_WAVE}',
      f's_lshl_b32 s{S_T0}, s{S_T0}, 13', f's_add_u32 s{S_T0}, s{S_T0}, {OP}', f's_add_u32 s{S_T1}, s{S_T0}, 4096',
      f'v_lshlrev_b32 v{V_T}, 2, v{V_LANE}')
    lbl = a.label('wspin')
    if poll: spin_begin(a, lbl)
    for s in range(8):
        so = S_T0 if s < 4 else S_T1
        for j in range(3):
            a(f'buffer_load_dword v{O+3*s+j}, v{V_T}, s[{SRD_WS}:{SRD_WS+3}], s{so} offen offset:{1024*(s&3)+256*j} sc1')
        a(f'buffer_load_dwordx2 v[{ML+2*s}:{ML+2*s+1}], v{V_ZERO}, s[{SRD_WS}:{SRD_WS+3}], s{so} offen offset:{1024*(s&3)+768} sc1')
    a('s_waitcnt vmcnt(0)')
    if poll: spin_end(a, lbl, list(range(O, O+40)), V_T+1)
    Mx, Ls = 104, 105
    a(f'v_max_f32 v{Mx}, v{ML}, v{ML+2}')
    for s in range(2, 8, 2): a(f'v_max3_f32 v{Mx}, v{Mx}, v{ML+2*s}, v{ML+2*s+2}')
    Fs = 106
    for s in range(8):
        a(f'v_sub_f32 v{Fs+s}, v{ML+2*s}, v{Mx}', f'v_mul_f32 v{Fs+s}, s{S_LOG2E}, v{Fs+s}', f'v_exp_f32 v{Fs+s}, v{Fs+s}')
    a('s_nop 0')
    a(f'v_mul_f32 v{Ls}, v{ML+1}, v{Fs}')
    for s in range(1, 8): a(f'v_fmac_f32 v{Ls}, v{ML+2*s+1}, v{Fs+s}')
    a(f'v_rcp_f32 v{Ls}, v{Ls}')
    for j in range(3):
        a(f'v_mul_f32 v{114+j}, v{O+j}, v{Fs}')
        for s in range(1, 8): a(f'v_fmac_f32 v{114+j}, v{O+3*s+j}, v{Fs+s}')
    for j in range(3):
        a(f'v_mul_f32 v{114+j}, v{114+j}, v{Ls}')
        bf16r(a, 114+j, 114+j)
    a(f's_mul_i32 s{S_T0}, s{S_WAVE}, 768', f'v_add_u32 v{V_T}, s{S_T0}, v{V_T}')
    for j in range(3): a(f'ds_write_b32 v{V_T}, v{114+j} offset:{L_OV+256*j}')
    a('s_waitcnt lgkmcnt(0)', 's_barrier')
    a(f'v_lshrrev_b32 v{V_T}, 2, v0', f'v_lshlrev_b32 v{V_T}, 2, v{V_T}')
    U = 64
    for p in range(12): a(f'ds_read_b32 v{U+p}, v{V_T} offset:{L_OV+256*p}')
    A = 80
    for i in range(8): a(f'v_mov_b32 v{A+i}, 0')
    a('s_waitcnt lgkmcnt(0) vmcnt(0)')
    for p in range(12):
        a(f'v_lshrrev_b32 v{U+12}, 16, v{U+p}')
        for i in range(4):
            a(f'v_dot2_f32_bf16 v{A+2*i}, v{W_W+4*p+i}, v{U+12}, v{A+2*i}')
            a(f'v_dot2_f32_bf16 v{A+2*i+1}, v{W_W+4*p+i}, v{U+p}, v{A+2*i+1}')
    a('s_nop 2')
    for d in ('row_ror:4', 'row_ror:8'):
        for i in range(8): a(f'v_add_f32_dpp v{A+i}, v{A+i}, v{A+i} {d} row_mask:0xf bank_mask:0xf')
        a('s_nop 1')
    a(f'v_lshrrev_b32 v{V_T}, 4, v0', f'v_lshlrev_b32 v{V_T}, 7, v{V_T}', f'v_and_b32 v{V_T+1}, 3, v0', f'v_lshl_add_u32 v{V_T}, v{V_T+1}, 5, v{V_T}')
    a(f'v_and_b32 v{V_T+1}, 12, v0', f'v_cmp_eq_u32 vcc, 0, v{V_T+1}', 's_and_saveexec_b64 s[34:35], vcc')
    a(f'ds_write_b128 v{V_T}, v[{A}:{A+3}] offset:{L_RED}', f'ds_write_b128 v{V_T}, v[{A+4}:{A+7}] offset:{L_RED+16}')
    a('s_mov_b64 exec, s[34:35]', 's_waitcnt lgkmcnt(0)', 's_barrier')
    done = a.label('wd')
    a(f's_cmp_ge_u32 s{S_WAVE}, 1', f's_cbranch_scc1 {done}')
    a(f'v_and_b32 v{V_T}, 31, v0', f'v_lshlrev_b32 v{V_T}, 2, v{V_T}')
    for k in range(16): a(f'ds_read_b32 v{U+k}, v{V_T} offset:{L_RED+128*k}')
    a('s_waitcnt lgkmcnt(0)')
    for k in range(1, 16): a(f'v_add_f32 v{U}, v{U}, v{U+k}')
    a(f's_and_b32 s{S_T0}, s2, 7', f's_mul_i32 s{S_T0}, s{S_T0}, 2560', f's_lshr_b32 s{S_T1}, s2, 3', f's_lshl_b32 s{S_T1}, s{S_T1}, 7',
      f's_add_u32 s{S_T0}, s{S_T0}, s{S_T1}', f's_add_u32 s{S_T0}, s{S_T0}, {HP}')
    a('v_cmp_gt_u32 vcc, 32, v0', 's_and_saveexec_b64 s[34:35], vcc')
    a(f'buffer_store_dword v{U}, v{V_T}, s[{SRD_WS}:{SRD_WS+3}], s{S_T0} offen sc1')
    a('s_mov_b64 exec, s[34:35]')
    a(f'{done}:')

H_HN = 70
H_X = 64
V_SIG = 57
def phase_h_load(a):
    srd(a, SRD_A, P_X, 1280); srd(a, SRD_B, P_WR, 1280)
    a(f'v_lshlrev_b32 v{V_T}, 2, v{V_LANE}')
    for j in range(5): a(f'buffer_load_dword v{208+j}, v{V_T}, s[{SRD_A}:{SRD_A+3}], 0 offen offset:{256*j}')
    for j in range(5): a(f'buffer_load_dword v{213+j}, v{V_T}, s[{SRD_B}:{SRD_B+3}], 0 offen offset:{256*j}')

def phase_h(a, poll):
    P = 80
    a(f's_mul_i32 s{S_T0}, s{S_WAVE}, 5120', f's_add_u32 s{S_T0}, s{S_T0}, {HP}', f's_add_u32 s{S_T1}, s{S_T0}, 2560', f'v_lshlrev_b32 v{V_T}, 3, v{V_LANE}')
    lbl = a.label('hspin')
    if poll: spin_begin(a, lbl)
    for b in range(2):
        for j in range(5):
            a(f'buffer_load_dwordx2 v[{P+10*b+2*j}:{P+10*b+2*j+1}], v{V_T}, s[{SRD_WS}:{SRD_WS+3}], s{S_T0+b} offen offset:{512*j} sc1')
    a('s_waitcnt vmcnt(0)')
    if poll: spin_end(a, lbl, list(range(P, P+20)), V_T+1)
    for i in range(10): a(f'v_add_f32 v{P+i}, v{P+i}, v{P+10+i}')
    a(f's_mul_i32 s{S_T0}, s{S_WAVE}, 2560', f'v_add_u32 v{V_T+1}, s{S_T0}, v{V_T}')
    for j in range(5): a(f'ds_write_b64 v{V_T+1}, v[{P+2*j}:{P+2*j+1}] offset:{L_RED+512*j}')
    a('s_waitcnt lgkmcnt(0)', 's_barrier')
    R = 100
    for w in range(4):
        for j in range(5): a(f'ds_read_b64 v[{R+10*w+2*j}:{R+10*w+2*j+1}], v{V_T} offset:{L_RED+2560*w+512*j}')
    a('s_waitcnt lgkmcnt(0)')
    a('s_barrier')
    unpack5(a, 208, H_HN)
    for i in range(10):
        a(f'v_add_f32 v{R+i}, v{R+i}, v{R+10+i}', f'v_add_f32 v{R+20+i}, v{R+20+i}, v{R+30+i}', f'v_add_f32 v{R+i}, v{R+i}, v{R+20+i}')
        bf16r(a, R+i, R+i)
        a(f'v_add_f32 v{H_HN+i}, v{H_HN+i}, v{R+i}')
        bf16r(a, H_HN+i, H_HN+i)
    for j in range(5): a(f'v_cvt_pk_bf16_f32 v{H_X+j}, v{H_HN+2*j}, v{H_HN+2*j+1}')
    a(f's_mul_i32 s{S_T0}, s{S_WAVE}, 1280', f'v_lshlrev_b32 v{V_T}, 2, v{V_LANE}', f'v_add_u32 v{V_T}, s{S_T0}, v{V_T}')
    for j in range(5): a(f'ds_write_b32 v{V_T}, v{H_X+j} offset:{L_H+256*j}')
    layernorm(a, H_HN, V_T+4)
    for j in range(5): a(f'v_cvt_pk_bf16_f32 v{H_X+j}, v{H_HN+2*j}, v{H_HN+2*j+1}')
    for j in range(5): a(f'ds_write_b32 v{V_T}, v{H_X+j} offset:{L_XN+256*j}')
    a(f'v_mov_b32 v{V_SIG}, 0')
    for j in range(5): a(f'v_dot2_f32_bf16 v{V_SIG}, v{H_X+j}, v{213+j}, v{V_SIG}')
    a('s_nop 2')
    wave_red(a, V_SIG, V_T+1)
    bf16r(a, V_SIG, V_SIG)
    a(f'v_mul_f32 v{V_SIG}, s{S_LOG2E}, v{V_SIG}', f'v_sub_f32 v{V_SIG}, 0, v{V_SIG}', f'v_exp_f32 v{V_SIG}, v{V_SIG}', 's_nop 0',
      f'v_add_f32 v{V_SIG}, 1.0, v{V_SIG}', f'v_rcp_f32 v{V_SIG}, v{V_SIG}', 's_nop 0')
    bf16r(a, V_SIG, V_SIG)
    a('s_waitcnt lgkmcnt(0)')

W_GU = 160
W_DN = 220
def m_index(a):
    a(f's_sub_u32 s{S_T0}, s2, 160', f's_and_b32 s{S_T1}, s{S_T0}, 7', f's_mul_i32 s{S_T1}, s{S_T1}, 12', f's_lshr_b32 s{S_T0}, s{S_T0}, 3', f's_add_u32 s{S_M}, s{S_T0}, s{S_T1}')
def phase_m_load(a):
    a(f's_cmp_ge_u32 s{S_WAVE}, 2', f's_cselect_b32 s{S_T0}, s{P_WU}, s{P_WG}', f's_cselect_b32 s{S_T1}, s{P_WU+1}, s{P_WG+1}')
    srd(a, SRD_A, S_T0, 1966080)
    srd(a, SRD_B, P_WD, 1966080)
    a(f'v_and_b32 v{V_T}, 127, v0', f'v_lshrrev_b32 v{V_T+1}, 1, v{V_T}', f'v_mul_u32_u24 v{V_T+1}, 3072, v{V_T+1}', f'v_and_b32 v{V_T}, 1, v{V_T}',
      f'v_lshl_add_u32 v{V_T}, v{V_T}, 4, v{V_T+1}')
    a(f's_lshl_b32 s{S_T2}, s{S_M}, 5')
    for p in range(10):
        a(f'buffer_load_dwordx4 v[{W_GU+4*p}:{W_GU+4*p+3}], v{V_T}, s[{SRD_A}:{SRD_A+3}], s{S_T2} offen')
        if p < 9: a(f's_add_u32 s{S_T2}, s{S_T2}, {64*3072}')
    a(f's_lshl_b32 s{S_T2}, s{S_M}, 4', f's_lshl_b32 s{S_T3}, s{S_WAVE}, 2', f's_add_u32 s{S_T2}, s{S_T2}, s{S_T3}', f's_mul_i32 s{S_T2}, s{S_T2}, 1280',
      f'v_lshlrev_b32 v{V_T}, 2, v{V_LANE}')
    for i in range(4):
        for j in range(5): a(f'buffer_load_dword v{W_DN+5*i+j}, v{V_T}, s[{SRD_B}:{SRD_B+3}], s{S_T2} offen offset:{256*j}')
        if i < 3: a(f's_add_u32 s{S_T2}, s{S_T2}, 1280')

def phase_m(a):
    U = 80; A = 96
    a(f'v_and_b32 v{V_T}, 127, v0', f'v_lshrrev_b32 v{V_T}, 1, v{V_T}', f'v_lshlrev_b32 v{V_T}, 1, v{V_T}', f's_mul_i32 s{S_T0}, s{S_WAVE}, 1280', f'v_add_u32 v{V_T}, s{S_T0}, v{V_T}')
    for p in range(10): a(f'ds_read_u16 v{U+p}, v{V_T} offset:{L_XN+128*p}')
    for i in range(8): a(f'v_mov_b32 v{A+i}, 0')
    a('s_waitcnt lgkmcnt(0) vmcnt(0)')
    for p in range(10):
        a(f'v_lshlrev_b32 v{U+10}, 16, v{U+p}')
        for i in range(4):
            a(f'v_dot2_f32_bf16 v{A+2*i}, v{W_GU+4*p+i}, v{U+p}, v{A+2*i}')
            a(f'v_dot2_f32_bf16 v{A+2*i+1}, v{W_GU+4*p+i}, v{U+10}, v{A+2*i+1}')
    a('s_nop 2')
    for d in ('quad_perm:[2,3,0,1]', 'row_ror:4', 'row_ror:8'):
        for i in range(8): a(f'v_add_f32_dpp v{A+i}, v{A+i}, v{A+i} {d} row_mask:0xf bank_mask:0xf')
        a('s_nop 1')
    a(f'v_lshrrev_b32 v{V_T}, 4, v0', f'v_lshlrev_b32 v{V_T}, 6, v{V_T}', f'v_and_b32 v{V_T+1}, 1, v0', f'v_lshl_add_u32 v{V_T}, v{V_T+1}, 5, v{V_T}')
    a(f'v_and_b32 v{V_T+1}, 14, v0', f'v_cmp_eq_u32 vcc, 0, v{V_T+1}', 's_and_saveexec_b64 s[34:35], vcc')
    a(f'ds_write_b128 v{V_T}, v[{A}:{A+3}] offset:{L_RED}', f'ds_write_b128 v{V_T}, v[{A+4}:{A+7}] offset:{L_RED+16}')
    a('s_mov_b64 exec, s[34:35]', 's_waitcnt lgkmcnt(0)', 's_barrier')
    a(f'v_and_b32 v{V_T}, 15, v{V_LANE}', f'v_lshlrev_b32 v{V_T}, 2, v{V_T}')
    for k in range(16): a(f'ds_read_b32 v{U+k}, v{V_T} offset:{L_RED+64*k}')
    a('s_waitcnt lgkmcnt(0)')
    for k in range(1, 8): a(f'v_add_f32 v{U}, v{U}, v{U+k}', f'v_add_f32 v{U+8}, v{U+8}, v{U+8+k}')
    bf16r(a, U, U); bf16r(a, U+8, U+8)
    a(f'v_mul_f32 v{U+1}, s{S_LOG2E}, v{U}', f'v_sub_f32 v{U+1}, 0, v{U+1}', f'v_exp_f32 v{U+1}, v{U+1}', 's_nop 0',
      f'v_add_f32 v{U+1}, 1.0, v{U+1}', f'v_rcp_f32 v{U+1}, v{U+1}', 's_nop 0', f'v_mul_f32 v{U}, v{U}, v{U+1}')
    bf16r(a, U, U)
    a(f'v_mul_f32 v{U}, v{U}, v{U+8}')
    bf16r(a, U, U)
    a(f's_lshl_b32 s{S_T0}, s{S_WAVE}, 2', 's_nop 3')
    for i in range(4):
        a(f's_add_u32 s{S_T1}, s{S_T0}, {i}', f'v_readlane_b32 s{68+i}, v{U}, s{S_T1}')
    for i in range(10): a(f'v_mov_b32 v{A+i}, 0')
    for i in range(4):
        a(f's_lshr_b32 s{72+i}, s{68+i}, 16')
    a('s_nop 1')
    for i in range(4):
        for j in range(5):
            a(f'v_dot2_f32_bf16 v{A+2*j}, v{W_DN+5*i+j}, s{72+i}, v{A+2*j}')
            a(f'v_dot2_f32_bf16 v{A+2*j+1}, v{W_DN+5*i+j}, s{68+i}, v{A+2*j+1}')
    a('s_barrier')
    a('s_nop 1')
    a(f's_mul_i32 s{S_T0}, s{S_WAVE}, 2560', f'v_lshlrev_b32 v{V_T}, 3, v{V_LANE}', f'v_add_u32 v{V_T}, s{S_T0}, v{V_T}')
    for j in range(5): a(f'ds_write_b64 v{V_T}, v[{A+2*j}:{A+2*j+1}] offset:{L_RED+512*j}')
    a('s_waitcnt lgkmcnt(0)', 's_barrier')
    done = a.label('md')
    a('v_cmp_gt_u32 vcc, 160, v0', 's_and_saveexec_b64 s[34:35], vcc', f's_cbranch_execz {done}')
    a(f'v_lshlrev_b32 v{V_T}, 4, v0')
    for w in range(4): a(f'ds_read_b128 v[{U+4*w}:{U+4*w+3}], v{V_T} offset:{L_RED+2560*w}')
    a('s_waitcnt lgkmcnt(0)')
    for e in range(4):
        a(f'v_add_f32 v{U+e}, v{U+e}, v{U+4+e}', f'v_add_f32 v{U+8+e}, v{U+8+e}, v{U+12+e}', f'v_add_f32 v{U+e}, v{U+e}, v{U+8+e}')
    a(f'v_lshrrev_b32 v{V_T}, 2, v0', f'v_mul_u32_u24 v{V_T}, 6144, v{V_T}', f'v_and_b32 v{V_T+1}, 3, v0', f'v_lshl_add_u32 v{V_T}, v{V_T+1}, 4, v{V_T}',
      f's_lshl_b32 s{S_T0}, s{S_M}, 6', f's_add_u32 s{S_T0}, s{S_T0}, {YP}')
    a(f'buffer_store_dwordx4 v[{U}:{U+3}], v{V_T}, s[{SRD_WS}:{SRD_WS+3}], s{S_T0} offen sc1')
    a(f'{done}:', 's_mov_b64 exec, s[34:35]')

def phase_f(a, poll):
    U = 80
    a(f's_mul_i32 s{S_T0}, s{S_M}, 6144', f's_add_u32 s{S_T0}, s{S_T0}, {YP}', f's_add_u32 s{S_T1}, s{S_T0}, 4096', f'v_lshlrev_b32 v{V_T}, 4, v0')
    lbl = a.label('fspin')
    if poll: spin_begin(a, lbl)
    for i in range(4): a(f'v_mov_b32 v{U+4+i}, 0')
    a(f'buffer_load_dwordx4 v[{U}:{U+3}], v{V_T}, s[{SRD_WS}:{SRD_WS+3}], s{S_T0} offen sc1')
    sk = a.label('f2')
    a(f's_cmp_ge_u32 s{S_WAVE}, 2', f's_cbranch_scc1 {sk}')
    a(f'buffer_load_dwordx4 v[{U+4}:{U+7}], v{V_T}, s[{SRD_WS}:{SRD_WS+3}], s{S_T1} offen sc1')
    a(f'{sk}:', 's_waitcnt vmcnt(0)')
    if poll: spin_end(a, lbl, list(range(U, U+8)), V_T+1)
    for e in range(4): a(f'v_add_f32 v{U+e}, v{U+e}, v{U+4+e}')
    a('s_nop 1')
    for d in ('row_ror:4', 'row_ror:8'):
        for e in range(4): a(f'v_add_f32_dpp v{U+e}, v{U+e}, v{U+e} {d} row_mask:0xf bank_mask:0xf')
        a('s_nop 1')
    a('s_barrier')
    a(f'v_lshrrev_b32 v{V_T}, 4, v0', f'v_lshlrev_b32 v{V_T}, 6, v{V_T}', f'v_and_b32 v{V_T+1}, 3, v0', f'v_lshl_add_u32 v{V_T}, v{V_T+1}, 4, v{V_T}')
    a(f'v_and_b32 v{V_T+1}, 12, v0', f'v_cmp_eq_u32 vcc, 0, v{V_T+1}', 's_and_saveexec_b64 s[34:35], vcc')
    a(f'ds_write_b128 v{V_T}, v[{U}:{U+3}] offset:{L_RED}')
    a('s_mov_b64 exec, s[34:35]', 's_waitcnt lgkmcnt(0)', 's_barrier')
    done = a.label('fd')
    a(f's_cmp_ge_u32 s{S_WAVE}, 1', f's_cbranch_scc1 {done}')
    a(f'v_and_b32 v{V_T}, 15, v0', f'v_lshlrev_b32 v{V_T}, 2, v{V_T}')
    for k in range(16): a(f'ds_read_b32 v{U+k}, v{V_T} offset:{L_RED+64*k}')
    a(f'v_and_b32 v{V_T+1}, 15, v0', f's_lshl_b32 s{S_T0}, s{S_M}, 4', f'v_add_u32 v{V_T+1}, s{S_T0}, v{V_T+1}', f'v_lshlrev_b32 v{V_T+1}, 1, v{V_T+1}')
    a(f'ds_read_u16 v{U+16}, v{V_T+1} offset:{L_H}', f'ds_read_u16 v{U+17}, v{V_T+1} offset:{L_XN}')
    a('s_waitcnt lgkmcnt(0)')
    for k in range(1, 16): a(f'v_add_f32 v{U}, v{U}, v{U+k}')
    bf16r(a, U, U)
    a(f'v_mul_f32 v{U}, v{U}, v{V_SIG}')
    bf16r(a, U, U)
    a(f'v_lshlrev_b32 v{U+16}, 16, v{U+16}', f'v_lshlrev_b32 v{U+17}, 16, v{U+17}')
    a(f'v_add_f32 v{U}, v{U+17}, v{U}')
    bf16r(a, U, U)
    a(f'v_add_f32 v{U}, v{U+16}, v{U}', f'v_cvt_pk_bf16_f32 v{U}, v{U}, v{U}')
    srd(a, SRD_A, P_OUT, 1280)
    a('v_cmp_gt_u32 vcc, 16, v0', 's_and_saveexec_b64 s[34:35], vcc')
    a(f'buffer_store_short v{U}, v{V_T+1}, s[{SRD_A}:{SRD_A+3}], 0 offen')
    a('s_mov_b64 exec, s[34:35]')
    a(f'{done}:')

def kernel(a, name, nwg, body):
    end = a.label('end')
    a(f'.globl {name}', '.p2align 8', f'.type {name},@function', f'{name}:')
    prologue(a, nwg, end)
    body(a)
    a('s_waitcnt vmcnt(0) lgkmcnt(0)')
    a(f'{end}:', 's_endpgm')

def build_multi(F=1, C=2):
    a = Asm()
    K = lambda n: f'{n}_kernel'
    launches = [('kq', 256), ('katt', 256), ('kw', 160), ('km', 256), ('kf', 256)]
    hdr = header([f'; @launch kernel={K(n)} grid=({g},1,1) block=(256,1,1) lds={LDS_BYTES}' for n, g in launches])
    a('.amdgcn_target "amdgcn-amd-amdhsa--gfx950"', '.text')
    def kq(a): phase_init(a); phase_q(a)
    def katt(a):
        st = phase_stream(a, F, C)
        stream_prologue(a, st)
        phase_qgather(a, False)
        stream_loop(a, st)
        phase_t1(a)
    def kw(a): phase_w_load(a); phase_w(a, False)
    def km(a):
        e = a.label('mskip')
        a('s_cmp_lt_u32 s2, 160', f's_cbranch_scc1 {e}')
        m_index(a); phase_h_load(a); phase_m_load(a); phase_h(a, False); phase_m(a)
        a(f'{e}:')
    def kf(a):
        e = a.label('fskip')
        a('s_cmp_lt_u32 s2, 160', f's_cbranch_scc1 {e}')
        m_index(a)
        a(f's_cmp_ge_u32 s{S_M}, 40', f's_cbranch_scc1 {e}')
        phase_h_load(a); phase_h(a, False); phase_f(a, False)
        a(f'{e}:')
    for (n, g), body in zip(launches, (kq, katt, kw, km, kf)):
        kernel(a, K(n), g, body)
    a('.section .rodata,"a"')
    for n, g in launches:
        a('.p2align 6')
        a.lines.append(kernel_desc(K(n), 256, 102))
    return '\n'.join(hdr) + '\n' + a.text()

if __name__ == '__main__':
    F = int(sys.argv[1]) if len(sys.argv) > 1 else 1
    C = int(sys.argv[2]) if len(sys.argv) > 2 else 2
    sys.stdout.write(build_multi(F, C))
```

```python
import struct, math, sys
from asmlib import *

def f2u(x): return struct.unpack('<I', struct.pack('<f', x))[0]
SCALE = f2u(192 ** -0.5)
LOG2E = f2u(1.4426950408889634)
INV640 = f2u(1.0/640)
EPS = f2u(1e-5)
NEGBIG = 0xFF7FFFFF & 0xFF000000 | 0x00000000
NEGBIG = f2u(-3.0e38)
KV_BYTES = 402653184
HEAD_BYTES = 12582912
QP, CNT, OP, HP, YP, WS_USED = 0x00000, 0x40000, 0x50000, 0x90000, 0xA0000, 0x200000
SENT = 0xFFFFFFFF
L_RED = 0
L_XN  = 24576
L_H   = 29696
L_SM  = 34816
L_OV  = 35840
LDS_BYTES = 38912
S_WAVE = 3
SRD_K, SRD_V, SRD_WS, SRD_A, SRD_B = 8, 12, 16, 20, 24
P_X, P_K, P_V, P_WQ, P_WO, P_BX, P_WR, P_WG = 36, 38, 40, 42, 44, 46, 48, 50
P_WU, P_WD, P_OUT, P_DBG, P_WS = 52, 54, 56, 58, 60
S_HEAD, S_MEM, S_SCALE, S_LOG2E = 28, 29, 30, 31
S_T0, S_T1, S_T2, S_T3 = 32, 33, 34, 35
S_OFF, S_HB, S_CNT, S_NX = 62, 63, 64, 65
S_SPIN = 66
S_M = 67
S_ROT = 76
HROT = 37
V_TID, V_LANE, V_OFFB, V_ZERO = 0, 1, 2, 3
V_Q = 4
V_ACC = 16
V_M, V_L = 40, 41
V_T = 42
V_ATOM = 56
V_RING = 64

def srd(a, reg, ptr, size):
    a(f's_mov_b32 s{reg}, s{ptr}')
    a(f's_and_b32 s{reg+1}, s{ptr+1}, 0xffff')
    a(f's_mov_b32 s{reg+2}, {size}')
    a(f's_mov_b32 s{reg+3}, 0x20000')

def prologue(a, nwg, endlabel):
    a(f's_cmp_ge_u32 s2, {nwg}', f's_cbranch_scc1 {endlabel}')
    a('s_load_dwordx16 s[36:51], s[0:1], 0')
    a('s_load_dwordx8 s[52:59], s[0:1], 64')
    a('s_load_dwordx2 s[60:61], s[0:1], 96')
    a(f'v_lshrrev_b32 v{V_LANE}, 6, v0', 's_nop 0', f'v_readfirstlane_b32 s{S_WAVE}, v{V_LANE}')
    a(f'v_and_b32 v{V_LANE}, 63, v0')
    a(f'v_mov_b32 v{V_ZERO}, 0')
    a(f'v_lshrrev_b32 v{V_T}, 3, v{V_LANE}', f'v_mul_u32_u24 v{V_T}, 384, v{V_T}', f'v_and_b32 v{V_T+1}, 7, v{V_LANE}',
      f'v_lshl_add_u32 v{V_OFFB}, v{V_T+1}, 4, v{V_T}')
    a(f's_mov_b32 s{S_SCALE}, 0x{SCALE:08x}', f's_mov_b32 s{S_LOG2E}, 0x{LOG2E:08x}')
    a(f's_lshr_b32 s{S_T0}, s2, 3', f's_and_b32 s{S_MEM}, s2, 7', f's_lshl_b32 s{S_T1}, s{S_MEM}, 2',
      f's_add_u32 s{S_T0}, s{S_T0}, s{S_T1}', f's_and_b32 s{S_HEAD}, s{S_T0}, 31')
    a('s_waitcnt lgkmcnt(0)')
    srd(a, SRD_WS, P_WS, WS_USED)

def bf16r(a, dst, src):
    a(f'v_cvt_pk_bf16_f32 v{dst}, v{src}, v{src}', f'v_and_b32 v{dst}, 0xffff0000, v{dst}')

def wave_red(a, v, t, op='add'):
    ins = 'v_add_f32' if op == 'add' else 'v_max_f32'
    for d in ('quad_perm:[1,0,3,2]', 'quad_perm:[2,3,0,1]', 'row_half_mirror', 'row_mirror'):
        a('s_nop 1', f'{ins}_dpp v{v}, v{v}, v{v} {d} row_mask:0xf bank_mask:0xf')
    for p in ('v_permlane16_swap_b32', 'v_permlane32_swap_b32'):
        a(f'v_mov_b32 v{t}, v{v}', 's_nop 1', f'{p} v{t}, v{v}', f's_nop 0', f'{ins} v{v}, v{v}, v{t}')

def groups_red(a, v, t, op='add'):
    ins = 'v_add_f32' if op == 'add' else 'v_max_f32'
    a('s_nop 1', f'{ins}_dpp v{v}, v{v}, v{v} row_ror:8 row_mask:0xf bank_mask:0xf')
    for p in ('v_permlane16_swap_b32', 'v_permlane32_swap_b32'):
        a(f'v_mov_b32 v{t}, v{v}', 's_nop 1', f'{p} v{t}, v{v}', f's_nop 0', f'{ins} v{v}, v{v}, v{t}')

def layernorm(a, x, t):
    s, u, mean, sd, rs, e = t, t+1, t+2, t+3, t+4, t+5
    a(f'v_add_f32 v{s}, v{x}, v{x+1}')
    for i in range(2, 10): a(f'v_add_f32 v{s}, v{s}, v{x+i}')
    wave_red(a, s, u)
    a(f'v_mul_f32 v{mean}, 0x{INV640:08x}, v{s}')
    a(f'v_sub_f32 v{u}, v{x}, v{mean}', f'v_mul_f32 v{s}, v{u}, v{u}')
    for i in range(1, 10):
        a(f'v_sub_f32 v{u}, v{x+i}, v{mean}', f'v_fmac_f32 v{s}, v{u}, v{u}')
    wave_red(a, s, u)
    a(f'v_mul_f32 v{s}, 0x{INV640:08x}, v{s}')
    bf16r(a, s, s)
    a(f'v_add_f32 v{s}, 0x{EPS:08x}, v{s}')
    bf16r(a, s, s)
    a(f'v_sqrt_f32 v{sd}, v{s}', 's_nop 0')
    bf16r(a, sd, sd)
    a(f'v_rcp_f32 v{rs}, v{sd}')
    bf16r(a, mean, mean)
    for i in range(10):
        a(f'v_sub_f32 v{x+i}, v{x+i}, v{mean}')
        bf16r(a, x+i, x+i)
        a(f'v_mul_f32 v{u}, v{x+i}, v{rs}', f'v_fma_f32 v{e}, -v{u}, v{sd}, v{x+i}', f'v_fma_f32 v{x+i}, v{e}, v{rs}, v{u}')

def unpack5(a, src, dst):
    for j in range(5):
        a(f'v_lshlrev_b32 v{dst+2*j}, 16, v{src+j}', f'v_and_b32 v{dst+2*j+1}, 0xffff0000, v{src+j}')

def pv_unit(a, vreg, plo, phi, acc=V_ACC):
    for j in range(3):
        for i in range(4):
            a(f'v_dot2_f32_bf16 v{acc+8*j+2*i}, v{vreg+4*j+i}, v{plo}, v{acc+8*j+2*i}')
            a(f'v_dot2_f32_bf16 v{acc+8*j+2*i+1}, v{vreg+4*j+i}, v{phi}, v{acc+8*j+2*i+1}')

def red_write(a, t):
    a(f'v_lshrrev_b32 v{t}, 3, v{V_LANE}', f'v_mul_u32_u24 v{t}, 768, v{t}', f'v_and_b32 v{t+1}, 7, v{V_LANE}',
      f'v_lshl_add_u32 v{t}, v{t+1}, 5, v{t}', f's_mul_i32 s{S_T0}, s{S_WAVE}, 6144', f'v_add_u32 v{t}, s{S_T0}, v{t}')
    for j in range(3):
        a(f'ds_write_b128 v{t}, v[{V_ACC+8*j}:{V_ACC+8*j+3}] offset:{L_RED+256*j}')
        a(f'ds_write_b128 v{t}, v[{V_ACC+8*j+4}:{V_ACC+8*j+7}] offset:{L_RED+256*j+16}')

def red_read(a, tmp, outs):
    a(f'v_lshlrev_b32 v{V_T}, 2, v0')
    for k in range(32):
        a(f'ds_read_b32 v{tmp+k}, v{V_T} offset:{L_RED+768*k}')
    a('s_waitcnt lgkmcnt(0)')
    for w in range(4):
        b = tmp + 8*w
        a(f'v_add_f32 v{outs+w}, v{b}, v{b+1}')
        for g in range(2, 8): a(f'v_add_f32 v{outs+w}, v{outs+w}, v{b+g}')

def phase_q(a):
    X = 64; W = 80
    XF = 70
    srd(a, SRD_A, P_X, 1280)
    srd(a, SRD_B, P_WQ, 7864320)
    a(f'v_lshlrev_b32 v{V_T}, 2, v{V_LANE}')
    for j in range(5): a(f'buffer_load_dword v{X+j}, v{V_T}, s[{SRD_A}:{SRD_A+3}], 0 offen offset:{256*j}')
    a(f'v_lshrrev_b32 v{V_T+1}, 3, v{V_LANE}', f'v_mul_u32_u24 v{V_T+1}, 12288, v{V_T+1}', f'v_and_b32 v{V_T+2}, 7, v{V_LANE}',
      f'v_lshl_add_u32 v{V_T+1}, v{V_T+2}, 4, v{V_T+1}')
    a(f's_mul_i32 s{S_T0}, s{S_MEM}, 80', f's_lshl_b32 s{S_T1}, s{S_WAVE}, 3', f's_add_u32 s{S_T0}, s{S_T0}, s{S_T1}',
      f's_mul_i32 s{S_T1}, s{S_T0}, 12288', f's_mul_i32 s{S_T2}, s{S_HEAD}, 384', f's_add_u32 s{S_T1}, s{S_T1}, s{S_T2}')
    third = a.label('q3')
    for u in range(3):
        if u == 2:
            a(f's_cmp_ge_u32 s{S_WAVE}, 2', f's_cbranch_scc1 {third}')
        for j in range(3):
            a(f'buffer_load_dwordx4 v[{W+12*u+4*j}:{W+12*u+4*j+3}], v{V_T+1}, s[{SRD_B}:{SRD_B+3}], s{S_T1} offen offset:{128*j} nt')
        a(f's_add_u32 s{S_T1}, s{S_T1}, {32*12288}')
    a(f'{third}:')
    for i in range(24): a(f'v_mov_b32 v{V_ACC+i}, 0')
    a('s_waitcnt vmcnt(6)')
    unpack5(a, X, XF)
    layernorm(a, XF, V_T+4)
    for j in range(5): a(f'v_cvt_pk_bf16_f32 v{X+j}, v{XF+2*j}, v{XF+2*j+1}')
    a(f's_mul_i32 s{S_T2}, s{S_WAVE}, 1280', f'v_lshlrev_b32 v{V_T}, 2, v{V_LANE}', f'v_add_u32 v{V_T}, s{S_T2}, v{V_T}')
    for j in range(5): a(f'ds_write_b32 v{V_T}, v{X+j} offset:{L_XN+256*j}')
    a(f's_lshl_b32 s{S_T0}, s{S_T0}, 1', f's_add_u32 s{S_T0}, s{S_T0}, s{S_T2}',
      f'v_lshrrev_b32 v{V_T}, 3, v{V_LANE}', f'v_lshlrev_b32 v{V_T}, 1, v{V_T}', f'v_add_u32 v{V_T}, s{S_T0}, v{V_T}')
    a('s_waitcnt lgkmcnt(0)')
    for u in range(3): a(f'ds_read_u16 v{X+u}, v{V_T} offset:{L_XN+64*u}')
    a('s_waitcnt lgkmcnt(0) vmcnt(0)')
    skip = a.label('q3b')
    for u in range(3):
        if u == 2:
            a(f's_cmp_ge_u32 s{S_WAVE}, 2', f's_cbranch_scc1 {skip}')
        a(f'v_lshlrev_b32 v{X+4}, 16, v{X+u}')
        pv_unit(a, W+12*u, X+u, X+4)
    a(f'{skip}:')
    a('s_nop 2')
    red_write(a, V_T)
    a('s_waitcnt lgkmcnt(0)', 's_barrier')
    done = a.label('qd')
    a(f's_cmp_ge_u32 s{S_WAVE}, 3', f's_cbranch_scc1 {done}')
    red_read(a, 64, 96)
    a('v_add_f32 v96, v96, v97', 'v_add_f32 v98, v98, v99', 'v_add_f32 v96, v96, v98')
    a(f's_lshl_b32 s{S_T0}, s{S_HEAD}, 3', f's_add_u32 s{S_T0}, s{S_T0}, s{S_MEM}', f's_lshl_b32 s{S_T0}, s{S_T0}, 10',
      f's_add_u32 s{S_T0}, s{S_T0}, {QP}', f'v_lshlrev_b32 v{V_T}, 2, v0')
    a(f'buffer_store_dword v96, v{V_T}, s[{SRD_WS}:{SRD_WS+3}], s{S_T0} offen sc1')
    a(f'{done}:')

def phase_init(a):
    a(f'v_mov_b32 v{V_T+2}, -1', f'v_lshlrev_b32 v{V_T}, 2, v0', f's_lshl_b32 s{S_T0}, s2, 10', f's_add_u32 s{S_T1}, s{S_T0}, {OP}')
    a(f'buffer_store_dword v{V_T+2}, v{V_T}, s[{SRD_WS}:{SRD_WS+3}], s{S_T1} offen sc1')
    a(f's_add_u32 s{S_T1}, s{S_T0}, {YP}')
    a(f'buffer_store_dword v{V_T+2}, v{V_T}, s[{SRD_WS}:{SRD_WS+3}], s{S_T1} offen sc1')
    l1 = a.label('ih'); l2 = a.label('ic')
    a('s_cmp_ge_u32 s2, 20', f's_cbranch_scc1 {l1}')
    a(f's_add_u32 s{S_T1}, s{S_T0}, {HP}')
    a(f'buffer_store_dword v{V_T+2}, v{V_T}, s[{SRD_WS}:{SRD_WS+3}], s{S_T1} offen sc1')
    a(f's_branch {l2}')
    a(f'{l1}:')
    a('s_cmp_ge_u32 s2, 28', f's_cbranch_scc1 {l2}')
    a(f's_add_u32 s{S_T1}, s{S_T0}, {CNT-20*1024}')
    a(f'buffer_store_dword v{V_ZERO}, v{V_T}, s[{SRD_WS}:{SRD_WS+3}], s{S_T1} offen sc1')
    a(f'{l2}:')

def spin_begin(a, lbl):
    a(f's_mov_b32 s{S_SPIN}, 0', f'{lbl}:')
def spin_end(a, lbl, regs, t):
    ok = a.label('ok')
    a(f'v_mov_b32 v{t}, v{regs[0]}')
    rest = regs[1:]
    while len(rest) >= 2:
        a(f'v_max3_u32 v{t}, v{t}, v{rest[0]}, v{rest[1]}'); rest = rest[2:]
    if rest: a(f'v_max_u32 v{t}, v{t}, v{rest[0]}')
    a(f'v_cmp_eq_u32 vcc, -1, v{t}')
    a(f's_cbranch_vccz {ok}')
    a(f's_add_u32 s{S_SPIN}, s{S_SPIN}, 1', f's_cmp_lt_u32 s{S_SPIN}, 200000', f's_cbranch_scc1 {lbl}')
    a(f'{ok}:')

def phase_qgather(a, poll):
    skip = a.label('qg')
    a(f's_cmp_ge_u32 s{S_WAVE}, 3', f's_cbranch_scc1 {skip}')
    a(f's_lshl_b32 s{S_T0}, s{S_HEAD}, 13', f's_add_u32 s{S_T0}, s{S_T0}, {QP}', f's_add_u32 s{S_T1}, s{S_T0}, 4096', f'v_lshlrev_b32 v{V_T}, 2, v0')
    lbl = a.label('qspin')
    if poll: spin_begin(a, lbl)
    T = 44
    for s in range(8):
        a(f'buffer_load_dword v{T+s}, v{V_T}, s[{SRD_WS}:{SRD_WS+3}], s{S_T0 if s<4 else S_T1} offen offset:{1024*(s&3)} sc1')
    a('s_waitcnt vmcnt(0)')
    if poll: spin_end(a, lbl, list(range(T, T+8)), 54)
    for s in range(1, 8): a(f'v_add_f32 v{T}, v{T}, v{T+s}')
    a(f'v_cvt_pk_bf16_f32 v{T}, v{T}, v{T}', f'v_lshlrev_b32 v{V_T}, 1, v0', f'ds_write_b16 v{V_T}, v{T} offset:{L_SM+64}')
    a(f'{skip}:')
    a('s_waitcnt lgkmcnt(0)', 's_barrier')
    a(f'v_and_b32 v{V_T}, 7, v{V_LANE}', f'v_lshlrev_b32 v{V_T}, 4, v{V_T}')
    for j in range(3): a(f'ds_read_b128 v[{V_Q+4*j}:{V_Q+4*j+3}], v{V_T} offset:{L_SM+64+128*j}')
    a('s_waitcnt lgkmcnt(0)')

def compute_unit(a, r):
    K, V = r, r+12
    t0, t1, t2, t3, t4, t5 = V_T, V_T+1, V_T+2, V_T+3, V_T+4, V_T+5
    for i in range(4):
        for j, t in enumerate((t0, t1, t2)):
            c = '0' if i == 0 else f'v{t}'
            a(f'v_dot2_f32_bf16 v{t}, v{K+4*j+i}, v{V_Q+4*j+i}, {c}')
    a('s_nop 2')
    a(f'v_add_f32 v{t0}, v{t0}, v{t1}', f'v_add_f32 v{t0}, v{t0}, v{t2}')
    for d in ('quad_perm:[1,0,3,2]', 'quad_perm:[2,3,0,1]', 'row_half_mirror'):
        a('s_nop 1', f'v_add_f32_dpp v{t0}, v{t0}, v{t0} {d} row_mask:0xf bank_mask:0xf')
    bf16r(a, t0, t0)
    a(f'v_mul_f32 v{t0}, s{S_SCALE}, v{t0}')
    bf16r(a, t0, t0)
    a(f'v_max_f32 v{t1}, v{V_M}, v{t0}')
    a(f'v_sub_f32 v{t2}, v{V_M}, v{t1}', f'v_sub_f32 v{t3}, v{t0}, v{t1}')
    a(f'v_mul_f32 v{t2}, s{S_LOG2E}, v{t2}', f'v_mul_f32 v{t3}, s{S_LOG2E}, v{t3}')
    a(f'v_exp_f32 v{t2}, v{t2}', f'v_exp_f32 v{t3}, v{t3}', f'v_mov_b32 v{V_M}, v{t1}')
    a(f'v_fma_f32 v{V_L}, v{V_L}, v{t2}, v{t3}')
    a(f'v_cvt_pk_bf16_f32 v{t4}, v{t3}, 0', f'v_cvt_pk_bf16_f32 v{t5}, 0, v{t3}')
    for i in range(12):
        a(f'v_pk_mul_f32 v[{V_ACC+2*i}:{V_ACC+2*i+1}], v[{V_ACC+2*i}:{V_ACC+2*i+1}], v[{t2}:{t2+1}] op_sel_hi:[1,0]')
    pv_unit(a, V, t4, t5)

def phase_stream(a, F, C, ldflags='nt'):
    S = F + 1
    assert C >= F and 4096 % C == 0
    nch = 4096 // C
    U = S * C // math.gcd(S, C)
    fl = (' ' + ldflags) if ldflags else ''
    srd(a, SRD_K, P_K, KV_BYTES); srd(a, SRD_V, P_V, KV_BYTES)
    a(f's_mul_i32 s{S_HB}, s{S_HEAD}, {HEAD_BYTES}')
    a(f's_mul_i32 s{S_ROT}, s{S_HEAD}, {HROT}')
    a(f's_lshl_b32 s{S_CNT}, s{S_HEAD}, 8', f's_add_u32 s{S_CNT}, s{S_CNT}, {CNT}')
    a(f's_lshl_b32 s{S_NX}, s{S_MEM}, 2', f's_add_u32 s{S_NX}, s{S_NX}, s{S_WAVE}')
    def atomic():
        a(f'v_mov_b32 v{V_ATOM}, 1', 's_mov_b64 exec, 1')
        a(f'buffer_atomic_add v{V_ATOM}, v{V_ZERO}, s[{SRD_WS}:{SRD_WS+3}], s{S_CNT} offen sc0')
        a('s_mov_b64 exec, -1')
    def setoff():
        a(f's_add_u32 s{S_OFF}, s{S_NX}, s{S_ROT}', f's_and_b32 s{S_OFF}, s{S_OFF}, {nch-1}')
        a(f's_mul_i32 s{S_OFF}, s{S_OFF}, {C*3072}', f's_add_u32 s{S_OFF}, s{S_OFF}, s{S_HB}')
    def issue(slot):
        r = V_RING + 24*slot
        for j in range(3): a(f'buffer_load_dwordx4 v[{r+4*j}:{r+4*j+3}], v{V_OFFB}, s[{SRD_K}:{SRD_K+3}], s{S_OFF} offen offset:{128*j}{fl}')
        for j in range(3): a(f'buffer_load_dwordx4 v[{r+12+4*j}:{r+12+4*j+3}], v{V_OFFB}, s[{SRD_V}:{SRD_V+3}], s{S_OFF} offen offset:{128*j}{fl}')
        a(f's_add_u32 s{S_OFF}, s{S_OFF}, 3072')
    return dict(S=S, nch=nch, U=U, atomic=atomic, setoff=setoff, issue=issue, F=F, C=C)

def stream_prologue(a, st):
    st['atomic'](); st['setoff']()
    for n in range(st['F']): st['issue'](n % st['S'])

def stream_loop(a, st):
    F, C, S, U, nch = st['F'], st['C'], st['S'], st['U'], st['nch']
    for i in range(24): a(f'v_mov_b32 v{V_ACC+i}, 0')
    a(f'v_mov_b32 v{V_M}, 0x{NEGBIG:08x}', f'v_mov_b32 v{V_L}, 0')
    loop = a.label('loop'); done = a.label('sdone')
    drains = []
    a(f'{loop}:')
    for t in range(U):
        nat = sum(1 for k in range(1, F) if ((t - k) + F) % C == 0)
        a(f's_waitcnt vmcnt({6*(F-1) + nat})')
        if (t + F) % C == 0:
            dl = a.label('drain'); drains.append((dl, t))
            a(f'v_readfirstlane_b32 s{S_NX}, v{V_ATOM}', 's_nop 0', f's_add_u32 s{S_NX}, s{S_NX}, 32',
              f's_cmp_ge_u32 s{S_NX}, {nch}', f's_cbranch_scc1 {dl}')
            st['atomic'](); st['setoff']()
        st['issue']((t + F) % S)
        compute_unit(a, V_RING + 24*(t % S))
    a(f's_branch {loop}')
    for dl, t in drains:
        a(f'{dl}:')
        for k in range(F):
            if k > 0: a(f's_waitcnt vmcnt({6*(F-1-k)})')
            compute_unit(a, V_RING + 24*((t + k) % S))
        a(f's_branch {done}')
    a(f'{done}:')

def phase_t1(a):
    t = V_T
    a('s_nop 2')
    a(f'v_mov_b32 v{t+2}, v{V_M}')
    groups_red(a, t+2, t+3, 'max')
    a(f'v_sub_f32 v{t+4}, v{V_M}, v{t+2}', f'v_mul_f32 v{t+4}, s{S_LOG2E}, v{t+4}', f'v_exp_f32 v{t+4}, v{t+4}', 's_nop 0')
    for i in range(12):
        a(f'v_pk_mul_f32 v[{V_ACC+2*i}:{V_ACC+2*i+1}], v[{V_ACC+2*i}:{V_ACC+2*i+1}], v[{t+4}:{t+5}] op_sel_hi:[1,0]')
    a(f'v_mul_f32 v{V_L}, v{V_L}, v{t+4}')
    groups_red(a, V_L, t+3, 'add')
    a(f'v_mov_b32 v{t+3}, v{V_L}')
    red_write(a, t+6)
    a(f's_lshl_b32 s{S_T0}, s{S_WAVE}, 3', f'v_mov_b32 v{t+6}, s{S_T0}', f'ds_write_b64 v{t+6}, v[{t+2}:{t+3}] offset:{L_SM}')
    a('s_waitcnt lgkmcnt(0)', 's_barrier')
    done = a.label('t1d')
    a(f's_cmp_ge_u32 s{S_WAVE}, 3', f's_cbranch_scc1 {done}')
    a(f'ds_read_b128 v[100:103], v{V_ZERO} offset:{L_SM}', f'ds_read_b128 v[104:107], v{V_ZERO} offset:{L_SM+16}')
    red_read(a, 64, 96)
    a('v_max_f32 v108, v100, v102', 'v_max3_f32 v108, v108, v104, v106')
    for w in range(4):
        a(f'v_sub_f32 v{110+w}, v{100+2*w}, v108', f'v_mul_f32 v{110+w}, s{S_LOG2E}, v{110+w}', f'v_exp_f32 v{110+w}, v{110+w}')
    a('s_nop 0')
    a('v_mul_f32 v96, v96, v110', 'v_mul_f32 v109, v101, v110')
    for w in range(1, 4):
        a(f'v_fmac_f32 v96, v{96+w}, v{110+w}', f'v_fmac_f32 v109, v{101+2*w}, v{110+w}')
    a(f's_lshl_b32 s{S_T0}, s{S_HEAD}, 3', f's_add_u32 s{S_T0}, s{S_T0}, s{S_MEM}', f's_lshl_b32 s{S_T0}, s{S_T0}, 10',
      f's_add_u32 s{S_T0}, s{S_T0}, {OP}', f'v_lshlrev_b32 v{V_T}, 2, v0')
    a(f'buffer_store_dword v96, v{V_T}, s[{SRD_WS}:{SRD_WS+3}], s{S_T0} offen sc1')
    a('v_mov_b32 v110, v108', 'v_mov_b32 v111, v109', 'v_cmp_eq_u32 vcc, 0, v0', 's_and_saveexec_b64 s[34:35], vcc')
    sk = a.label('t1s')
    a(f's_cbranch_execz {sk}')
    a(f'buffer_store_dwordx2 v[110:111], v{V_ZERO}, s[{SRD_WS}:{SRD_WS+3}], s{S_T0} offen offset:768 sc1')
    a(f'{sk}:', 's_mov_b64 exec, s[34:35]')
    a(f'{done}:')

WFL = ''
W_W = 160
def phase_w_load(a):
    srd(a, SRD_A, P_WO, 7864320)
    a(f's_and_b32 s{S_T0}, s2, 7', f's_lshr_b32 s{S_T1}, s2, 3')
    a(f's_mul_i32 s{S_T0}, s{S_T0}, {768*1280}', f's_lshl_b32 s{S_T1}, s{S_T1}, 6', f's_add_u32 s{S_T0}, s{S_T0}, s{S_T1}')
    a(f'v_lshrrev_b32 v{V_T}, 2, v0', f'v_mul_u32_u24 v{V_T}, 1280, v{V_T}', f'v_and_b32 v{V_T+1}, 3, v0', f'v_lshl_add_u32 v{V_T}, v{V_T+1}, 4, v{V_T}')
    for p in range(12):
        a(f'buffer_load_dwordx4 v[{W_W+4*p}:{W_W+4*p+3}], v{V_T}, s[{SRD_A}:{SRD_A+3}], s{S_T0} offen{WFL}')
        if p < 11: a(f's_add_u32 s{S_T0}, s{S_T0}, {64*1280}')

def phase_w(a, poll):
    O = 64
    ML = 88
    a(f's_and_b32 s{S_T0}, s2, 7', f's_lshl_b32 s{S_T0}, s{S_T0}, 2', f's_add_u32 s{S_T0}, s{S_T0}, s{S_WAVE}',
      f's_lshl_b32 s{S_T0}, s{S_T0}, 13', f's_add_u32 s{S_T0}, s{S_T0}, {OP}', f's_add_u32 s{S_T1}, s{S_T0}, 4096',
      f'v_lshlrev_b32 v{V_T}, 2, v{V_LANE}')
    lbl = a.label('wspin')
    if poll: spin_begin(a, lbl)
    for s in range(8):
        so = S_T0 if s < 4 else S_T1
        for j in range(3):
            a(f'buffer_load_dword v{O+3*s+j}, v{V_T}, s[{SRD_WS}:{SRD_WS+3}], s{so} offen offset:{1024*(s&3)+256*j} sc1')
        a(f'buffer_load_dwordx2 v[{ML+2*s}:{ML+2*s+1}], v{V_ZERO}, s[{SRD_WS}:{SRD_WS+3}], s{so} offen offset:{1024*(s&3)+768} sc1')
    a('s_waitcnt vmcnt(0)')
    if poll: spin_end(a, lbl, list(range(O, O+40)), V_T+1)
    Mx, Ls = 104, 105
    a(f'v_max_f32 v{Mx}, v{ML}, v{ML+2}')
    for s in range(2, 8, 2): a(f'v_max3_f32 v{Mx}, v{Mx}, v{ML+2*s}, v{ML+2*s+2}')
    Fs = 106
    for s in range(8):
        a(f'v_sub_f32 v{Fs+s}, v{ML+2*s}, v{Mx}', f'v_mul_f32 v{Fs+s}, s{S_LOG2E}, v{Fs+s}', f'v_exp_f32 v{Fs+s}, v{Fs+s}')
    a('s_nop 0')
    a(f'v_mul_f32 v{Ls}, v{ML+1}, v{Fs}')
    for s in range(1, 8): a(f'v_fmac_f32 v{Ls}, v{ML+2*s+1}, v{Fs+s}')
    a(f'v_rcp_f32 v{Ls}, v{Ls}')
    for j in range(3):
        a(f'v_mul_f32 v{114+j}, v{O+j}, v{Fs}')
        for s in range(1, 8): a(f'v_fmac_f32 v{114+j}, v{O+3*s+j}, v{Fs+s}')
    for j in range(3):
        a(f'v_mul_f32 v{114+j}, v{114+j}, v{Ls}')
        bf16r(a, 114+j, 114+j)
    a(f's_mul_i32 s{S_T0}, s{S_WAVE}, 768', f'v_add_u32 v{V_T}, s{S_T0}, v{V_T}')
    for j in range(3): a(f'ds_write_b32 v{V_T}, v{114+j} offset:{L_OV+256*j}')
    a('s_waitcnt lgkmcnt(0)', 's_barrier')
    a(f'v_lshrrev_b32 v{V_T}, 2, v0', f'v_lshlrev_b32 v{V_T}, 2, v{V_T}')
    U = 64
    for p in range(12): a(f'ds_read_b32 v{U+p}, v{V_T} offset:{L_OV+256*p}')
    A = 80
    for i in range(8): a(f'v_mov_b32 v{A+i}, 0')
    a('s_waitcnt lgkmcnt(0) vmcnt(0)')
    for p in range(12):
        a(f'v_lshrrev_b32 v{U+12}, 16, v{U+p}')
        for i in range(4):
            a(f'v_dot2_f32_bf16 v{A+2*i}, v{W_W+4*p+i}, v{U+12}, v{A+2*i}')
            a(f'v_dot2_f32_bf16 v{A+2*i+1}, v{W_W+4*p+i}, v{U+p}, v{A+2*i+1}')
    a('s_nop 2')
    for d in ('row_ror:4', 'row_ror:8'):
        for i in range(8): a(f'v_add_f32_dpp v{A+i}, v{A+i}, v{A+i} {d} row_mask:0xf bank_mask:0xf')
        a('s_nop 1')
    a(f'v_lshrrev_b32 v{V_T}, 4, v0', f'v_lshlrev_b32 v{V_T}, 7, v{V_T}', f'v_and_b32 v{V_T+1}, 3, v0', f'v_lshl_add_u32 v{V_T}, v{V_T+1}, 5, v{V_T}')
    a(f'v_and_b32 v{V_T+1}, 12, v0', f'v_cmp_eq_u32 vcc, 0, v{V_T+1}', 's_and_saveexec_b64 s[34:35], vcc')
    a(f'ds_write_b128 v{V_T}, v[{A}:{A+3}] offset:{L_RED}', f'ds_write_b128 v{V_T}, v[{A+4}:{A+7}] offset:{L_RED+16}')
    a('s_mov_b64 exec, s[34:35]', 's_waitcnt lgkmcnt(0)', 's_barrier')
    done = a.label('wd')
    a(f's_cmp_ge_u32 s{S_WAVE}, 1', f's_cbranch_scc1 {done}')
    a(f'v_and_b32 v{V_T}, 31, v0', f'v_lshlrev_b32 v{V_T}, 2, v{V_T}')
    for k in range(16): a(f'ds_read_b32 v{U+k}, v{V_T} offset:{L_RED+128*k}')
    a('s_waitcnt lgkmcnt(0)')
    for k in range(1, 16): a(f'v_add_f32 v{U}, v{U}, v{U+k}')
    a(f's_and_b32 s{S_T0}, s2, 7', f's_mul_i32 s{S_T0}, s{S_T0}, 2560', f's_lshr_b32 s{S_T1}, s2, 3', f's_lshl_b32 s{S_T1}, s{S_T1}, 7',
      f's_add_u32 s{S_T0}, s{S_T0}, s{S_T1}', f's_add_u32 s{S_T0}, s{S_T0}, {HP}')
    a('v_cmp_gt_u32 vcc, 32, v0', 's_and_saveexec_b64 s[34:35], vcc')
    a(f'buffer_store_dword v{U}, v{V_T}, s[{SRD_WS}:{SRD_WS+3}], s{S_T0} offen sc1')
    a('s_mov_b64 exec, s[34:35]')
    a(f'{done}:')

H_HN = 70
H_X = 64
V_SIG = 57
def phase_h_load(a):
    srd(a, SRD_A, P_X, 1280); srd(a, SRD_B, P_WR, 1280)
    a(f'v_lshlrev_b32 v{V_T}, 2, v{V_LANE}')
    for j in range(5): a(f'buffer_load_dword v{208+j}, v{V_T}, s[{SRD_A}:{SRD_A+3}], 0 offen offset:{256*j}')
    for j in range(5): a(f'buffer_load_dword v{213+j}, v{V_T}, s[{SRD_B}:{SRD_B+3}], 0 offen offset:{256*j}')

def phase_h(a, poll):
    P = 80
    a(f's_mul_i32 s{S_T0}, s{S_WAVE}, 5120', f's_add_u32 s{S_T0}, s{S_T0}, {HP}', f's_add_u32 s{S_T1}, s{S_T0}, 2560', f'v_lshlrev_b32 v{V_T}, 3, v{V_LANE}')
    lbl = a.label('hspin')
    if poll: spin_begin(a, lbl)
    for b in range(2):
        for j in range(5):
            a(f'buffer_load_dwordx2 v[{P+10*b+2*j}:{P+10*b+2*j+1}], v{V_T}, s[{SRD_WS}:{SRD_WS+3}], s{S_T0+b} offen offset:{512*j} sc1')
    a('s_waitcnt vmcnt(0)')
    if poll: spin_end(a, lbl, list(range(P, P+20)), V_T+1)
    for i in range(10): a(f'v_add_f32 v{P+i}, v{P+i}, v{P+10+i}')
    a(f's_mul_i32 s{S_T0}, s{S_WAVE}, 2560', f'v_add_u32 v{V_T+1}, s{S_T0}, v{V_T}')
    for j in range(5): a(f'ds_write_b64 v{V_T+1}, v[{P+2*j}:{P+2*j+1}] offset:{L_RED+512*j}')
    a('s_waitcnt lgkmcnt(0)', 's_barrier')
    R = 100
    for w in range(4):
        for j in range(5): a(f'ds_read_b64 v[{R+10*w+2*j}:{R+10*w+2*j+1}], v{V_T} offset:{L_RED+2560*w+512*j}')
    a('s_waitcnt lgkmcnt(0)')
    a('s_barrier')
    unpack5(a, 208, H_HN)
    for i in range(10):
        a(f'v_add_f32 v{R+i}, v{R+i}, v{R+10+i}', f'v_add_f32 v{R+20+i}, v{R+20+i}, v{R+30+i}', f'v_add_f32 v{R+i}, v{R+i}, v{R+20+i}')
        bf16r(a, R+i, R+i)
        a(f'v_add_f32 v{H_HN+i}, v{H_HN+i}, v{R+i}')
        bf16r(a, H_HN+i, H_HN+i)
    for j in range(5): a(f'v_cvt_pk_bf16_f32 v{H_X+j}, v{H_HN+2*j}, v{H_HN+2*j+1}')
    a(f's_mul_i32 s{S_T0}, s{S_WAVE}, 1280', f'v_lshlrev_b32 v{V_T}, 2, v{V_LANE}', f'v_add_u32 v{V_T}, s{S_T0}, v{V_T}')
    for j in range(5): a(f'ds_write_b32 v{V_T}, v{H_X+j} offset:{L_H+256*j}')
    layernorm(a, H_HN, V_T+4)
    for j in range(5): a(f'v_cvt_pk_bf16_f32 v{H_X+j}, v{H_HN+2*j}, v{H_HN+2*j+1}')
    for j in range(5): a(f'ds_write_b32 v{V_T}, v{H_X+j} offset:{L_XN+256*j}')
    a(f'v_mov_b32 v{V_SIG}, 0')
    for j in range(5): a(f'v_dot2_f32_bf16 v{V_SIG}, v{H_X+j}, v{213+j}, v{V_SIG}')
    a('s_nop 2')
    wave_red(a, V_SIG, V_T+1)
    bf16r(a, V_SIG, V_SIG)
    a(f'v_mul_f32 v{V_SIG}, s{S_LOG2E}, v{V_SIG}', f'v_sub_f32 v{V_SIG}, 0, v{V_SIG}', f'v_exp_f32 v{V_SIG}, v{V_SIG}', 's_nop 0',
      f'v_add_f32 v{V_SIG}, 1.0, v{V_SIG}', f'v_rcp_f32 v{V_SIG}, v{V_SIG}', 's_nop 0')
    bf16r(a, V_SIG, V_SIG)
    a('s_waitcnt lgkmcnt(0)')

W_GU = 160
W_DN = 220
def m_index(a):
    a(f's_sub_u32 s{S_T0}, s2, 160', f's_and_b32 s{S_T1}, s{S_T0}, 7', f's_mul_i32 s{S_T1}, s{S_T1}, 12', f's_lshr_b32 s{S_T0}, s{S_T0}, 3', f's_add_u32 s{S_M}, s{S_T0}, s{S_T1}')
def phase_m_load(a):
    a(f's_cmp_ge_u32 s{S_WAVE}, 2', f's_cselect_b32 s{S_T0}, s{P_WU}, s{P_WG}', f's_cselect_b32 s{S_T1}, s{P_WU+1}, s{P_WG+1}')
    srd(a, SRD_A, S_T0, 1966080)
    srd(a, SRD_B, P_WD, 1966080)
    a(f'v_and_b32 v{V_T}, 127, v0', f'v_lshrrev_b32 v{V_T+1}, 1, v{V_T}', f'v_mul_u32_u24 v{V_T+1}, 3072, v{V_T+1}', f'v_and_b32 v{V_T}, 1, v{V_T}',
      f'v_lshl_add_u32 v{V_T}, v{V_T}, 4, v{V_T+1}')
    a(f's_lshl_b32 s{S_T2}, s{S_M}, 5')
    for p in range(10):
        a(f'buffer_load_dwordx4 v[{W_GU+4*p}:{W_GU+4*p+3}], v{V_T}, s[{SRD_A}:{SRD_A+3}], s{S_T2} offen{WFL}')
        if p < 9: a(f's_add_u32 s{S_T2}, s{S_T2}, {64*3072}')
    a(f's_lshl_b32 s{S_T2}, s{S_M}, 4', f's_lshl_b32 s{S_T3}, s{S_WAVE}, 2', f's_add_u32 s{S_T2}, s{S_T2}, s{S_T3}', f's_mul_i32 s{S_T2}, s{S_T2}, 1280',
      f'v_lshlrev_b32 v{V_T}, 2, v{V_LANE}')
    for i in range(4):
        for j in range(5): a(f'buffer_load_dword v{W_DN+5*i+j}, v{V_T}, s[{SRD_B}:{SRD_B+3}], s{S_T2} offen offset:{256*j}{WFL}')
        if i < 3: a(f's_add_u32 s{S_T2}, s{S_T2}, 1280')

def phase_m(a):
    U = 80; A = 96
    a(f'v_and_b32 v{V_T}, 127, v0', f'v_lshrrev_b32 v{V_T}, 1, v{V_T}', f'v_lshlrev_b32 v{V_T}, 1, v{V_T}', f's_mul_i32 s{S_T0}, s{S_WAVE}, 1280', f'v_add_u32 v{V_T}, s{S_T0}, v{V_T}')
    for p in range(10): a(f'ds_read_u16 v{U+p}, v{V_T} offset:{L_XN+128*p}')
    for i in range(8): a(f'v_mov_b32 v{A+i}, 0')
    a('s_waitcnt lgkmcnt(0) vmcnt(0)')
    for p in range(10):
        a(f'v_lshlrev_b32 v{U+10}, 16, v{U+p}')
        for i in range(4):
            a(f'v_dot2_f32_bf16 v{A+2*i}, v{W_GU+4*p+i}, v{U+p}, v{A+2*i}')
            a(f'v_dot2_f32_bf16 v{A+2*i+1}, v{W_GU+4*p+i}, v{U+10}, v{A+2*i+1}')
    a('s_nop 2')
    for d in ('quad_perm:[2,3,0,1]', 'row_ror:4', 'row_ror:8'):
        for i in range(8): a(f'v_add_f32_dpp v{A+i}, v{A+i}, v{A+i} {d} row_mask:0xf bank_mask:0xf')
        a('s_nop 1')
    a(f'v_lshrrev_b32 v{V_T}, 4, v0', f'v_lshlrev_b32 v{V_T}, 6, v{V_T}', f'v_and_b32 v{V_T+1}, 1, v0', f'v_lshl_add_u32 v{V_T}, v{V_T+1}, 5, v{V_T}')
    a(f'v_and_b32 v{V_T+1}, 14, v0', f'v_cmp_eq_u32 vcc, 0, v{V_T+1}', 's_and_saveexec_b64 s[34:35], vcc')
    a(f'ds_write_b128 v{V_T}, v[{A}:{A+3}] offset:{L_RED}', f'ds_write_b128 v{V_T}, v[{A+4}:{A+7}] offset:{L_RED+16}')
    a('s_mov_b64 exec, s[34:35]', 's_waitcnt lgkmcnt(0)', 's_barrier')
    a(f'v_and_b32 v{V_T}, 15, v{V_LANE}', f'v_lshlrev_b32 v{V_T}, 2, v{V_T}')
    for k in range(16): a(f'ds_read_b32 v{U+k}, v{V_T} offset:{L_RED+64*k}')
    a('s_waitcnt lgkmcnt(0)')
    for k in range(1, 8): a(f'v_add_f32 v{U}, v{U}, v{U+k}', f'v_add_f32 v{U+8}, v{U+8}, v{U+8+k}')
    bf16r(a, U, U); bf16r(a, U+8, U+8)
    a(f'v_mul_f32 v{U+1}, s{S_LOG2E}, v{U}', f'v_sub_f32 v{U+1}, 0, v{U+1}', f'v_exp_f32 v{U+1}, v{U+1}', 's_nop 0',
      f'v_add_f32 v{U+1}, 1.0, v{U+1}', f'v_rcp_f32 v{U+1}, v{U+1}', 's_nop 0', f'v_mul_f32 v{U}, v{U}, v{U+1}')
    bf16r(a, U, U)
    a(f'v_mul_f32 v{U}, v{U}, v{U+8}')
    bf16r(a, U, U)
    a(f's_lshl_b32 s{S_T0}, s{S_WAVE}, 2', 's_nop 3')
    for i in range(4):
        a(f's_add_u32 s{S_T1}, s{S_T0}, {i}', f'v_readlane_b32 s{68+i}, v{U}, s{S_T1}')
    for i in range(10): a(f'v_mov_b32 v{A+i}, 0')
    for i in range(4):
        a(f's_lshr_b32 s{72+i}, s{68+i}, 16')
    a('s_nop 1')
    for i in range(4):
        for j in range(5):
            a(f'v_dot2_f32_bf16 v{A+2*j}, v{W_DN+5*i+j}, s{72+i}, v{A+2*j}')
            a(f'v_dot2_f32_bf16 v{A+2*j+1}, v{W_DN+5*i+j}, s{68+i}, v{A+2*j+1}')
    a('s_barrier')
    a('s_nop 1')
    a(f's_mul_i32 s{S_T0}, s{S_WAVE}, 2560', f'v_lshlrev_b32 v{V_T}, 3, v{V_LANE}', f'v_add_u32 v{V_T}, s{S_T0}, v{V_T}')
    for j in range(5): a(f'ds_write_b64 v{V_T}, v[{A+2*j}:{A+2*j+1}] offset:{L_RED+512*j}')
    a('s_waitcnt lgkmcnt(0)', 's_barrier')
    done = a.label('md')
    a('v_cmp_gt_u32 vcc, 160, v0', 's_and_saveexec_b64 s[34:35], vcc', f's_cbranch_execz {done}')
    a(f'v_lshlrev_b32 v{V_T}, 4, v0')
    for w in range(4): a(f'ds_read_b128 v[{U+4*w}:{U+4*w+3}], v{V_T} offset:{L_RED+2560*w}')
    a('s_waitcnt lgkmcnt(0)')
    for e in range(4):
        a(f'v_add_f32 v{U+e}, v{U+e}, v{U+4+e}', f'v_add_f32 v{U+8+e}, v{U+8+e}, v{U+12+e}', f'v_add_f32 v{U+e}, v{U+e}, v{U+8+e}')
    a(f'v_lshrrev_b32 v{V_T}, 2, v0', f'v_mul_u32_u24 v{V_T}, 6144, v{V_T}', f'v_and_b32 v{V_T+1}, 3, v0', f'v_lshl_add_u32 v{V_T}, v{V_T+1}, 4, v{V_T}',
      f's_lshl_b32 s{S_T0}, s{S_M}, 6', f's_add_u32 s{S_T0}, s{S_T0}, {YP}')
    a(f'buffer_store_dwordx4 v[{U}:{U+3}], v{V_T}, s[{SRD_WS}:{SRD_WS+3}], s{S_T0} offen sc1')
    a(f'{done}:', 's_mov_b64 exec, s[34:35]')

def phase_f(a, poll):
    U = 80
    a(f's_mul_i32 s{S_T0}, s{S_M}, 6144', f's_add_u32 s{S_T0}, s{S_T0}, {YP}', f's_add_u32 s{S_T1}, s{S_T0}, 4096', f'v_lshlrev_b32 v{V_T}, 4, v0')
    lbl = a.label('fspin')
    if poll: spin_begin(a, lbl)
    for i in range(4): a(f'v_mov_b32 v{U+4+i}, 0')
    a(f'buffer_load_dwordx4 v[{U}:{U+3}], v{V_T}, s[{SRD_WS}:{SRD_WS+3}], s{S_T0} offen sc1')
    sk = a.label('f2')
    a(f's_cmp_ge_u32 s{S_WAVE}, 2', f's_cbranch_scc1 {sk}')
    a(f'buffer_load_dwordx4 v[{U+4}:{U+7}], v{V_T}, s[{SRD_WS}:{SRD_WS+3}], s{S_T1} offen sc1')
    a(f'{sk}:', 's_waitcnt vmcnt(0)')
    if poll: spin_end(a, lbl, list(range(U, U+8)), V_T+1)
    for e in range(4): a(f'v_add_f32 v{U+e}, v{U+e}, v{U+4+e}')
    a('s_nop 1')
    for d in ('row_ror:4', 'row_ror:8'):
        for e in range(4): a(f'v_add_f32_dpp v{U+e}, v{U+e}, v{U+e} {d} row_mask:0xf bank_mask:0xf')
        a('s_nop 1')
    a('s_barrier')
    a(f'v_lshrrev_b32 v{V_T}, 4, v0', f'v_lshlrev_b32 v{V_T}, 6, v{V_T}', f'v_and_b32 v{V_T+1}, 3, v0', f'v_lshl_add_u32 v{V_T}, v{V_T+1}, 4, v{V_T}')
    a(f'v_and_b32 v{V_T+1}, 12, v0', f'v_cmp_eq_u32 vcc, 0, v{V_T+1}', 's_and_saveexec_b64 s[34:35], vcc')
    a(f'ds_write_b128 v{V_T}, v[{U}:{U+3}] offset:{L_RED}')
    a('s_mov_b64 exec, s[34:35]', 's_waitcnt lgkmcnt(0)', 's_barrier')
    done = a.label('fd')
    a(f's_cmp_ge_u32 s{S_WAVE}, 1', f's_cbranch_scc1 {done}')
    a(f'v_and_b32 v{V_T}, 15, v0', f'v_lshlrev_b32 v{V_T}, 2, v{V_T}')
    for k in range(16): a(f'ds_read_b32 v{U+k}, v{V_T} offset:{L_RED+64*k}')
    a(f'v_and_b32 v{V_T+1}, 15, v0', f's_lshl_b32 s{S_T0}, s{S_M}, 4', f'v_add_u32 v{V_T+1}, s{S_T0}, v{V_T+1}', f'v_lshlrev_b32 v{V_T+1}, 1, v{V_T+1}')
    a(f'ds_read_u16 v{U+16}, v{V_T+1} offset:{L_H}', f'ds_read_u16 v{U+17}, v{V_T+1} offset:{L_XN}')
    a('s_waitcnt lgkmcnt(0)')
    for k in range(1, 16): a(f'v_add_f32 v{U}, v{U}, v{U+k}')
    bf16r(a, U, U)
    a(f'v_mul_f32 v{U}, v{U}, v{V_SIG}')
    bf16r(a, U, U)
    a(f'v_lshlrev_b32 v{U+16}, 16, v{U+16}', f'v_lshlrev_b32 v{U+17}, 16, v{U+17}')
    a(f'v_add_f32 v{U}, v{U+17}, v{U}')
    bf16r(a, U, U)
    a(f'v_add_f32 v{U}, v{U+16}, v{U}', f'v_cvt_pk_bf16_f32 v{U}, v{U}, v{U}')
    srd(a, SRD_A, P_OUT, 1280)
    a('v_cmp_gt_u32 vcc, 16, v0', 's_and_saveexec_b64 s[34:35], vcc')
    a(f'buffer_store_short v{U}, v{V_T+1}, s[{SRD_A}:{SRD_A+3}], 0 offen')
    a('s_mov_b64 exec, s[34:35]')
    a(f'{done}:')

TS = 0xF0000
STAMP = False
def stamp(a, kidx, slot):
    if not STAMP: return
    sk = a.label('ts')
    a(f's_cmp_lg_u32 s{S_WAVE}, 0', f's_cbranch_scc1 {sk}')
    a('s_memrealtime s[80:81]', 's_waitcnt lgkmcnt(0)')
    a(f's_lshl_b32 s82, s2, 6', f's_add_u32 s82, s82, {TS + kidx*256*64 + slot*8}')
    a('v_mov_b32 v62, s80', 'v_mov_b32 v63, s81', 's_mov_b64 s[84:85], exec', 's_mov_b64 exec, 1')
    a(f'buffer_store_dwordx2 v[62:63], v{V_ZERO}, s[{SRD_WS}:{SRD_WS+3}], s82 offen')
    a('s_mov_b64 exec, s[84:85]', 's_nop 1')
    a(f'{sk}:')
def kernel(a, name, nwg, body, kidx=0):
    end = a.label('end')
    a(f'.globl {name}', '.p2align 8', f'.type {name},@function', f'{name}:')
    prologue(a, nwg, end)
    stamp(a, kidx, 0)
    body(a)
    a('s_waitcnt vmcnt(0) lgkmcnt(0)')
    stamp(a, kidx, 7)
    a(f'{end}:', 's_endpgm')

def build_multi(F=1, C=2):
    a = Asm()
    K = lambda n: f'{n}_kernel'
    launches = [('kq', 256), ('katt', 256), ('kw', 160), ('km', 256), ('kf', 256)]
    hdr = header([f'; @launch kernel={K(n)} grid=({g},1,1) block=(256,1,1) lds={LDS_BYTES}' for n, g in launches])
    a('.amdgcn_target "amdgcn-amd-amdhsa--gfx950"', '.text')
    def kq(a): phase_init(a); phase_q(a)
    def katt(a):
        st = phase_stream(a, F, C)
        stream_prologue(a, st)
        phase_qgather(a, False)
        stream_loop(a, st)
        phase_t1(a)
    def kw(a): phase_w_load(a); phase_w(a, False)
    def km(a):
        e = a.label('mskip')
        a('s_cmp_lt_u32 s2, 160', f's_cbranch_scc1 {e}')
        m_index(a); phase_h_load(a); phase_m_load(a); phase_h(a, False); phase_m(a)
        a(f'{e}:')
    def kf(a):
        e = a.label('fskip')
        a('s_cmp_lt_u32 s2, 160', f's_cbranch_scc1 {e}')
        m_index(a)
        a(f's_cmp_ge_u32 s{S_M}, 40', f's_cbranch_scc1 {e}')
        phase_h_load(a); phase_h(a, False); phase_f(a, False)
        a(f'{e}:')
    for i, ((n, g), body) in enumerate(zip(launches, (kq, katt, kw, km, kf))):
        kernel(a, K(n), g, body, i)
    a('.section .rodata,"a"')
    for n, g in launches:
        a('.p2align 6')
        a.lines.append(kernel_desc(K(n), 256, 102))
    return '\n'.join(hdr) + '\n' + a.text()

def build_two(F=1, C=1):
    a = Asm()
    K = lambda n: f'{n}_kernel'
    launches = [('kq', 256), ('kmain', 256)]
    hdr = header([f'; @launch kernel={K(n)} grid=({g},1,1) block=(256,1,1) lds={LDS_BYTES}' for n, g in launches])
    a('.amdgcn_target "amdgcn-amd-amdhsa--gfx950"', '.text')
    def kq(a): phase_init(a); phase_q(a)
    def kmain(a):
        st = phase_stream(a, F, C)
        stream_prologue(a, st)
        lw = a.label('ldm'); lw2 = a.label('ldd')
        a('s_cmp_ge_u32 s2, 160', f's_cbranch_scc1 {lw}')
        phase_w_load(a)
        a(f's_branch {lw2}', f'{lw}:')
        m_index(a); phase_h_load(a); phase_m_load(a)
        a(f'{lw2}:')
        phase_qgather(a, False)
        stamp(a, 1, 1)
        stream_loop(a, st)
        stamp(a, 1, 2)
        phase_t1(a)
        a('s_barrier')
        stamp(a, 1, 3)
        rm = a.label('rolem'); fin = a.label('fin')
        a('s_cmp_ge_u32 s2, 160', f's_cbranch_scc1 {rm}')
        phase_w(a, True)
        stamp(a, 1, 4)
        a(f's_branch {fin}', f'{rm}:')
        phase_h(a, True)
        stamp(a, 1, 4)
        phase_m(a)
        stamp(a, 1, 5)
        a(f's_cmp_ge_u32 s{S_M}, 40', f's_cbranch_scc1 {fin}')
        phase_f(a, True)
        stamp(a, 1, 6)
        a(f'{fin}:')
    for i, ((n, g), body) in enumerate(zip(launches, (kq, kmain))):
        kernel(a, K(n), g, body, i)
    a('.section .rodata,"a"')
    for n, g in launches:
        a('.p2align 6')
        a.lines.append(kernel_desc(K(n), 256, 102))
    return '\n'.join(hdr) + '\n' + a.text()

if __name__ == '__main__':
    F = int(sys.argv[1]) if len(sys.argv) > 1 else 1
    C = int(sys.argv[2]) if len(sys.argv) > 2 else 2
    STAMP = 'stamp' in sys.argv
    for x in sys.argv:
        if x.startswith('hrot='): HROT = int(x[5:])
    sys.stdout.write(build_two(F, C) if 'two' in sys.argv else build_multi(F, C))
```

```python
import sys
import gen as G
from gen import *

EPOCH = 0xE8000
QP2 = 0x100000
S_TAG, S_ITER, S_PRE = 77, 78, 79
V_E, V_DBG = 58, 59
DIAGPRE = False
NOPRE = False
PF = 120

def role_branch(a, wbody, mbody):
    lm = a.label('rm'); le = a.label('re')
    a('s_cmp_ge_u32 s2, 160', f's_cbranch_scc1 {lm}')
    wbody()
    a(f's_branch {le}', f'{lm}:')
    mbody()
    a(f'{le}:')

def startup(a, P):
    srd(a, SRD_K, P_K, KV_BYTES); srd(a, SRD_V, P_V, KV_BYTES)
    ws = f's[{SRD_WS}:{SRD_WS+3}]'
    a(f's_mov_b32 s{S_T0}, {EPOCH}', f'buffer_load_dword v{V_E}, v{V_ZERO}, {ws}, s{S_T0} offen sc1')
    a(f'v_mov_b32 v{V_T+2}, -1', f'v_mov_b32 v{V_T+3}, -1', f'v_mov_b32 v{V_T+4}, -1', f'v_mov_b32 v{V_T+5}, -1')
    a(f's_lshl_b32 s{S_T0}, s{S_HEAD}, 3', f's_add_u32 s{S_T0}, s{S_T0}, s{S_MEM}', f's_lshl_b32 s{S_T0}, s{S_T0}, 10', f's_add_u32 s{S_T0}, s{S_T0}, {OP}',
      f'v_lshlrev_b32 v{V_T}, 2, v0')
    a(f'buffer_store_dword v{V_T+2}, v{V_T}, {ws}, s{S_T0} offen sc1')
    def wclr():
        sk = a.label('wc')
        a(f's_cmp_lg_u32 s{S_WAVE}, 0', f's_cbranch_scc1 {sk}')
        a(f's_and_b32 s{S_T0}, s2, 7', f's_mul_i32 s{S_T0}, s{S_T0}, 2560', f's_lshr_b32 s{S_T1}, s2, 3', f's_lshl_b32 s{S_T1}, s{S_T1}, 7',
          f's_add_u32 s{S_T0}, s{S_T0}, s{S_T1}', f's_add_u32 s{S_T0}, s{S_T0}, {HP}')
        a('v_cmp_gt_u32 vcc, 32, v0', 's_and_saveexec_b64 s[34:35], vcc')
        a(f'buffer_store_dword v{V_T+2}, v{V_T}, {ws}, s{S_T0} offen sc1')
        a('s_mov_b64 exec, s[34:35]')
        a(f'{sk}:')
    def mclr():
        m_index(a)
        sk = a.label('mc')
        a(f's_cmp_ge_u32 s{S_WAVE}, 3', f's_cbranch_scc1 {sk}')
        a(f'v_lshrrev_b32 v{V_T}, 2, v0', f'v_mul_u32_u24 v{V_T}, 6144, v{V_T}', f'v_and_b32 v{V_T+1}, 3, v0', f'v_lshl_add_u32 v{V_T}, v{V_T+1}, 4, v{V_T}',
          f's_lshl_b32 s{S_T0}, s{S_M}, 6', f's_add_u32 s{S_T0}, s{S_T0}, {YP}')
        a('v_cmp_gt_u32 vcc, 160, v0', 's_and_saveexec_b64 s[34:35], vcc')
        a(f'buffer_store_dwordx4 v[{V_T+2}:{V_T+5}], v{V_T}, {ws}, s{S_T0} offen sc1')
        a('s_mov_b64 exec, s[34:35]')
        a(f'{sk}:')
    role_branch(a, wclr, mclr)
    sk = a.label('cz')
    a(f's_or_b32 s{S_T0}, s{S_MEM}, s{S_WAVE}', f's_cmp_lg_u32 s{S_T0}, 0', f's_cbranch_scc1 {sk}')
    a(f's_lshl_b32 s{S_T0}, s{S_HEAD}, 8', f's_add_u32 s{S_T0}, s{S_T0}, {CNT}', 's_mov_b64 exec, 1')
    a(f'buffer_store_dword v{V_ZERO}, v{V_ZERO}, {ws}, s{S_T0} offen sc1')
    a('s_mov_b64 exec, -1', f'{sk}:')
    X = 64; W = 80; XF = 70
    srd(a, SRD_A, P_X, 1280); srd(a, SRD_B, P_WQ, 7864320)
    a(f'v_lshlrev_b32 v{V_T}, 2, v{V_LANE}')
    for j in range(5): a(f'buffer_load_dword v{X+j}, v{V_T}, s[{SRD_A}:{SRD_A+3}], 0 offen offset:{256*j}')
    a(f'v_lshrrev_b32 v{V_T+1}, 3, v{V_LANE}', f'v_mul_u32_u24 v{V_T+1}, 12288, v{V_T+1}', f'v_and_b32 v{V_T+2}, 7, v{V_LANE}',
      f'v_lshl_add_u32 v{V_T+1}, v{V_T+2}, 4, v{V_T+1}')
    a(f's_mul_i32 s{S_T0}, s{S_MEM}, 80', f's_lshl_b32 s{S_T1}, s{S_WAVE}, 3', f's_add_u32 s{S_T0}, s{S_T0}, s{S_T1}',
      f's_mul_i32 s{S_T1}, s{S_T0}, 12288', f's_mul_i32 s{S_T2}, s{S_HEAD}, 384', f's_add_u32 s{S_T1}, s{S_T1}, s{S_T2}')
    third = a.label('q3')
    for u in range(3):
        if u == 2: a(f's_cmp_ge_u32 s{S_WAVE}, 2', f's_cbranch_scc1 {third}')
        for j in range(3):
            a(f'buffer_load_dwordx4 v[{W+12*u+4*j}:{W+12*u+4*j+3}], v{V_T+1}, s[{SRD_B}:{SRD_B+3}], s{S_T1} offen offset:{128*j} nt')
        a(f's_add_u32 s{S_T1}, s{S_T1}, {32*12288}')
    a(f'{third}:')
    a(f's_mul_i32 s{S_HB}, s{S_HEAD}, {HEAD_BYTES}', f's_mul_i32 s{S_ROT}, s{S_HEAD}, {G.HROT}')
    a(f's_lshl_b32 s{S_CNT}, s{S_HEAD}, 8', f's_add_u32 s{S_CNT}, s{S_CNT}, {CNT}')
    nopf = a.label('nopf'); pfd = a.label('pfd')
    a(f's_cmp_ge_u32 s{S_WAVE}, 3', f's_cbranch_scc1 {nopf}')
    a(f's_mul_i32 s{S_NX}, s{S_MEM}, 3', f's_add_u32 s{S_NX}, s{S_NX}, s{S_WAVE}')
    for k in range(P):
        setoff(a); issue(a, PF + 24*k)
        a(f's_add_u32 s{S_NX}, s{S_NX}, 24')
    for i in range(24): a(f'v_mov_b32 v{V_ACC+i}, 0')
    a(f's_waitcnt vmcnt({6+6*P})')
    a(f's_branch {pfd}', f'{nopf}:')
    for i in range(24): a(f'v_mov_b32 v{V_ACC+i}, 0')
    a('s_waitcnt vmcnt(6)')
    a(f'{pfd}:')
    a(f'v_readfirstlane_b32 s{S_TAG}, v{V_E}')
    unpack5(a, X, XF)
    a(f's_add_u32 s{S_TAG}, s{S_TAG}, 1')
    layernorm(a, XF, V_T+4)
    for j in range(5): a(f'v_cvt_pk_bf16_f32 v{X+j}, v{XF+2*j}, v{XF+2*j+1}')
    a(f's_mul_i32 s{S_T2}, s{S_WAVE}, 1280', f'v_lshlrev_b32 v{V_T}, 2, v{V_LANE}', f'v_add_u32 v{V_T}, s{S_T2}, v{V_T}')
    for j in range(5): a(f'ds_write_b32 v{V_T}, v{X+j} offset:{L_XN+256*j}')
    a(f's_lshl_b32 s{S_T0}, s{S_T0}, 1', f's_add_u32 s{S_T0}, s{S_T0}, s{S_T2}',
      f'v_lshrrev_b32 v{V_T}, 3, v{V_LANE}', f'v_lshlrev_b32 v{V_T}, 1, v{V_T}', f'v_add_u32 v{V_T}, s{S_T0}, v{V_T}')
    a('s_waitcnt lgkmcnt(0)')
    for u in range(3): a(f'ds_read_u16 v{X+u}, v{V_T} offset:{L_XN+64*u}')
    w3 = a.label('w3'); w3d = a.label('w3d')
    a(f's_cmp_ge_u32 s{S_WAVE}, 3', f's_cbranch_scc1 {w3}', f's_waitcnt lgkmcnt(0) vmcnt({6*P})', f's_branch {w3d}', f'{w3}:', 's_waitcnt lgkmcnt(0) vmcnt(0)', f'{w3d}:')
    skip = a.label('q3b')
    for u in range(3):
        if u == 2: a(f's_cmp_ge_u32 s{S_WAVE}, 2', f's_cbranch_scc1 {skip}')
        a(f'v_lshlrev_b32 v{X+4}, 16, v{X+u}')
        pv_unit(a, W+12*u, X+u, X+4)
    a(f'{skip}:', 's_nop 2')
    red_write(a, V_T)
    a('s_waitcnt lgkmcnt(0)', 's_barrier')
    stamp(a, 0, 1)
    gat = a.label('gat'); qrdy = a.label('qrdy')
    a(f's_cmp_ge_u32 s{S_WAVE}, 3', f's_cbranch_scc1 {gat}')
    red_read(a, 64, 96)
    a('v_add_f32 v96, v96, v97', 'v_add_f32 v98, v98, v99', 'v_add_f32 v96, v96, v98', f'v_mov_b32 v97, s{S_TAG}')
    a(f's_lshl_b32 s{S_T0}, s{S_HEAD}, 3', f's_add_u32 s{S_T0}, s{S_T0}, s{S_MEM}', f's_lshl_b32 s{S_T0}, s{S_T0}, 11',
      f's_add_u32 s{S_T0}, s{S_T0}, {QP2}', f'v_lshlrev_b32 v{V_T}, 3, v0')
    a(f'buffer_store_dwordx2 v[96:97], v{V_T}, {ws}, s{S_T0} offen sc1')
    a(f's_branch {qrdy}')
    a(f'{gat}:')
    srd(a, SRD_A, P_DBG, 256)
    a(f'v_mov_b32 v{V_T}, 1', 's_mov_b64 exec, 1')
    a(f'buffer_atomic_add v{V_T}, v{V_ZERO}, s[{SRD_A}:{SRD_A+3}], 0 offen')
    a('s_mov_b64 exec, -1')
    a(f's_lshl_b32 s{S_T0}, s{S_HEAD}, 14', f's_add_u32 s{S_T0}, s{S_T0}, {QP2}')
    a(f's_add_u32 s{S_T1}, s{S_T0}, 4096', f's_add_u32 s{S_T2}, s{S_T0}, 8192', f's_add_u32 s{S_T3}, s{S_T0}, 12288')
    a(f'v_lshlrev_b32 v{V_T}, 3, v{V_LANE}')
    lbl = a.label('qspin')
    spin_begin(a, lbl)
    for s in range(8):
        for j in range(3):
            r = 64 + 2*(3*s+j)
            a(f'buffer_load_dwordx2 v[{r}:{r+1}], v{V_T}, {ws}, s{S_T0 + s//2} offen offset:{2048*(s&1)+512*j} sc1')
    a('s_waitcnt vmcnt(0)')
    tags = [64 + 2*i + 1 for i in range(24)]
    a(f'v_min3_u32 v{V_T+2}, v{tags[0]}, v{tags[1]}, v{tags[2]}', f'v_max3_u32 v{V_T+3}, v{tags[0]}, v{tags[1]}, v{tags[2]}')
    for i in range(3, 23, 2):
        a(f'v_min3_u32 v{V_T+2}, v{V_T+2}, v{tags[i]}, v{tags[i+1]}', f'v_max3_u32 v{V_T+3}, v{V_T+3}, v{tags[i]}, v{tags[i+1]}')
    a(f'v_min_u32 v{V_T+2}, v{V_T+2}, v{tags[23]}', f'v_max_u32 v{V_T+3}, v{V_T+3}, v{tags[23]}')
    a(f'v_xor_b32 v{V_T+2}, s{S_TAG}, v{V_T+2}', f'v_xor_b32 v{V_T+3}, s{S_TAG}, v{V_T+3}', f'v_or_b32 v{V_T+2}, v{V_T+2}, v{V_T+3}')
    ok = a.label('qok')
    a(f'v_cmp_ne_u32 vcc, 0, v{V_T+2}', f's_cbranch_vccz {ok}')
    a(f's_add_u32 s{S_SPIN}, s{S_SPIN}, 1', f's_cmp_lt_u32 s{S_SPIN}, 200000', f's_cbranch_scc1 {lbl}')
    a(f'{ok}:')
    for j in range(3):
        for s in range(1, 8): a(f'v_add_f32 v{64+2*j}, v{64+2*j}, v{64+2*(3*s+j)}')
        a(f'v_cvt_pk_bf16_f32 v{64+2*j}, v{64+2*j}, v{64+2*j}')
    a(f'v_lshlrev_b32 v{V_T}, 1, v{V_LANE}')
    for j in range(3): a(f'ds_write_b16 v{V_T}, v{64+2*j} offset:{L_SM+64+128*j}')
    a(f'{qrdy}:')
    a('s_waitcnt lgkmcnt(0)', 's_barrier')
    a(f'v_and_b32 v{V_T}, 7, v{V_LANE}', f'v_lshlrev_b32 v{V_T}, 4, v{V_T}')
    for j in range(3): a(f'ds_read_b128 v[{V_Q+4*j}:{V_Q+4*j+3}], v{V_T} offset:{L_SM+64+128*j}')

def setoff(a):
    a(f's_add_u32 s{S_OFF}, s{S_NX}, s{S_ROT}', f's_and_b32 s{S_OFF}, s{S_OFF}, 4095')
    a(f's_mul_i32 s{S_OFF}, s{S_OFF}, 3072', f's_add_u32 s{S_OFF}, s{S_OFF}, s{S_HB}')
def issue(a, r, fl=' nt'):
    for j in range(3): a(f'buffer_load_dwordx4 v[{r+4*j}:{r+4*j+3}], v{V_OFFB}, s[{SRD_K}:{SRD_K+3}], s{S_OFF} offen offset:{128*j}{fl}')
    for j in range(3): a(f'buffer_load_dwordx4 v[{r+12+4*j}:{r+12+4*j+3}], v{V_OFFB}, s[{SRD_V}:{SRD_V+3}], s{S_OFF} offen offset:{128*j}{fl}')
def atomic(a):
    a(f'v_mov_b32 v{V_ATOM}, 1', 's_mov_b64 exec, 1')
    a(f'buffer_atomic_add v{V_ATOM}, v{V_ZERO}, s[{SRD_WS}:{SRD_WS+3}], s{S_CNT} offen sc0')
    a('s_mov_b64 exec, -1')

def preload(a):
    role_branch(a, lambda: phase_w_load(a), lambda: (phase_h_load(a), phase_m_load(a)))
    srd(a, SRD_A, P_DBG, 256)
    a(f'buffer_load_dword v{V_DBG}, v{V_ZERO}, s[{SRD_A}:{SRD_A+3}], 0 offen sc1')

def stream(a, P):
    atomic(a)
    a(f's_lshl_b32 s{S_NX}, s{S_MEM}, 2', f's_add_u32 s{S_NX}, s{S_NX}, s{S_WAVE}', f's_add_u32 s{S_NX}, s{S_NX}, {24*P}')
    setoff(a); issue(a, V_RING)
    for i in range(24): a(f'v_mov_b32 v{V_ACC+i}, 0')
    a(f'v_mov_b32 v{V_M}, 0x{NEGBIG:08x}', f'v_mov_b32 v{V_L}, 0')
    def pw():
        a(f's_lshr_b32 s{S_PRE}, s2, 4', f's_and_b32 s{S_T0}, s2, 3', f's_mul_i32 s{S_T0}, s{S_T0}, 10', f's_add_u32 s{S_PRE}, s{S_PRE}, s{S_T0}', f's_add_u32 s{S_PRE}, s{S_PRE}, 4')
    def pm():
        a(f's_lshr_b32 s{S_PRE}, s{S_M}, 2', f's_add_u32 s{S_PRE}, s{S_PRE}, 8')
    role_branch(a, pw, pm)
    if NOPRE: a(f's_mov_b32 s{S_PRE}, 1000000')
    a(f's_mov_b32 s{S_ITER}, 0')
    a('s_waitcnt lgkmcnt(0)')
    if P:
        sk = a.label('pfs')
        a(f's_cmp_ge_u32 s{S_WAVE}, 3', f's_cbranch_scc1 {sk}')
        a('s_waitcnt vmcnt(7)')
        for k in range(P): compute_unit(a, PF + 24*k)
        a(f'{sk}:')
    stamp(a, 0, 2)
    loop = a.label('loop'); done = a.label('sdone'); pre = a.label('pre'); back = a.label('back')
    drains = []
    a(f'{loop}:')
    a(f's_add_u32 s{S_ITER}, s{S_ITER}, 1', f's_cmp_eq_u32 s{S_ITER}, s{S_PRE}', f's_cbranch_scc1 {pre}')
    a(f'{back}:')
    for t in range(2):
        a('s_waitcnt vmcnt(0)')
        dl = a.label('drain'); drains.append((dl, t))
        a(f'v_readfirstlane_b32 s{S_NX}, v{V_ATOM}', 's_nop 0', f's_add_u32 s{S_NX}, s{S_NX}, {24*P+32}',
          f's_cmp_ge_u32 s{S_NX}, 4096', f's_cbranch_scc1 {dl}')
        atomic(a); setoff(a)
        issue(a, V_RING + 24*((t+1) % 2))
        compute_unit(a, V_RING + 24*t)
    a(f's_branch {loop}')
    a(f'{pre}:')
    if DIAGPRE: stamp(a, 0, 4)
    preload(a)
    if DIAGPRE:
        a('s_waitcnt vmcnt(0)'); stamp(a, 0, 5)
    a(f's_branch {back}')
    for dl, t in drains:
        a(f'{dl}:')
        compute_unit(a, V_RING + 24*t)
        a(f's_branch {done}')
    a(f'{done}:')
    sk = a.label('pdone')
    a(f's_cmp_ge_u32 s{S_ITER}, s{S_PRE}', f's_cbranch_scc1 {sk}')
    preload(a)
    a('s_waitcnt vmcnt(0)')
    a(f'{sk}:')

def dbg_check(a):
    ok = a.label('dok'); lp = a.label('dlp')
    a(f'v_readfirstlane_b32 s{S_T0}, v{V_DBG}', 's_nop 0', f's_cmp_ge_u32 s{S_T0}, 256', f's_cbranch_scc1 {ok}')
    srd(a, SRD_A, P_DBG, 256)
    a(f's_mov_b32 s{S_SPIN}, 0', f'{lp}:')
    a(f'buffer_load_dword v{V_DBG}, v{V_ZERO}, s[{SRD_A}:{SRD_A+3}], 0 offen sc1', 's_waitcnt vmcnt(0)')
    a(f'v_readfirstlane_b32 s{S_T0}, v{V_DBG}', 's_nop 0', f's_cmp_ge_u32 s{S_T0}, 256', f's_cbranch_scc1 {ok}')
    a(f's_add_u32 s{S_SPIN}, s{S_SPIN}, 1', f's_cmp_lt_u32 s{S_SPIN}, 200000', f's_cbranch_scc1 {lp}')
    a(f'{ok}:')
    sk = a.label('ep')
    a(f's_or_b32 s{S_T0}, s2, s{S_WAVE}', f's_cmp_lg_u32 s{S_T0}, 0', f's_cbranch_scc1 {sk}')
    a(f'v_mov_b32 v{V_T}, s{S_TAG}', f's_mov_b32 s{S_T0}, {EPOCH}', 's_mov_b64 exec, 1')
    a(f'buffer_store_dword v{V_T}, v{V_ZERO}, s[{SRD_WS}:{SRD_WS+3}], s{S_T0} offen sc1')
    a('s_mov_b64 exec, -1', f'{sk}:')

def build_one(P=2):
    a = Asm()
    name = NAME_BASE + '_kernel'
    hdr = header([f'; @launch grid=(256,1,1) block=(256,1,1) lds={LDS_BYTES}'])
    a('.amdgcn_target "amdgcn-amd-amdhsa--gfx950"', '.text')
    def body(a):
        startup(a, P)
        stream(a, P)
        stamp(a, 0, 3)
        phase_t1(a)
        a('s_barrier')
        dbg_check(a)
        rm = a.label('rolem'); fin = a.label('fin')
        a('s_cmp_ge_u32 s2, 160', f's_cbranch_scc1 {rm}')
        phase_w(a, True)
        if not DIAGPRE: stamp(a, 0, 4)
        a(f's_branch {fin}', f'{rm}:')
        phase_h(a, True)
        if not DIAGPRE: stamp(a, 0, 5)
        phase_m(a)
        a(f's_cmp_ge_u32 s{S_M}, 40', f's_cbranch_scc1 {fin}')
        phase_f(a, True)
        stamp(a, 0, 6)
        a(f'{fin}:')
    G.kernel(a, name, 256, body, 0)
    a('.section .rodata,"a"', '.p2align 6')
    a.lines.append(kernel_desc(name, 256, 102))
    return '\n'.join(hdr) + '\n' + a.text()

if __name__ == '__main__':
    P = 2
    for x in sys.argv[1:]:
        if x == 'stamp': G.STAMP = True
        if x == 'diagpre': DIAGPRE = True
        if x == 'nopre': NOPRE = True
        if x == 'wnt': G.WFL = ' nt'
        if x.startswith('hrot='): G.HROT = int(x[5:])
        if x.startswith('P='): P = int(x[2:])
    sys.stdout.write(build_one(P))
```

```python
import sys
import gen as G
from gen import *
import gen1
from gen1 import role_branch, EPOCH, QP2, S_TAG, V_E, V_DBG, PF, setoff, issue, atomic, dbg_check

S_K, S_SU = 78, 79
S_PA, S_PB = 68, 69
V_PA, V_PB = 48, 49
SRD_C, SRD_D, SRD_E = 88, 92, 96
OPT = dict(P=2, NS=114, pf_late=False, npre=8)

def startup(a):
    P = OPT['P']
    srd(a, SRD_K, P_K, KV_BYTES); srd(a, SRD_V, P_V, KV_BYTES)
    ws = f's[{SRD_WS}:{SRD_WS+3}]'
    X = 64; W = 80; XF = 70
    srd(a, SRD_A, P_X, 1280); srd(a, SRD_B, P_WQ, 7864320)
    a(f'v_lshlrev_b32 v{V_T}, 2, v{V_LANE}')
    a(f's_mov_b32 s{S_T0}, {EPOCH}', f'buffer_load_dword v{V_E}, v{V_ZERO}, {ws}, s{S_T0} offen sc1')
    for j in range(5): a(f'buffer_load_dword v{X+j}, v{V_T}, s[{SRD_A}:{SRD_A+3}], 0 offen offset:{256*j}')
    a(f'v_lshrrev_b32 v{V_T+1}, 3, v{V_LANE}', f'v_mul_u32_u24 v{V_T+1}, 12288, v{V_T+1}', f'v_and_b32 v{V_T+2}, 7, v{V_LANE}',
      f'v_lshl_add_u32 v{V_T+1}, v{V_T+2}, 4, v{V_T+1}')
    a(f's_mul_i32 s{S_T3}, s{S_MEM}, 80', f's_lshl_b32 s{S_T1}, s{S_WAVE}, 3', f's_add_u32 s{S_T3}, s{S_T3}, s{S_T1}',
      f's_mul_i32 s{S_T1}, s{S_T3}, 12288', f's_mul_i32 s{S_T2}, s{S_HEAD}, 384', f's_add_u32 s{S_T1}, s{S_T1}, s{S_T2}')
    a(f's_mov_b32 s70, s{S_T3}')
    third = a.label('q3')
    for u in range(3):
        if u == 2: a(f's_cmp_ge_u32 s{S_WAVE}, 2', f's_cbranch_scc1 {third}')
        for j in range(3):
            a(f'buffer_load_dwordx4 v[{W+12*u+4*j}:{W+12*u+4*j+3}], v{V_T+1}, s[{SRD_B}:{SRD_B+3}], s{S_T1} offen offset:{128*j} nt')
        a(f's_add_u32 s{S_T1}, s{S_T1}, {32*12288}')
    a(f'{third}:')
    a(f'v_mov_b32 v{V_T+2}, -1', f'v_mov_b32 v{V_T+3}, -1', f'v_mov_b32 v{V_T+4}, -1', f'v_mov_b32 v{V_T+5}, -1')
    a(f's_lshl_b32 s{S_T0}, s{S_HEAD}, 3', f's_add_u32 s{S_T0}, s{S_T0}, s{S_MEM}', f's_lshl_b32 s{S_T0}, s{S_T0}, 10', f's_add_u32 s{S_T0}, s{S_T0}, {OP}',
      f'v_lshlrev_b32 v{V_T}, 2, v0')
    a(f'buffer_store_dword v{V_T+2}, v{V_T}, {ws}, s{S_T0} offen sc1')
    def wclr():
        sk = a.label('wc')
        a(f's_cmp_lg_u32 s{S_WAVE}, 0', f's_cbranch_scc1 {sk}')
        a(f's_and_b32 s{S_T0}, s2, 7', f's_mul_i32 s{S_T0}, s{S_T0}, 2560', f's_lshr_b32 s{S_T1}, s2, 3', f's_lshl_b32 s{S_T1}, s{S_T1}, 7',
          f's_add_u32 s{S_T0}, s{S_T0}, s{S_T1}', f's_add_u32 s{S_T0}, s{S_T0}, {HP}')
        a('v_cmp_gt_u32 vcc, 32, v0', 's_and_saveexec_b64 s[34:35], vcc')
        a(f'buffer_store_dword v{V_T+2}, v{V_T}, {ws}, s{S_T0} offen sc1')
        a('s_mov_b64 exec, s[34:35]')
        a(f'{sk}:')
    def mclr():
        m_index(a)
        sk = a.label('mc')
        a(f's_cmp_ge_u32 s{S_WAVE}, 3', f's_cbranch_scc1 {sk}')
        a(f'v_lshrrev_b32 v{V_T}, 2, v0', f'v_mul_u32_u24 v{V_T}, 6144, v{V_T}', f'v_and_b32 v{V_T+1}, 3, v0', f'v_lshl_add_u32 v{V_T}, v{V_T+1}, 4, v{V_T}',
          f's_lshl_b32 s{S_T0}, s{S_M}, 6', f's_add_u32 s{S_T0}, s{S_T0}, {YP}')
        a('v_cmp_gt_u32 vcc, 160, v0', 's_and_saveexec_b64 s[34:35], vcc')
        a(f'buffer_store_dwordx4 v[{V_T+2}:{V_T+5}], v{V_T}, {ws}, s{S_T0} offen sc1')
        a('s_mov_b64 exec, s[34:35]')
        a(f'{sk}:')
    role_branch(a, wclr, mclr)
    sk = a.label('cz')
    a(f's_or_b32 s{S_T0}, s{S_MEM}, s{S_WAVE}', f's_cmp_lg_u32 s{S_T0}, 0', f's_cbranch_scc1 {sk}')
    a(f's_lshl_b32 s{S_T0}, s{S_HEAD}, 8', f's_add_u32 s{S_T0}, s{S_T0}, {CNT}', 's_mov_b64 exec, 1')
    a(f'buffer_store_dword v{V_ZERO}, v{V_ZERO}, {ws}, s{S_T0} offen sc1')
    a('s_mov_b64 exec, -1', f'{sk}:')
    a(f's_mul_i32 s{S_HB}, s{S_HEAD}, {HEAD_BYTES}', f's_mul_i32 s{S_ROT}, s{S_HEAD}, {G.HROT}')
    a(f's_lshl_b32 s{S_CNT}, s{S_HEAD}, 8', f's_add_u32 s{S_CNT}, s{S_CNT}, {CNT}')
    a(f's_lshl_b32 s{S_SU}, s{S_MEM}, 2', f's_add_u32 s{S_SU}, s{S_SU}, s{S_WAVE}', f's_mov_b32 s{S_K}, 0')
    def prefetch():
        for k in range(P):
            a(f's_mov_b32 s{S_NX}, s{S_SU}'); setoff(a); issue(a, PF + 24*k)
            a(f's_add_u32 s{S_SU}, s{S_SU}, 32', f's_add_u32 s{S_K}, s{S_K}, 1')
    early = P and not OPT['pf_late']
    nopf = a.label('nopf'); pfd = a.label('pfd')
    if early:
        a(f's_cmp_ge_u32 s{S_WAVE}, 3', f's_cbranch_scc1 {nopf}')
        prefetch()
        for i in range(24): a(f'v_mov_b32 v{V_ACC+i}, 0')
        a(f's_waitcnt vmcnt({7+6*P})')
        a(f's_branch {pfd}', f'{nopf}:')
    for i in range(24): a(f'v_mov_b32 v{V_ACC+i}, 0')
    a('s_waitcnt vmcnt(7)')
    a(f'{pfd}:')
    a(f'v_readfirstlane_b32 s{S_TAG}, v{V_E}')
    unpack5(a, X, XF)
    a(f's_add_u32 s{S_TAG}, s{S_TAG}, 1')
    layernorm(a, XF, V_T+4)
    for j in range(5): a(f'v_cvt_pk_bf16_f32 v{X+j}, v{XF+2*j}, v{XF+2*j+1}')
    a(f's_mul_i32 s{S_T2}, s{S_WAVE}, 1280', f'v_lshlrev_b32 v{V_T}, 2, v{V_LANE}', f'v_add_u32 v{V_T}, s{S_T2}, v{V_T}')
    for j in range(5): a(f'ds_write_b32 v{V_T}, v{X+j} offset:{L_XN+256*j}')
    a(f's_lshl_b32 s{S_T0}, s70, 1', f's_add_u32 s{S_T0}, s{S_T0}, s{S_T2}',
      f'v_lshrrev_b32 v{V_T}, 3, v{V_LANE}', f'v_lshlrev_b32 v{V_T}, 1, v{V_T}', f'v_add_u32 v{V_T}, s{S_T0}, v{V_T}')
    a('s_waitcnt lgkmcnt(0)')
    for u in range(3): a(f'ds_read_u16 v{X+u}, v{V_T} offset:{L_XN+64*u}')
    w3 = a.label('w3'); w3d = a.label('w3d')
    if early:
        a(f's_cmp_ge_u32 s{S_WAVE}, 3', f's_cbranch_scc1 {w3}', f's_waitcnt lgkmcnt(0) vmcnt({6*P})', f's_branch {w3d}', f'{w3}:', 's_waitcnt lgkmcnt(0) vmcnt(0)', f'{w3d}:')
    else:
        a('s_waitcnt lgkmcnt(0) vmcnt(0)')
        if P:
            a(f's_cmp_ge_u32 s{S_WAVE}, 3', f's_cbranch_scc1 {w3}')
            prefetch()
            a(f'{w3}:')
    skip = a.label('q3b')
    for u in range(3):
        if u == 2: a(f's_cmp_ge_u32 s{S_WAVE}, 2', f's_cbranch_scc1 {skip}')
        a(f'v_lshlrev_b32 v{X+4}, 16, v{X+u}')
        pv_unit(a, W+12*u, X+u, X+4)
    a(f'{skip}:', 's_nop 2')
    red_write(a, V_T)
    a('s_waitcnt lgkmcnt(0)', 's_barrier')
    stamp(a, 0, 1)
    gat = a.label('gat'); qrdy = a.label('qrdy')
    a(f's_cmp_ge_u32 s{S_WAVE}, 3', f's_cbranch_scc1 {gat}')
    red_read(a, 64, 96)
    a('v_add_f32 v96, v96, v97', 'v_add_f32 v98, v98, v99', 'v_add_f32 v96, v96, v98', f'v_mov_b32 v97, s{S_TAG}')
    a(f's_lshl_b32 s{S_T0}, s{S_HEAD}, 3', f's_add_u32 s{S_T0}, s{S_T0}, s{S_MEM}', f's_lshl_b32 s{S_T0}, s{S_T0}, 11',
      f's_add_u32 s{S_T0}, s{S_T0}, {QP2}', f'v_lshlrev_b32 v{V_T}, 3, v0')
    a(f'buffer_store_dwordx2 v[96:97], v{V_T}, {ws}, s{S_T0} offen sc1')
    a(f's_branch {qrdy}')
    a(f'{gat}:')
    srd(a, SRD_A, P_DBG, 256)
    a(f'v_mov_b32 v{V_T}, 1', 's_mov_b64 exec, 1')
    a(f'buffer_atomic_add v{V_T}, v{V_ZERO}, s[{SRD_A}:{SRD_A+3}], 0 offen')
    a('s_mov_b64 exec, -1')
    a(f's_lshl_b32 s{S_T0}, s{S_HEAD}, 14', f's_add_u32 s{S_T0}, s{S_T0}, {QP2}')
    a(f's_add_u32 s{S_T1}, s{S_T0}, 4096', f's_add_u32 s{S_T2}, s{S_T0}, 8192', f's_add_u32 s{S_T3}, s{S_T0}, 12288')
    a(f'v_lshlrev_b32 v{V_T}, 3, v{V_LANE}')
    lbl = a.label('qspin')
    spin_begin(a, lbl)
    for s in range(8):
        for j in range(3):
            r = 64 + 2*(3*s+j)
            a(f'buffer_load_dwordx2 v[{r}:{r+1}], v{V_T}, {ws}, s{S_T0 + s//2} offen offset:{2048*(s&1)+512*j} sc1')
    a('s_waitcnt vmcnt(0)')
    tags = [64 + 2*i + 1 for i in range(24)]
    a(f'v_min3_u32 v{V_T+2}, v{tags[0]}, v{tags[1]}, v{tags[2]}', f'v_max3_u32 v{V_T+3}, v{tags[0]}, v{tags[1]}, v{tags[2]}')
    for i in range(3, 23, 2):
        a(f'v_min3_u32 v{V_T+2}, v{V_T+2}, v{tags[i]}, v{tags[i+1]}', f'v_max3_u32 v{V_T+3}, v{V_T+3}, v{tags[i]}, v{tags[i+1]}')
    a(f'v_min_u32 v{V_T+2}, v{V_T+2}, v{tags[23]}', f'v_max_u32 v{V_T+3}, v{V_T+3}, v{tags[23]}')
    a(f'v_xor_b32 v{V_T+2}, s{S_TAG}, v{V_T+2}', f'v_xor_b32 v{V_T+3}, s{S_TAG}, v{V_T+3}', f'v_or_b32 v{V_T+2}, v{V_T+2}, v{V_T+3}')
    ok = a.label('qok')
    a(f'v_cmp_ne_u32 vcc, 0, v{V_T+2}', f's_cbranch_vccz {ok}')
    a(f's_add_u32 s{S_SPIN}, s{S_SPIN}, 1', f's_cmp_lt_u32 s{S_SPIN}, 200000', f's_cbranch_scc1 {lbl}')
    a(f'{ok}:')
    for j in range(3):
        for s in range(1, 8): a(f'v_add_f32 v{64+2*j}, v{64+2*j}, v{64+2*(3*s+j)}')
        a(f'v_cvt_pk_bf16_f32 v{64+2*j}, v{64+2*j}, v{64+2*j}')
    a(f'v_lshlrev_b32 v{V_T}, 1, v{V_LANE}')
    for j in range(3): a(f'ds_write_b16 v{V_T}, v{64+2*j} offset:{L_SM+64+128*j}')
    a(f'{qrdy}:')
    a('s_waitcnt lgkmcnt(0)', 's_barrier')
    a(f'v_and_b32 v{V_T}, 7, v{V_LANE}', f'v_lshlrev_b32 v{V_T}, 4, v{V_T}')
    for j in range(3): a(f'ds_read_b128 v[{V_Q+4*j}:{V_Q+4*j+3}], v{V_T} offset:{L_SM+64+128*j}')

def static_next(a):
    a(f's_mov_b32 s{S_NX}, s{S_SU}', f's_add_u32 s{S_SU}, s{S_SU}, 32', f's_add_u32 s{S_K}, s{S_K}, 1')

def pre_lists(a):
    FL = ' nt'
    def w_setup():
        srd(a, SRD_A, P_WO, 7864320)
        a(f's_and_b32 s{S_T0}, s2, 7', f's_lshr_b32 s{S_T1}, s2, 3')
        a(f's_mul_i32 s{S_PA}, s{S_T0}, {768*1280}', f's_lshl_b32 s{S_T1}, s{S_T1}, 6', f's_add_u32 s{S_PA}, s{S_PA}, s{S_T1}')
        a(f'v_lshrrev_b32 v{V_PA}, 2, v0', f'v_mul_u32_u24 v{V_PA}, 1280, v{V_PA}', f'v_and_b32 v{V_PB}, 3, v0', f'v_lshl_add_u32 v{V_PA}, v{V_PB}, 4, v{V_PA}')
        srd(a, SRD_E, P_DBG, 256)
    w_loads = [f'buffer_load_dwordx4 v[{W_W+4*p}:{W_W+4*p+3}], v{V_PA}, s[{SRD_A}:{SRD_A+3}], s{S_PA} offen{FL}\ns_add_u32 s{S_PA}, s{S_PA}, {64*1280}' for p in range(12)]
    def m_setup():
        a(f's_cmp_ge_u32 s{S_WAVE}, 2', f's_cselect_b32 s{S_T0}, s{P_WU}, s{P_WG}', f's_cselect_b32 s{S_T1}, s{P_WU+1}, s{P_WG+1}')
        srd(a, SRD_A, S_T0, 1966080); srd(a, SRD_B, P_WD, 1966080); srd(a, SRD_C, P_X, 1280); srd(a, SRD_D, P_WR, 1280); srd(a, SRD_E, P_DBG, 256)
        a(f'v_and_b32 v{V_PB}, 127, v0', f'v_lshrrev_b32 v{V_PA}, 1, v{V_PB}', f'v_mul_u32_u24 v{V_PA}, 3072, v{V_PA}', f'v_and_b32 v{V_PB}, 1, v{V_PB}',
          f'v_lshl_add_u32 v{V_PA}, v{V_PB}, 4, v{V_PA}', f'v_lshlrev_b32 v{V_PB}, 2, v{V_LANE}')
        a(f's_lshl_b32 s{S_PA}, s{S_M}, 5')
        a(f's_lshl_b32 s{S_PB}, s{S_M}, 4', f's_lshl_b32 s{S_T3}, s{S_WAVE}, 2', f's_add_u32 s{S_PB}, s{S_PB}, s{S_T3}', f's_mul_i32 s{S_PB}, s{S_PB}, 1280')
    m_loads = [f'buffer_load_dwordx4 v[{W_GU+4*p}:{W_GU+4*p+3}], v{V_PA}, s[{SRD_A}:{SRD_A+3}], s{S_PA} offen{FL}\ns_add_u32 s{S_PA}, s{S_PA}, {64*3072}' for p in range(10)]
    dn = []
    for i in range(4):
        for j in range(5):
            s = f'buffer_load_dword v{W_DN+5*i+j}, v{V_PB}, s[{SRD_B}:{SRD_B+3}], s{S_PB} offen offset:{256*j}{FL}'
            if j == 4: s += f'\ns_add_u32 s{S_PB}, s{S_PB}, 1280'
            dn.append(s)
    xs = [f'buffer_load_dword v{208+j}, v{V_PB}, s[{SRD_C}:{SRD_C+3}], 0 offen offset:{256*j}' for j in range(5)]
    xs += [f'buffer_load_dword v{213+j}, v{V_PB}, s[{SRD_D}:{SRD_D+3}], 0 offen offset:{256*j}' for j in range(5)]
    small = dn + xs
    ml = []
    for p in range(10):
        ml.append(m_loads[p]); ml += small[3*p:3*p+3]
    dbg = f'buffer_load_dword v{V_DBG}, v{V_ZERO}, s[{SRD_E}:{SRD_E+3}], 0 offen sc1'
    return (w_setup, w_loads + [dbg]), (m_setup, ml + [dbg])

def stream(a):
    P, NS, NPRE = OPT['P'], OPT['NS'], OPT['npre']
    assert NPRE % 2 == 0 and P + 1 + NPRE < NS
    static_next(a); setoff(a); issue(a, V_RING)
    for i in range(24): a(f'v_mov_b32 v{V_ACC+i}, 0')
    a(f'v_mov_b32 v{V_M}, 0x{NEGBIG:08x}', f'v_mov_b32 v{V_L}, 0')
    a('s_waitcnt lgkmcnt(0)')
    if P:
        sk = a.label('pfs')
        a(f's_cmp_ge_u32 s{S_WAVE}, 3', f's_cbranch_scc1 {sk}')
        a('s_waitcnt vmcnt(6)')
        for k in range(P): compute_unit(a, PF + 24*k)
        a(f'{sk}:')
    stamp(a, 0, 2)
    (ws_, wl), (ms_, ml) = pre_lists(a)
    def section(setup, loads):
        setup()
        per = -(-len(loads) // NPRE)
        for t in range(NPRE):
            a('s_waitcnt vmcnt(0)')
            static_next(a); setoff(a); issue(a, V_RING + 24*((t+1) % 2))
            for l in loads[per*t:per*(t+1)]: a(l)
            compute_unit(a, V_RING + 24*(t % 2))
    role_branch(a, lambda: section(ws_, wl), lambda: section(ms_, ml))
    loop = a.label('loop'); done = a.label('sdone')
    drains = []
    a(f'{loop}:')
    for t in range(2):
        a('s_waitcnt vmcnt(0)')
        dyn = a.label('dyn'); cont = a.label('cont'); dl = a.label('drain'); drains.append((dl, t))
        a(f's_cmp_ge_u32 s{S_K}, {NS}', f's_cbranch_scc1 {dyn}')
        static_next(a)
        a(f's_cmp_lt_u32 s{S_K}, {NS}', f's_cbranch_scc1 {cont}')
        atomic(a)
        a(f's_branch {cont}', f'{dyn}:')
        a(f'v_readfirstlane_b32 s{S_NX}, v{V_ATOM}', 's_nop 0', f's_add_u32 s{S_NX}, s{S_NX}, {32*NS}',
          f's_cmp_ge_u32 s{S_NX}, 4096', f's_cbranch_scc1 {dl}')
        atomic(a)
        a(f'{cont}:')
        setoff(a)
        issue(a, V_RING + 24*((t+1) % 2))
        compute_unit(a, V_RING + 24*t)
    a(f's_branch {loop}')
    for dl, t in drains:
        a(f'{dl}:')
        compute_unit(a, V_RING + 24*t)
        a(f's_branch {done}')
    a(f'{done}:')

def build():
    a = Asm()
    name = NAME_BASE + '_kernel'
    hdr = header([f'; @launch grid=(256,1,1) block=(256,1,1) lds={LDS_BYTES}'])
    a('.amdgcn_target "amdgcn-amd-amdhsa--gfx950"', '.text')
    def body(a):
        startup(a)
        stream(a)
        stamp(a, 0, 3)
        phase_t1(a)
        a('s_barrier')
        dbg_check(a)
        rm = a.label('rolem'); fin = a.label('fin')
        a('s_cmp_ge_u32 s2, 160', f's_cbranch_scc1 {rm}')
        phase_w(a, True)
        stamp(a, 0, 4)
        a(f's_branch {fin}', f'{rm}:')
        phase_h(a, True)
        stamp(a, 0, 5)
        phase_m(a)
        a(f's_cmp_ge_u32 s{S_M}, 40', f's_cbranch_scc1 {fin}')
        phase_f(a, True)
        stamp(a, 0, 6)
        a(f'{fin}:')
    G.kernel(a, name, 256, body, 0)
    a('.section .rodata,"a"', '.p2align 6')
    a.lines.append(kernel_desc(name, 256, 102))
    return '\n'.join(hdr) + '\n' + a.text()

if __name__ == '__main__':
    for x in sys.argv[1:]:
        if x == 'stamp': G.STAMP = True
        elif x.startswith('hrot='): G.HROT = int(x[5:])
        elif '=' in x:
            k, v = x.split('='); OPT[k] = int(v)
    sys.stdout.write(build())
```

```python
import sys, struct
from asmlib import *

def f2u(x): return struct.unpack('<I', struct.pack('<f', x))[0]
SCALE = f2u(192 ** -0.5); LOG2E = f2u(1.4426950408889634); INV640 = f2u(1.0/640); EPS = f2u(1e-5); NEGBIG = f2u(-3.0e38)
KV_BYTES = 402653184; HEAD_BYTES = 12582912
CNT, OP, HP, YP, EPOCH, TS, QP2, WS_USED = 0x40000, 0x50000, 0x90000, 0xA0000, 0xE8000, 0xF0000, 0x100000, 0x200000
L_RED = 0
L_A, L_B, L_C, L_D, L_E, L_F, L_G = 0, 3072, 4096, 14336, 14592, 15104, 3072
L_XN = 24576
L_H = 29696
L_SM = 34816
L_OV = 35840
LDS_BYTES = 38912
S_WAVE = 3
SRD_K, SRD_V, SRD_WS, SRD_A, SRD_B = 8, 12, 16, 20, 24
S_HEAD, S_MEM, S_SCALE, S_LOG2E = 28, 29, 30, 31
S_T0, S_T1, S_T2, S_T3 = 32, 33, 34, 35
P_X, P_K, P_V, P_WQ, P_WO, P_BX, P_WR, P_WG = 36, 38, 40, 42, 44, 46, 48, 50
P_WU, P_WD, P_OUT, P_DBG, P_WS = 52, 54, 56, 58, 60
S_OFF, S_HB, S_CNT, S_NX, S_SPIN, S_M = 62, 63, 64, 65, 66, 67
S_G = 68
S_ROT, S_TAG, S_K, S_SU = 76, 77, 78, 79
S_ROW = 86
SRD_C, SRD_D, SRD_E = 88, 92, 96
V_LANE, V_OFFB, V_ZERO = 1, 2, 3
V_Q, V_ACC, V_M, V_L, V_T = 4, 16, 40, 41, 42
V_ATOM, V_SIG, V_E, V_DBG = 56, 57, 58, 59
V_CPF = 52
V_RING = 64
PF = 116
WGT = 192
V_XW = 176
WS = f's[{SRD_WS}:{SRD_WS+3}]'
OPT = dict(P=1, NS=118, hrot=37, cpf=1, cpf2=1, stamp=0, stampw=0, wmode=1, qov=1, npre=4)

def srd(a, reg, ptr, size):
    a(f's_mov_b32 s{reg}, s{ptr}', f's_and_b32 s{reg+1}, s{ptr+1}, 0xffff', f's_mov_b32 s{reg+2}, {size}', f's_mov_b32 s{reg+3}, 0x20000')
def R(a_): return f's[{a_}:{a_+3}]'
def stamp(a, slot):
    if not OPT['stamp']: return
    sk = a.label('ts')
    a(f"s_cmp_lg_u32 s{S_WAVE}, {OPT['stampw']}", f's_cbranch_scc1 {sk}')
    a('s_memrealtime s[80:81]', 's_waitcnt lgkmcnt(0)')
    a(f's_lshl_b32 s82, s2, 7', f's_add_u32 s82, s82, {TS + slot*8}')
    a('v_mov_b32 v62, s80', 'v_mov_b32 v63, s81', 's_mov_b64 s[84:85], exec', 's_mov_b64 exec, 1')
    a(f'buffer_store_dwordx2 v[62:63], v{V_ZERO}, {WS}, s82 offen')
    a('s_mov_b64 exec, s[84:85]', 's_nop 1')
    a(f'{sk}:')
def bf16r(a, dst, src):
    a(f'v_cvt_pk_bf16_f32 v{dst}, v{src}, v{src}', f'v_and_b32 v{dst}, 0xffff0000, v{dst}')
def dpp(a, ins, v, d): a(f'{ins}_dpp v{v}, v{v}, v{v} {d} row_mask:0xf bank_mask:0xf')
def wave_red(a, vs, ts, op='v_add_f32'):
    pad = max(0, 2 - (len(vs) - 1))
    for d in ('quad_perm:[1,0,3,2]', 'quad_perm:[2,3,0,1]', 'row_half_mirror', 'row_mirror'):
        a('s_nop 1')
        for v in vs: dpp(a, op, v, d)
    for p in ('v_permlane16_swap_b32', 'v_permlane32_swap_b32'):
        for v, t in zip(vs, ts): a(f'v_mov_b32 v{t}, v{v}')
        a('s_nop 1')
        for v, t in zip(vs, ts): a(f'{p} v{t}, v{v}')
        a('s_nop 0')
        for v, t in zip(vs, ts): a(f'{op} v{v}, v{v}, v{t}')
def groups_red(a, v, t, op):
    a('s_nop 1'); dpp(a, op, v, 'row_ror:8')
    for p in ('v_permlane16_swap_b32', 'v_permlane32_swap_b32'):
        a(f'v_mov_b32 v{t}, v{v}', 's_nop 1', f'{p} v{t}, v{v}', 's_nop 0', f'{op} v{v}, v{v}, v{t}')
def swap_reduce(a, base, n, p):
    a('s_nop 1')
    for i in range(n): a(f'{p} v{base+i}, v{base+n+i}')
    a('s_nop 0')
    for i in range(n): a(f'v_add_f32 v{base+i}, v{base+i}, v{base+n+i}')
def unpack5(a, src, dst):
    for j in range(5): a(f'v_lshlrev_b32 v{dst+2*j}, 16, v{src+j}', f'v_and_b32 v{dst+2*j+1}, 0xffff0000, v{src+j}')
def layernorm(a, x, t):
    s1, s2, u, w2, sd, mean = t, t+1, t+2, t+3, t+4, t+5
    a('s_nop 0', f'v_readfirstlane_b32 s{S_T0}, v{x}', 's_nop 1')
    a(f'v_subrev_f32 v{s1}, s{S_T0}, v{x}', f'v_mul_f32 v{s2}, v{s1}, v{s1}')
    for i in range(1, 10):
        a(f'v_subrev_f32 v{u}, s{S_T0}, v{x+i}', f'v_add_f32 v{s1}, v{s1}, v{u}', f'v_fmac_f32 v{s2}, v{u}, v{u}')
    wave_red(a, [s1, s2], [u, w2])
    a(f'v_mul_f32 v{s1}, 0x{INV640:08x}, v{s1}', f'v_mul_f32 v{s2}, 0x{INV640:08x}, v{s2}')
    a(f'v_fma_f32 v{s2}, -v{s1}, v{s1}, v{s2}', f'v_max_f32 v{s2}, 0, v{s2}')
    a(f'v_add_f32 v{mean}, s{S_T0}, v{s1}')
    bf16r(a, s2, s2)
    a(f'v_add_f32 v{s2}, 0x{EPS:08x}, v{s2}')
    bf16r(a, s2, s2)
    a(f'v_sqrt_f32 v{sd}, v{s2}')
    bf16r(a, mean, mean)
    bf16r(a, sd, sd)
    a(f'v_rcp_f32 v{sd}, v{sd}')
    for i in range(0, 10, 2):
        a(f'v_sub_f32 v{x+i}, v{x+i}, v{mean}', f'v_sub_f32 v{x+i+1}, v{x+i+1}, v{mean}', f'v_cvt_pk_bf16_f32 v{u}, v{x+i}, v{x+i+1}',
          f'v_lshlrev_b32 v{x+i}, 16, v{u}', f'v_and_b32 v{x+i+1}, 0xffff0000, v{u}', f'v_mul_f32 v{x+i}, v{x+i}, v{sd}', f'v_mul_f32 v{x+i+1}, v{x+i+1}, v{sd}')
def pv_unit(a, vreg, plo, phi):
    for j in range(3):
        for i in range(4):
            a(f'v_dot2_f32_bf16 v{V_ACC+8*j+2*i}, v{vreg+4*j+i}, v{plo}, v{V_ACC+8*j+2*i}')
            a(f'v_dot2_f32_bf16 v{V_ACC+8*j+2*i+1}, v{vreg+4*j+i}, v{phi}, v{V_ACC+8*j+2*i+1}')
def acc_reduce_write(a, lbase, t):
    a('s_nop 2')
    for i in range(24): dpp(a, 'v_add_f32', V_ACC+i, 'row_ror:8')
    swap_reduce(a, V_ACC, 12, 'v_permlane16_swap_b32')
    a(f'v_and_b32 v{t}, 7, v{V_LANE}', f'v_mul_u32_u24 v{t}, 96, v{t}', f'v_bfe_u32 v{t+1}, v{V_LANE}, 4, 1', f'v_mul_u32_u24 v{t+1}, 48, v{t+1}', f'v_add_u32 v{t}, v{t}, v{t+1}',
      f'v_lshrrev_b32 v{t+1}, 5, v{V_LANE}', f'v_mul_u32_u24 v{t+1}, 24, v{t+1}', f's_mul_i32 s{S_T0}, s{S_WAVE}, 768', f'v_add3_u32 v{t}, v{t}, v{t+1}, s{S_T0}')
    swap_reduce(a, V_ACC, 6, 'v_permlane32_swap_b32')
    for i in range(3): a(f'ds_write_b64 v{t}, v[{V_ACC+2*i}:{V_ACC+2*i+1}] offset:{lbase+8*i}')
def m_index(a):
    a(f's_sub_u32 s{S_T0}, s2, 160', f's_and_b32 s{S_T1}, s{S_T0}, 7', f's_mul_i32 s{S_T1}, s{S_T1}, 12', f's_lshr_b32 s{S_T0}, s{S_T0}, 3', f's_add_u32 s{S_M}, s{S_T0}, s{S_T1}')
def role_branch(a, wbody, mbody):
    lm = a.label('rm'); le = a.label('re')
    a('s_cmp_ge_u32 s2, 160', f's_cbranch_scc1 {lm}'); wbody(); a(f's_branch {le}', f'{lm}:'); mbody(); a(f'{le}:')
def spin_begin(a, lbl): a(f's_mov_b32 s{S_SPIN}, 0', f'{lbl}:')
def spin_end(a, lbl, regs, t):
    ok = a.label('ok')
    a(f'v_max3_u32 v{t}, v{regs[0]}, v{regs[1]}, v{regs[2]}'); rest = regs[3:]
    while len(rest) >= 2:
        a(f'v_max3_u32 v{t}, v{t}, v{rest[0]}, v{rest[1]}'); rest = rest[2:]
    if rest: a(f'v_max_u32 v{t}, v{t}, v{rest[0]}')
    a(f'v_cmp_eq_u32 vcc, -1, v{t}', f's_cbranch_vccz {ok}')
    a(f's_add_u32 s{S_SPIN}, s{S_SPIN}, 1', f's_cmp_lt_u32 s{S_SPIN}, 200000', f's_cbranch_scc1 {lbl}')
    a(f'{ok}:')
def code_prefetch(a, start, end, n, vtmp):
    pc = a.label('pc')
    a(f's_getpc_b64 s[{SRD_C}:{SRD_C+1}]', f'{pc}:')
    if start == 'L_code_start': a(f's_sub_u32 s{SRD_C}, s{SRD_C}, {pc}-{start}', f's_subb_u32 s{SRD_C+1}, s{SRD_C+1}, 0')
    else: a(f's_add_u32 s{SRD_C}, s{SRD_C}, {start}-{pc}', f's_addc_u32 s{SRD_C+1}, s{SRD_C+1}, 0')
    a(f's_and_b32 s{SRD_C+1}, s{SRD_C+1}, 0xffff', f's_mov_b32 s{SRD_C+2}, {end}-{start}', f's_mov_b32 s{SRD_C+3}, 0x20000')
    a(f's_lshr_b32 s{S_T0}, s2, 3', f's_mul_i32 s{S_T0}, s{S_T0}, ((({end}-{start})+31)/32+15)&0xfffffff0')
    a(f'v_lshlrev_b32 v{vtmp}, 4, v{V_LANE}')
    for i in range(n): a(f'buffer_load_dwordx4 v[{V_CPF}:{V_CPF+3}], v{vtmp}, {R(SRD_C)}, s{S_T0} offen offset:{1024*i}')

def prologue(a, endlabel):
    a('s_cmp_ge_u32 s2, 256', f's_cbranch_scc1 {endlabel}')
    a('s_load_dwordx16 s[36:51], s[0:1], 0', 's_load_dwordx8 s[52:59], s[0:1], 64', 's_load_dwordx2 s[60:61], s[0:1], 96')
    a(f'v_lshrrev_b32 v{V_LANE}, 6, v0', f'v_mov_b32 v{V_ZERO}, 0', f'v_readfirstlane_b32 s{S_WAVE}, v{V_LANE}', f'v_and_b32 v{V_LANE}, 63, v0')
    a(f'v_lshrrev_b32 v{V_T}, 3, v{V_LANE}', f'v_mul_u32_u24 v{V_T}, 384, v{V_T}', f'v_and_b32 v{V_T+1}, 7, v{V_LANE}', f'v_lshl_add_u32 v{V_OFFB}, v{V_T+1}, 4, v{V_T}')
    a(f's_mov_b32 s{S_SCALE}, 0x{SCALE:08x}', f's_mov_b32 s{S_LOG2E}, 0x{LOG2E:08x}')
    a(f's_lshr_b32 s{S_T0}, s2, 3', f's_and_b32 s{S_MEM}, s2, 7', f's_lshl_b32 s{S_T1}, s{S_MEM}, 2', f's_add_u32 s{S_T0}, s{S_T0}, s{S_T1}', f's_and_b32 s{S_HEAD}, s{S_T0}, 31')
    a(f's_lshl_b32 s{S_ROW}, s{S_HEAD}, 3', f's_add_u32 s{S_ROW}, s{S_ROW}, s{S_MEM}')
    a('s_waitcnt lgkmcnt(0)')
    srd(a, SRD_WS, P_WS, WS_USED)

V_PA, V_PB, S_PA, S_PB, S_PRE = 48, 49, 87, 100, 101
def w_setup(a):
    srd(a, SRD_C, P_WO, 7864320)
    a(f's_and_b32 s{S_T0}, s2, 7', f's_mul_i32 s{S_T0}, s{S_T0}, 768', f's_mul_i32 s{S_T1}, s{S_WAVE}, 192', f's_add_u32 s{S_T0}, s{S_T0}, s{S_T1}',
      f's_mul_i32 s{S_T0}, s{S_T0}, 1280', f's_lshr_b32 s{S_T1}, s2, 3', f's_lshl_b32 s{S_T1}, s{S_T1}, 6', f's_add_u32 s{S_PA}, s{S_T0}, s{S_T1}')
    a(f'v_lshrrev_b32 v{V_PA}, 2, v{V_LANE}', f'v_mul_u32_u24 v{V_PA}, 1280, v{V_PA}', f'v_and_b32 v{V_PB}, 3, v{V_LANE}', f'v_lshl_add_u32 v{V_PA}, v{V_PB}, 4, v{V_PA}')
def w_loads():
    return [f'buffer_load_dwordx4 v[{WGT+4*p}:{WGT+4*p+3}], v{V_PA}, {R(SRD_C)}, s{S_PA} offen nt\ns_add_u32 s{S_PA}, s{S_PA}, {16*1280}' for p in range(12)]
def m_setup(a):
    a(f's_cmp_ge_u32 s{S_WAVE}, 2', f's_cselect_b32 s{S_T0}, s{P_WU}, s{P_WG}', f's_cselect_b32 s{S_T1}, s{P_WU+1}, s{P_WG+1}')
    srd(a, SRD_C, S_T0, 1966080); srd(a, SRD_D, P_WD, 1966080)
    a(f'v_and_b32 v{V_PB}, 127, v0', f'v_lshrrev_b32 v{V_PA}, 1, v{V_PB}', f'v_mul_u32_u24 v{V_PA}, 3072, v{V_PA}', f'v_and_b32 v{V_PB}, 1, v{V_PB}', f'v_lshl_add_u32 v{V_PA}, v{V_PB}, 4, v{V_PA}')
    a(f's_lshl_b32 s{S_PA}, s{S_M}, 5')
    a(f'v_mul_u32_u24 v{V_PB}, 205, v0', f'v_lshrrev_b32 v{V_PB}, 14, v{V_PB}', f'v_mul_u32_u24 v50, 80, v{V_PB}', f'v_sub_u32 v50, v0, v50',
      f'v_mul_u32_u24 v{V_PB}, 1280, v{V_PB}', f'v_lshl_add_u32 v{V_PB}, v50, 4, v{V_PB}', f's_mul_i32 s{S_PB}, s{S_M}, {16*1280}')
def m_loads():
    l = [f'buffer_load_dwordx4 v[{WGT+4*p}:{WGT+4*p+3}], v{V_PA}, {R(SRD_C)}, s{S_PA} offen nt\ns_add_u32 s{S_PA}, s{S_PA}, {64*3072}' for p in range(10)]
    l += [f'buffer_load_dwordx4 v[{WGT+40+4*i}:{WGT+40+4*i+3}], v{V_PB}, {R(SRD_D)}, s{S_PB} offen nt\ns_add_u32 s{S_PB}, s{S_PB}, 3840' for i in range(6)]
    return l
def w_weights(a):
    w_setup(a)
    for l in w_loads(): a(l)
def m_weights(a):
    m_setup(a)
    for l in m_loads(): a(l)
NW_W, NW_M = 12, 16

def setoff(a):
    a(f's_add_u32 s{S_OFF}, s{S_NX}, s{S_ROT}', f's_and_b32 s{S_OFF}, s{S_OFF}, 4095', f's_mul_i32 s{S_OFF}, s{S_OFF}, 3072', f's_add_u32 s{S_OFF}, s{S_OFF}, s{S_HB}')
def issue(a, r):
    for j in range(3): a(f'buffer_load_dwordx4 v[{r+4*j}:{r+4*j+3}], v{V_OFFB}, {R(SRD_K)}, s{S_OFF} offen offset:{128*j} nt')
    for j in range(3): a(f'buffer_load_dwordx4 v[{r+12+4*j}:{r+12+4*j+3}], v{V_OFFB}, {R(SRD_V)}, s{S_OFF} offen offset:{128*j} nt')
def atomic(a):
    a(f'v_mov_b32 v{V_ATOM}, 1', 's_mov_b64 exec, 1', f'buffer_atomic_add v{V_ATOM}, v{V_ZERO}, {WS}, s{S_CNT} offen sc0', 's_mov_b64 exec, -1')
def static_next(a):
    a(f's_mov_b32 s{S_NX}, s{S_SU}', f's_add_u32 s{S_SU}, s{S_SU}, 32', f's_add_u32 s{S_K}, s{S_K}, 1')
def compute_unit(a, r):
    K, V = r, r+12
    t0, t1, t2, t3, t4, t5 = V_T, V_T+1, V_T+2, V_T+3, V_T+4, V_T+5
    for i in range(4):
        for j, t in enumerate((t0, t1, t2)):
            c = '0' if i == 0 else f'v{t}'
            a(f'v_dot2_f32_bf16 v{t}, v{K+4*j+i}, v{V_Q+4*j+i}, {c}')
    a('s_nop 2', f'v_add_f32 v{t0}, v{t0}, v{t1}', f'v_add_f32 v{t0}, v{t0}, v{t2}')
    for d in ('quad_perm:[1,0,3,2]', 'quad_perm:[2,3,0,1]', 'row_half_mirror'):
        a('s_nop 1'); dpp(a, 'v_add_f32', t0, d)
    bf16r(a, t0, t0)
    a(f'v_mul_f32 v{t0}, s{S_SCALE}, v{t0}')
    bf16r(a, t0, t0)
    a(f'v_max_f32 v{t1}, v{V_M}, v{t0}', f'v_sub_f32 v{t2}, v{V_M}, v{t1}', f'v_sub_f32 v{t3}, v{t0}, v{t1}',
      f'v_mul_f32 v{t2}, s{S_LOG2E}, v{t2}', f'v_mul_f32 v{t3}, s{S_LOG2E}, v{t3}', f'v_exp_f32 v{t2}, v{t2}', f'v_exp_f32 v{t3}, v{t3}', f'v_mov_b32 v{V_M}, v{t1}',
      f'v_fma_f32 v{V_L}, v{V_L}, v{t2}, v{t3}', f'v_cvt_pk_bf16_f32 v{t4}, v{t3}, 0', f'v_cvt_pk_bf16_f32 v{t5}, 0, v{t3}')
    for i in range(12):
        a(f'v_pk_mul_f32 v[{V_ACC+2*i}:{V_ACC+2*i+1}], v[{V_ACC+2*i}:{V_ACC+2*i+1}], v[{t2}:{t2+1}] op_sel_hi:[1,0]')
    pv_unit(a, V, t4, t5)

def startup(a):
    P = OPT['P']; NC = 2 if OPT['cpf'] else 0
    X, XF, W = 64, 70, 80
    srd(a, SRD_A, P_X, 1280); srd(a, SRD_B, P_WQ, 7864320)
    a(f'v_lshlrev_b32 v{V_T}, 2, v{V_LANE}', f's_mov_b32 s{S_T0}, {EPOCH}')
    a(f'buffer_load_dword v{V_E}, v{V_ZERO}, {WS}, s{S_T0} offen sc1')
    for j in range(5): a(f'buffer_load_dword v{X+j}, v{V_T}, {R(SRD_A)}, 0 offen offset:{256*j}')
    a(f'v_lshrrev_b32 v{V_T+1}, 3, v{V_LANE}', f'v_mul_u32_u24 v{V_T+1}, 12288, v{V_T+1}', f'v_and_b32 v{V_T+2}, 7, v{V_LANE}', f'v_lshl_add_u32 v{V_T+1}, v{V_T+2}, 4, v{V_T+1}')
    a(f's_mul_i32 s70, s{S_MEM}, 80', f's_lshl_b32 s{S_T1}, s{S_WAVE}, 3', f's_add_u32 s70, s70, s{S_T1}',
      f's_mul_i32 s{S_T1}, s70, 12288', f's_mul_i32 s{S_T2}, s{S_HEAD}, 384', f's_add_u32 s{S_T1}, s{S_T1}, s{S_T2}')
    third = a.label('q3')
    for u in range(3):
        if u == 2: a(f's_cmp_ge_u32 s{S_WAVE}, 2', f's_cbranch_scc1 {third}')
        for j in range(3): a(f'buffer_load_dwordx4 v[{W+12*u+4*j}:{W+12*u+4*j+3}], v{V_T+1}, {R(SRD_B)}, s{S_T1} offen offset:{128*j} nt')
        a(f's_add_u32 s{S_T1}, s{S_T1}, {32*12288}')
    a(f'{third}:')
    srd(a, SRD_K, P_K, KV_BYTES); srd(a, SRD_V, P_V, KV_BYTES)
    for i in range(4): a(f'v_mov_b32 v{V_T+2+i}, -1')
    a(f's_lshl_b32 s{S_T0}, s{S_ROW}, 10', f's_add_u32 s{S_T0}, s{S_T0}, {OP}', f'v_lshlrev_b32 v{V_T}, 2, v0')
    a(f'buffer_store_dword v{V_T+2}, v{V_T}, {WS}, s{S_T0} offen sc1')
    def wclr():
        sk = a.label('wc')
        a(f's_cmp_lg_u32 s{S_WAVE}, 0', f's_cbranch_scc1 {sk}')
        a(f's_and_b32 s{S_T0}, s2, 7', f's_mul_i32 s{S_T0}, s{S_T0}, 2560', f's_lshr_b32 s{S_T1}, s2, 3', f's_lshl_b32 s{S_T1}, s{S_T1}, 7',
          f's_add_u32 s{S_T0}, s{S_T0}, s{S_T1}', f's_add_u32 s{S_T0}, s{S_T0}, {HP}')
        a('v_cmp_gt_u32 vcc, 32, v0', 's_and_saveexec_b64 s[34:35], vcc', f'buffer_store_dword v{V_T+2}, v{V_T}, {WS}, s{S_T0} offen sc1', 's_mov_b64 exec, s[34:35]', f'{sk}:')
    def mclr():
        m_index(a)
        sk = a.label('mc')
        a(f's_cmp_ge_u32 s{S_WAVE}, 3', f's_cbranch_scc1 {sk}')
        a(f'v_lshrrev_b32 v{V_T}, 2, v0', f'v_mul_u32_u24 v{V_T}, 6144, v{V_T}', f'v_and_b32 v{V_T+1}, 3, v0', f'v_lshl_add_u32 v{V_T}, v{V_T+1}, 4, v{V_T}',
          f's_lshl_b32 s{S_T0}, s{S_M}, 6', f's_add_u32 s{S_T0}, s{S_T0}, {YP}')
        a('v_cmp_gt_u32 vcc, 160, v0', 's_and_saveexec_b64 s[34:35], vcc', f'buffer_store_dwordx4 v[{V_T+2}:{V_T+5}], v{V_T}, {WS}, s{S_T0} offen sc1', 's_mov_b64 exec, s[34:35]', f'{sk}:')
    role_branch(a, wclr, mclr)
    sk = a.label('cz')
    a(f's_lshl_b32 s{S_CNT}, s{S_HEAD}, 8', f's_add_u32 s{S_CNT}, s{S_CNT}, {CNT}')
    a(f's_or_b32 s{S_T0}, s{S_MEM}, s{S_WAVE}', f's_cmp_lg_u32 s{S_T0}, 0', f's_cbranch_scc1 {sk}', 's_mov_b64 exec, 1')
    a(f'buffer_store_dword v{V_ZERO}, v{V_ZERO}, {WS}, s{S_CNT} offen sc1', 's_mov_b64 exec, -1', f'{sk}:')
    a(f's_mul_i32 s{S_HB}, s{S_HEAD}, {HEAD_BYTES}', f"s_mul_i32 s{S_ROT}, s{S_HEAD}, {OPT['hrot']}")
    a(f's_lshl_b32 s{S_SU}, s{S_MEM}, 2', f's_add_u32 s{S_SU}, s{S_SU}, s{S_WAVE}', f's_mov_b32 s{S_K}, 0')
    nopf = a.label('nopf'); pfd = a.label('pfd')
    a(f's_cmp_ge_u32 s{S_WAVE}, 3', f's_cbranch_scc1 {nopf}')
    if NC: code_prefetch(a, 'L_code_start', 'L_code_end', NC, V_T)
    for k in range(P):
        static_next(a); setoff(a); issue(a, PF + 24*k)
    a(f's_waitcnt vmcnt({7+NC+6*P})', f's_branch {pfd}', f'{nopf}:', 's_waitcnt vmcnt(7)', f'{pfd}:')
    a(f'v_readfirstlane_b32 s{S_TAG}, v{V_E}')
    unpack5(a, X, XF)
    a(f's_add_u32 s{S_TAG}, s{S_TAG}, 1')
    for i in range(24): a(f'v_mov_b32 v{V_ACC+i}, 0')
    layernorm(a, XF, V_T+4)
    for j in range(5): a(f'v_cvt_pk_bf16_f32 v{X+j}, v{XF+2*j}, v{XF+2*j+1}')
    a(f's_mul_i32 s{S_T2}, s{S_WAVE}, 1280', f'v_lshlrev_b32 v{V_T}, 2, v{V_LANE}', f'v_add_u32 v{V_T}, s{S_T2}, v{V_T}')
    for j in range(5): a(f'ds_write_b32 v{V_T}, v{X+j} offset:{L_XN+256*j}')
    a(f's_lshl_b32 s{S_T0}, s70, 1', f's_add_u32 s{S_T0}, s{S_T0}, s{S_T2}', f'v_lshrrev_b32 v{V_T}, 3, v{V_LANE}', f'v_lshlrev_b32 v{V_T}, 1, v{V_T}', f'v_add_u32 v{V_T}, s{S_T0}, v{V_T}')
    a('s_waitcnt lgkmcnt(0)')
    for u in range(3): a(f'ds_read_u16 v{X+u}, v{V_T} offset:{L_XN+64*u}')
    w3 = a.label('w3'); w3d = a.label('w3d')
    a(f's_cmp_ge_u32 s{S_WAVE}, 3', f's_cbranch_scc1 {w3}', f's_waitcnt lgkmcnt(0) vmcnt({NC+6*P})', f's_branch {w3d}',
      f'{w3}:', 's_waitcnt lgkmcnt(0) vmcnt(0)', f'{w3d}:')
    stamp(a, 12)
    skip = a.label('q3b')
    for u in range(3):
        if u == 2: a(f's_cmp_ge_u32 s{S_WAVE}, 2', f's_cbranch_scc1 {skip}')
        a(f'v_lshlrev_b32 v{X+4}, 16, v{X+u}')
        pv_unit(a, W+12*u, X+u, X+4)
    a(f'{skip}:')
    acc_reduce_write(a, L_A, V_T)
    a('s_waitcnt lgkmcnt(0)', 's_barrier')
    stamp(a, 1)
    gat = a.label('gat'); qrdy = a.label('qrdy')
    a(f's_cmp_ge_u32 s{S_WAVE}, 3', f's_cbranch_scc1 {gat}')
    a(f'v_lshlrev_b32 v{V_T}, 2, v0')
    for w in range(4): a(f'ds_read_b32 v{96+w}, v{V_T} offset:{L_A+768*w}')
    a(f's_lshl_b32 s{S_T0}, s{S_ROW}, 11', f's_add_u32 s{S_T0}, s{S_T0}, {QP2}', f'v_lshlrev_b32 v{V_T}, 3, v0', 's_waitcnt lgkmcnt(0)')
    a('v_add_f32 v96, v96, v97', 'v_add_f32 v98, v98, v99', f'v_mov_b32 v97, s{S_TAG}', 'v_add_f32 v96, v96, v98')
    a(f'buffer_store_dwordx2 v[96:97], v{V_T}, {WS}, s{S_T0} offen sc1')
    if OPT['wmode'] == 1: a('s_waitcnt vmcnt(0)')
    if OPT['wmode'] <= 1: role_branch(a, lambda: w_weights(a), lambda: m_weights(a))
    a(f's_branch {qrdy}')
    a(f'{gat}:')
    a(f's_lshl_b32 s{S_T0}, s{S_HEAD}, 14', f's_add_u32 s{S_T0}, s{S_T0}, {QP2}')
    a(f's_add_u32 s{S_T1}, s{S_T0}, 4096', f's_add_u32 s{S_T2}, s{S_T0}, 8192', f's_add_u32 s{S_T3}, s{S_T0}, 12288', f'v_lshlrev_b32 v{V_T}, 3, v{V_LANE}')
    def qissue(base):
        for s in range(8):
            for j in range(3):
                r = base + 2*(3*s+j)
                a(f'buffer_load_dwordx2 v[{r}:{r+1}], v{V_T}, {WS}, s{S_T0 + s//2} offen offset:{2048*(s&1)+512*j} sc1')
    def qcheck(base):
        tags = [base + 2*i + 1 for i in range(24)]
        a(f'v_min3_u32 v{V_T+2}, v{tags[0]}, v{tags[1]}, v{tags[2]}', f'v_max3_u32 v{V_T+3}, v{tags[0]}, v{tags[1]}, v{tags[2]}')
        for i in range(3, 23, 2):
            a(f'v_min3_u32 v{V_T+2}, v{V_T+2}, v{tags[i]}, v{tags[i+1]}', f'v_max3_u32 v{V_T+3}, v{V_T+3}, v{tags[i]}, v{tags[i+1]}')
        a(f'v_min_u32 v{V_T+2}, v{V_T+2}, v{tags[23]}', f'v_max_u32 v{V_T+3}, v{V_T+3}, v{tags[23]}')
        a(f'v_xor_b32 v{V_T+2}, s{S_TAG}, v{V_T+2}', f'v_xor_b32 v{V_T+3}, s{S_TAG}, v{V_T+3}', f'v_or_b32 v{V_T+2}, v{V_T+2}, v{V_T+3}')
        a(f'v_cmp_ne_u32 vcc, 0, v{V_T+2}')
    def qpost(base):
        for j in range(3):
            for s in range(1, 8): a(f'v_add_f32 v{base+2*j}, v{base+2*j}, v{base+2*(3*s+j)}')
            a(f'v_cvt_pk_bf16_f32 v{base+2*j}, v{base+2*j}, v{base+2*j}')
            a(f'ds_write_b16 v{V_T+6+j}, v{base+2*j} offset:{L_SM+64}')
    for j in range(3):
        a(f'v_add_u32 v{V_T+1}, {64*j}, v{V_LANE}', f'v_mul_u32_u24 v{V_T+2}, 2731, v{V_T+1}', f'v_lshrrev_b32 v{V_T+2}, 16, v{V_T+2}',
          f'v_mul_u32_u24 v{V_T+3}, 24, v{V_T+2}', f'v_sub_u32 v{V_T+3}, v{V_T+1}, v{V_T+3}',
          f'v_lshrrev_b32 v{V_T+4}, 3, v{V_T+3}', f'v_and_b32 v{V_T+3}, 7, v{V_T+3}', f'v_lshlrev_b32 v{V_T+4}, 6, v{V_T+4}',
          f'v_lshl_add_u32 v{V_T+4}, v{V_T+2}, 3, v{V_T+4}', f'v_add_lshl_u32 v{V_T+6+j}, v{V_T+4}, v{V_T+3}, 1')
    lbl = a.label('qspin'); ok = a.label('qok'); qjoin = a.label('qjoin')
    if OPT['qov']:
        okb = a.label('qokb')
        a(f's_mov_b32 s{S_SPIN}, 0')
        qissue(64)
        a(f'{lbl}:')
        qissue(116)
        a('s_waitcnt vmcnt(24)'); qcheck(64); a(f's_cbranch_vccz {ok}')
        qissue(64)
        a('s_waitcnt vmcnt(24)'); qcheck(116); a(f's_cbranch_vccz {okb}')
        a(f's_add_u32 s{S_SPIN}, s{S_SPIN}, 1', f's_cmp_lt_u32 s{S_SPIN}, 100000', f's_cbranch_scc1 {lbl}', f's_branch {ok}')
        a(f'{okb}:')
        qpost(116)
        a(f's_branch {qjoin}', f'{ok}:')
    else:
        spin_begin(a, lbl)
        qissue(64)
        a('s_waitcnt vmcnt(0)'); qcheck(64)
        a(f's_cbranch_vccz {ok}', f's_add_u32 s{S_SPIN}, s{S_SPIN}, 1', f's_cmp_lt_u32 s{S_SPIN}, 200000', f's_cbranch_scc1 {lbl}', f'{ok}:')
    qpost(64)
    a(f'{qjoin}:')
    stamp(a, 13)
    srd(a, SRD_A, P_DBG, 256)
    a(f'v_mov_b32 v{V_T}, 1', 's_mov_b64 exec, 1', f'buffer_atomic_add v{V_T}, v{V_ZERO}, {R(SRD_A)}, 0 offen', 's_mov_b64 exec, -1')
    if OPT['wmode'] <= 1: role_branch(a, lambda: w_weights(a), lambda: m_weights(a))
    a(f'{qrdy}:')
    a('s_waitcnt lgkmcnt(0)', 's_barrier')
    a(f'v_and_b32 v{V_T}, 7, v{V_LANE}', f'v_lshlrev_b32 v{V_T}, 4, v{V_T}')
    for j in range(3): a(f'ds_read_b128 v[{V_Q+4*j}:{V_Q+4*j+3}], v{V_T} offset:{L_SM+64+128*j}')

def late_loads(a):
    srd(a, SRD_E, P_DBG, 256)
    a(f'buffer_load_dword v{V_DBG}, v{V_ZERO}, {R(SRD_E)}, 0 offen sc1')
    sk = a.label('lx')
    a('s_cmp_lt_u32 s2, 160', f's_cbranch_scc1 {sk}')
    srd(a, SRD_D, P_X, 1280); srd(a, SRD_E, P_WR, 1280)
    a(f'v_lshlrev_b32 v50, 2, v{V_LANE}')
    for j in range(5): a(f'buffer_load_dword v{V_XW+j}, v50, {R(SRD_D)}, 0 offen offset:{256*j}')
    for j in range(5): a(f'buffer_load_dword v{V_XW+5+j}, v50, {R(SRD_E)}, 0 offen offset:{256*j}')
    a(f'{sk}:')
    if OPT['cpf2']: code_prefetch(a, 'L_tail_start', 'L_code_end', 1, 50)

def stream(a):
    P, NS = OPT['P'], OPT['NS']
    static_next(a); setoff(a); issue(a, V_RING)
    NWX = 0
    if OPT['wmode'] == 2:
        role_branch(a, lambda: w_weights(a), lambda: m_weights(a)); NWX = NW_W
    for i in range(24): a(f'v_mov_b32 v{V_ACC+i}, 0')
    a(f'v_mov_b32 v{V_M}, 0x{NEGBIG:08x}', f'v_mov_b32 v{V_L}, 0', 's_waitcnt lgkmcnt(0)')
    if P:
        sk = a.label('pfs')
        a(f's_cmp_ge_u32 s{S_WAVE}, 3', f's_cbranch_scc1 {sk}', f's_waitcnt vmcnt({6+NWX})')
        for k in range(P): compute_unit(a, PF + 24*k)
        a(f'{sk}:')
    stamp(a, 2)
    loop = a.label('loop'); done = a.label('sdone'); late = a.label('late')
    drains = []; backs = []; pres = []
    NPRE = OPT['npre'] if OPT['wmode'] == 3 else 0
    if NPRE:
        role_branch(a, lambda: w_setup(a), lambda: m_setup(a))
        a(f's_mov_b32 s{S_PRE}, 0')
    a(f'{loop}:')
    for t in range(2):
        a('s_waitcnt vmcnt(0)')
        dyn = a.label('dyn'); cont = a.label('cont'); dl = a.label('drain'); drains.append((dl, t)); sw = a.label('sw'); backs.append((sw, cont))
        a(f's_cmp_ge_u32 s{S_K}, {NS}', f's_cbranch_scc1 {dyn}')
        static_next(a)
        a(f's_cmp_lt_u32 s{S_K}, {NS}', f's_cbranch_scc0 {sw}')
        a(f'{cont}:')
        setoff(a)
        issue(a, V_RING + 24*((t+1) % 2))
        if NPRE:
            pl = a.label('pre'); pb = a.label('preb'); pres.append((pl, pb, t))
            a(f's_cmp_lt_u32 s{S_PRE}, {NPRE}', f's_cbranch_scc1 {pl}', f'{pb}:')
        compute_unit(a, V_RING + 24*t)
        if t == 0:
            nxt = a.label('n1'); a(f's_branch {nxt}')
        else:
            a(f's_branch {loop}')
        a(f'{dyn}:')
        a(f'v_readfirstlane_b32 s{S_NX}, v{V_ATOM}', 's_nop 0', f's_add_u32 s{S_NX}, s{S_NX}, {32*NS}', f's_cmp_ge_u32 s{S_NX}, 4096', f's_cbranch_scc1 {dl}')
        atomic(a)
        a(f's_branch {cont}')
        if t == 0: a(f'{nxt}:')
    for pl, pb, t in pres:
        a(f'{pl}:')
        ks = [k for k in range(NPRE) if k % 2 == t]
        ents = [(k, a.label('pe')) for k in ks]
        for k, e in ents[:-1]: a(f's_cmp_eq_u32 s{S_PRE}, {k}', f's_cbranch_scc1 {e}')
        a(f's_branch {ents[-1][1]}')
        for k, e in ents:
            a(f'{e}:')
            wl, ml = w_loads(), m_loads()
            pw, pm = -(-len(wl) // NPRE), -(-len(ml) // NPRE)
            role_branch(a, lambda: [a(l) for l in wl[pw*k:pw*(k+1)]], lambda: [a(l) for l in ml[pm*k:pm*(k+1)]])
            a(f's_add_u32 s{S_PRE}, s{S_PRE}, 1', f's_branch {pb}')
    for sw, cont in backs:
        a(f'{sw}:')
        atomic(a); late_loads(a)
        a(f's_branch {cont}')
    for dl, t in drains:
        a(f'{dl}:'); compute_unit(a, V_RING + 24*t); a(f's_branch {done}')
    a(f'{done}:')

def phase_t1(a):
    t = V_T
    a('s_nop 2', f'v_mov_b32 v{t+2}, v{V_M}')
    groups_red(a, t+2, t+3, 'v_max_f32')
    a(f'v_sub_f32 v{t+4}, v{V_M}, v{t+2}', f'v_mul_f32 v{t+4}, s{S_LOG2E}, v{t+4}', f'v_exp_f32 v{t+4}, v{t+4}', 's_nop 0', f'v_mul_f32 v{V_L}, v{V_L}, v{t+4}')
    for i in range(12): a(f'v_pk_mul_f32 v[{V_ACC+2*i}:{V_ACC+2*i+1}], v[{V_ACC+2*i}:{V_ACC+2*i+1}], v[{t+4}:{t+5}] op_sel_hi:[1,0]')
    groups_red(a, V_L, t+3, 'v_add_f32')
    a(f'v_mov_b32 v{t+3}, v{V_L}', f's_lshl_b32 s{S_T1}, s{S_WAVE}, 3', f'v_mov_b32 v{t+6}, s{S_T1}', f'ds_write_b64 v{t+6}, v[{t+2}:{t+3}] offset:{L_SM}')
    acc_reduce_write(a, L_A, t+6)
    a('s_waitcnt lgkmcnt(0)', 's_barrier')
    a(f'ds_read_b128 v[100:103], v{V_ZERO} offset:{L_SM}', f'ds_read_b128 v[104:107], v{V_ZERO} offset:{L_SM+16}', f'v_lshlrev_b32 v{t}, 2, v0')
    for w in range(4): a(f'ds_read_b32 v{96+w}, v{t} offset:{L_A+768*w}')
    a(f's_lshl_b32 s{S_T0}, s{S_ROW}, 10', f's_add_u32 s{S_T0}, s{S_T0}, {OP}', 's_waitcnt lgkmcnt(4)')
    a('v_max_f32 v108, v100, v102', 'v_max3_f32 v108, v108, v104, v106')
    for w in range(4): a(f'v_sub_f32 v{110+w}, v{100+2*w}, v108', f'v_mul_f32 v{110+w}, s{S_LOG2E}, v{110+w}')
    for w in range(4): a(f'v_exp_f32 v{110+w}, v{110+w}')
    a('s_waitcnt lgkmcnt(0)', 'v_mul_f32 v96, v96, v110', 'v_mul_f32 v109, v101, v110')
    for w in range(1, 4): a(f'v_fmac_f32 v96, v{96+w}, v{110+w}', f'v_fmac_f32 v109, v{101+2*w}, v{110+w}')
    a('v_cmp_eq_u32 vcc, 192, v0', 's_nop 1', 'v_cndmask_b32 v96, v96, v108, vcc', 'v_cmp_eq_u32 vcc, 193, v0', 's_nop 1', 'v_cndmask_b32 v96, v96, v109, vcc')
    a('v_cmp_lt_u32 vcc, 193, v0', 's_nop 1', f'v_cndmask_b32 v96, v96, v{V_ZERO}, vcc')
    a('v_cmp_gt_u32 vcc, 196, v0', 's_and_saveexec_b64 s[34:35], vcc')
    sk = a.label('t1s')
    a(f's_cbranch_execz {sk}', f'buffer_store_dword v96, v{t}, {WS}, s{S_T0} offen sc1', f'{sk}:', 's_mov_b64 exec, s[34:35]')

def dbg_check(a):
    ok = a.label('dok'); lp = a.label('dlp')
    a(f'v_readfirstlane_b32 s{S_T0}, v{V_DBG}', 's_nop 0', f's_cmp_ge_u32 s{S_T0}, 256', f's_cbranch_scc1 {ok}')
    srd(a, SRD_A, P_DBG, 256)
    a(f's_mov_b32 s{S_SPIN}, 0', f'{lp}:', f'buffer_load_dword v{V_DBG}, v{V_ZERO}, {R(SRD_A)}, 0 offen sc1', 's_waitcnt vmcnt(0)')
    a(f'v_readfirstlane_b32 s{S_T0}, v{V_DBG}', 's_nop 0', f's_cmp_ge_u32 s{S_T0}, 256', f's_cbranch_scc1 {ok}')
    a(f's_add_u32 s{S_SPIN}, s{S_SPIN}, 1', f's_cmp_lt_u32 s{S_SPIN}, 200000', f's_cbranch_scc1 {lp}', f'{ok}:')
    sk = a.label('ep')
    a(f's_or_b32 s{S_T0}, s2, s{S_WAVE}', f's_cmp_lg_u32 s{S_T0}, 0', f's_cbranch_scc1 {sk}')
    a(f'v_mov_b32 v{V_T}, s{S_TAG}', f's_mov_b32 s{S_T0}, {EPOCH}', 's_mov_b64 exec, 1', f'buffer_store_dword v{V_T}, v{V_ZERO}, {WS}, s{S_T0} offen sc1', 's_mov_b64 exec, -1', f'{sk}:')

def phase_w(a):
    Pr = 64
    a(f's_and_b32 s{S_T0}, s2, 7', f's_lshl_b32 s{S_T0}, s{S_T0}, 2', f's_add_u32 s{S_T0}, s{S_T0}, s{S_WAVE}',
      f's_lshl_b32 s{S_T0}, s{S_T0}, 13', f's_add_u32 s{S_T0}, s{S_T0}, {OP}', f's_add_u32 s{S_T1}, s{S_T0}, 4096', f'v_lshlrev_b32 v{V_T}, 4, v{V_LANE}')
    a('s_bfm_b64 exec, 49, 0')
    lbl = a.label('wspin')
    spin_begin(a, lbl)
    for s in range(8): a(f'buffer_load_dwordx4 v[{Pr+4*s}:{Pr+4*s+3}], v{V_T}, {WS}, s{S_T0 if s < 4 else S_T1} offen offset:{1024*(s&3)} sc1')
    a('s_waitcnt vmcnt(0)')
    spin_end(a, lbl, list(range(Pr, Pr+32)), V_T+1)
    stamp(a, 5)
    Mx, Ls, Fs = 96, 97, 98
    a(f'v_max3_f32 v{Mx}, v{Pr}, v{Pr+4}, v{Pr+8}', f'v_max3_f32 v{Mx}, v{Mx}, v{Pr+12}, v{Pr+16}', f'v_max3_f32 v{Mx}, v{Mx}, v{Pr+20}, v{Pr+24}', f'v_max_f32 v{Mx}, v{Mx}, v{Pr+28}')
    for s in range(8): a(f'v_sub_f32 v{Fs+s}, v{Pr+4*s}, v{Mx}', f'v_mul_f32 v{Fs+s}, s{S_LOG2E}, v{Fs+s}')
    for s in range(8): a(f'v_exp_f32 v{Fs+s}, v{Fs+s}')
    a(f'v_mul_f32 v{Ls}, v{Pr+1}, v{Fs}')
    for s in range(1, 8): a(f'v_fmac_f32 v{Ls}, v{Pr+4*s+1}, v{Fs+s}')
    a(f'v_rcp_f32 v{Ls}, v{Ls}', 's_nop 0')
    for s in range(8): a(f'v_mul_f32 v{Fs+s}, v{Fs+s}, v{Ls}')
    for s in range(8): a(f'v_readlane_b32 s{S_G+s}, v{Fs+s}, 48')
    a('s_nop 1')
    O = 108
    for e in range(4): a(f'v_mul_f32 v{O+e}, s{S_G}, v{Pr+e}')
    for s in range(1, 8):
        for e in range(4): a(f'v_fmac_f32 v{O+e}, s{S_G+s}, v{Pr+4*s+e}')
    for e in range(4): bf16r(a, O+e, O+e)
    a(f's_mul_i32 s{S_T0}, s{S_WAVE}, 768', f'v_add_u32 v{V_T}, s{S_T0}, v{V_T}')
    a('s_bfm_b64 exec, 48, 0', f'ds_write_b128 v{V_T}, v[{O}:{O+3}] offset:{L_OV}', 's_mov_b64 exec, -1')
    a(f'v_lshrrev_b32 v{V_T}, 5, v{V_LANE}', f'v_mul_u32_u24 v{V_T}, 24, v{V_T}', f'v_bfe_u32 v{V_T+1}, v{V_LANE}, 2, 3', f'v_add_lshl_u32 v{V_T}, v{V_T}, v{V_T+1}, 2',
      f'v_add_u32 v{V_T}, s{S_T0}, v{V_T}', 's_waitcnt lgkmcnt(0)')
    U = 64
    for p in range(12): a(f'ds_read_b32 v{U+p}, v{V_T} offset:{L_OV+4*(48*(p&3)+8*(p>>2))}')
    A = 80
    for p in range(12):
        a(f's_waitcnt lgkmcnt({11-p})', f'v_lshrrev_b32 v{U+12+(p&1)}, 16, v{U+p}')
        for i in range(4):
            c0 = '0' if p == 0 else f'v{A+2*i}'; c1 = '0' if p == 0 else f'v{A+2*i+1}'
            a(f'v_dot2_f32_bf16 v{A+2*i}, v{WGT+4*p+i}, v{U+12+(p&1)}, {c0}', f'v_dot2_f32_bf16 v{A+2*i+1}, v{WGT+4*p+i}, v{U+p}, {c1}')
    a('s_nop 2')
    for d in ('row_ror:4', 'row_ror:8'):
        for i in range(8): dpp(a, 'v_add_f32', A+i, d)
    swap_reduce(a, A, 4, 'v_permlane16_swap_b32')
    a(f'v_and_b32 v{V_T}, 3, v{V_LANE}', f'v_lshlrev_b32 v{V_T}, 5, v{V_T}', f'v_bfe_u32 v{V_T+1}, v{V_LANE}, 4, 1', f'v_lshl_add_u32 v{V_T}, v{V_T+1}, 4, v{V_T}',
      f'v_lshrrev_b32 v{V_T+1}, 5, v{V_LANE}', f'v_lshl_add_u32 v{V_T}, v{V_T+1}, 3, v{V_T}', f's_lshl_b32 s{S_T0}, s{S_WAVE}, 7', f'v_add_u32 v{V_T}, s{S_T0}, v{V_T}')
    swap_reduce(a, A, 2, 'v_permlane32_swap_b32')
    a(f'ds_write_b64 v{V_T}, v[{A}:{A+1}] offset:{L_B}', 's_waitcnt lgkmcnt(0)', 's_barrier')
    done = a.label('wd')
    a(f's_cmp_ge_u32 s{S_WAVE}, 1', f's_cbranch_scc1 {done}')
    a(f'v_and_b32 v{V_T}, 31, v0', f'v_lshlrev_b32 v{V_T}, 2, v{V_T}')
    for w in range(4): a(f'ds_read_b32 v{U+w}, v{V_T} offset:{L_B+128*w}')
    a(f's_and_b32 s{S_T0}, s2, 7', f's_mul_i32 s{S_T0}, s{S_T0}, 2560', f's_lshr_b32 s{S_T1}, s2, 3', f's_lshl_b32 s{S_T1}, s{S_T1}, 7',
      f's_add_u32 s{S_T0}, s{S_T0}, s{S_T1}', f's_add_u32 s{S_T0}, s{S_T0}, {HP}', 's_bfm_b64 exec, 32, 0', 's_waitcnt lgkmcnt(0)')
    a(f'v_add_f32 v{U}, v{U}, v{U+1}', f'v_add_f32 v{U+2}, v{U+2}, v{U+3}', f'v_add_f32 v{U}, v{U}, v{U+2}')
    a(f'buffer_store_dword v{U}, v{V_T}, {WS}, s{S_T0} offen sc1', 's_mov_b64 exec, -1', f'{done}:')

H_HN, H_X = 70, 64
def phase_h(a):
    P = 80
    a(f's_mul_i32 s{S_T0}, s{S_WAVE}, 5120', f's_add_u32 s{S_T0}, s{S_T0}, {HP}', f's_add_u32 s{S_T1}, s{S_T0}, 2560', f'v_lshlrev_b32 v{V_T}, 3, v{V_LANE}')
    unpack5(a, V_XW, H_HN)
    lbl = a.label('hspin')
    spin_begin(a, lbl)
    for b in range(2):
        for j in range(5): a(f'buffer_load_dwordx2 v[{P+10*b+2*j}:{P+10*b+2*j+1}], v{V_T}, {WS}, s{S_T0+b} offen offset:{512*j} sc1')
    a('s_waitcnt vmcnt(0)')
    spin_end(a, lbl, list(range(P, P+20)), V_T+1)
    stamp(a, 7)
    for i in range(10): a(f'v_add_f32 v{P+i}, v{P+i}, v{P+10+i}')
    a(f's_mul_i32 s{S_T0}, s{S_WAVE}, 2560', f'v_add_u32 v{V_T+1}, s{S_T0}, v{V_T}')
    for j in range(5): a(f'ds_write_b64 v{V_T+1}, v[{P+2*j}:{P+2*j+1}] offset:{L_C+512*j}')
    a('s_waitcnt lgkmcnt(0)', 's_barrier')
    Rr = 100
    for w in range(4):
        for j in range(5): a(f'ds_read_b64 v[{Rr+10*w+2*j}:{Rr+10*w+2*j+1}], v{V_T} offset:{L_C+2560*w+512*j}')
    a(f's_mul_i32 s{S_T0}, s{S_WAVE}, 1280', f'v_lshlrev_b32 v{V_T}, 2, v{V_LANE}', f'v_add_u32 v{V_T}, s{S_T0}, v{V_T}', 's_waitcnt lgkmcnt(0)')
    for i in range(10): a(f'v_add_f32 v{Rr+i}, v{Rr+i}, v{Rr+10+i}', f'v_add_f32 v{Rr+20+i}, v{Rr+20+i}, v{Rr+30+i}')
    for i in range(10): a(f'v_add_f32 v{Rr+i}, v{Rr+i}, v{Rr+20+i}')
    for j in range(5):
        i = 2*j
        a(f'v_cvt_pk_bf16_f32 v{V_T+1}, v{Rr+i}, v{Rr+i+1}', f'v_lshlrev_b32 v{Rr+i}, 16, v{V_T+1}', f'v_and_b32 v{Rr+i+1}, 0xffff0000, v{V_T+1}',
          f'v_add_f32 v{H_HN+i}, v{H_HN+i}, v{Rr+i}', f'v_add_f32 v{H_HN+i+1}, v{H_HN+i+1}, v{Rr+i+1}', f'v_cvt_pk_bf16_f32 v{H_X+j}, v{H_HN+i}, v{H_HN+i+1}',
          f'v_lshlrev_b32 v{H_HN+i}, 16, v{H_X+j}', f'v_and_b32 v{H_HN+i+1}, 0xffff0000, v{H_X+j}')
        a(f'ds_write_b32 v{V_T}, v{H_X+j} offset:{L_H+256*j}')
    layernorm(a, H_HN, V_T+4)
    for j in range(5):
        a(f'v_cvt_pk_bf16_f32 v{H_X+j}, v{H_HN+2*j}, v{H_HN+2*j+1}', f'ds_write_b32 v{V_T}, v{H_X+j} offset:{L_XN+256*j}')

def phase_m(a):
    U, A = 80, 96
    a(f'v_and_b32 v{V_T}, 127, v0', f'v_lshrrev_b32 v{V_T}, 1, v{V_T}', f'v_lshlrev_b32 v{V_T}, 1, v{V_T}', f's_mul_i32 s{S_T0}, s{S_WAVE}, 1280', f'v_add_u32 v{V_T}, s{S_T0}, v{V_T}', 's_waitcnt lgkmcnt(0)')
    for p in range(10): a(f'ds_read_u16 v{U+p}, v{V_T} offset:{L_XN+128*p}')
    for p in range(10):
        a(f's_waitcnt lgkmcnt({9-p})', f'v_lshlrev_b32 v{U+10+(p&1)}, 16, v{U+p}')
        for i in range(4):
            c0 = '0' if p == 0 else f'v{A+2*i}'; c1 = '0' if p == 0 else f'v{A+2*i+1}'
            a(f'v_dot2_f32_bf16 v{A+2*i}, v{WGT+4*p+i}, v{U+p}, {c0}', f'v_dot2_f32_bf16 v{A+2*i+1}, v{WGT+4*p+i}, v{U+10+(p&1)}, {c1}')
    a('s_nop 2')
    for d in ('quad_perm:[2,3,0,1]', 'row_ror:4', 'row_ror:8'):
        for i in range(8): dpp(a, 'v_add_f32', A+i, d)
    swap_reduce(a, A, 4, 'v_permlane16_swap_b32')
    a(f'v_and_b32 v{V_T}, 1, v{V_LANE}', f'v_lshlrev_b32 v{V_T}, 5, v{V_T}', f'v_bfe_u32 v{V_T+1}, v{V_LANE}, 4, 1', f'v_lshl_add_u32 v{V_T}, v{V_T+1}, 4, v{V_T}',
      f'v_lshrrev_b32 v{V_T+1}, 5, v{V_LANE}', f'v_lshl_add_u32 v{V_T}, v{V_T+1}, 3, v{V_T}', f's_lshl_b32 s{S_T0}, s{S_WAVE}, 6', f'v_add_u32 v{V_T}, s{S_T0}, v{V_T}')
    swap_reduce(a, A, 2, 'v_permlane32_swap_b32')
    a(f'ds_write_b64 v{V_T}, v[{A}:{A+1}] offset:{L_D}', 's_waitcnt lgkmcnt(0)', 's_barrier')
    a(f'v_and_b32 v{V_T}, 15, v{V_LANE}', f'v_lshlrev_b32 v{V_T}, 2, v{V_T}')
    for k in range(4): a(f'ds_read_b32 v{U+k}, v{V_T} offset:{L_D+64*k}')
    a(f's_lshl_b32 s{S_T0}, s{S_WAVE}, 7', f'v_lshlrev_b32 v{V_T+1}, 2, v{V_LANE}', f'v_add_u32 v{V_T+1}, s{S_T0}, v{V_T+1}', 's_waitcnt lgkmcnt(0)')
    a(f'v_add_f32 v{U}, v{U}, v{U+1}', f'v_add_f32 v{U+2}, v{U+2}, v{U+3}')
    bf16r(a, U, U); bf16r(a, U+2, U+2)
    a(f'v_mul_f32 v{U+1}, s{S_LOG2E}, v{U}', f'v_sub_f32 v{U+1}, 0, v{U+1}', f'v_exp_f32 v{U+1}, v{U+1}', 's_nop 0', f'v_add_f32 v{U+1}, 1.0, v{U+1}', f'v_rcp_f32 v{U+1}, v{U+1}', 's_nop 0', f'v_mul_f32 v{U}, v{U}, v{U+1}')
    bf16r(a, U, U)
    a(f'v_mul_f32 v{U}, v{U}, v{U+2}')
    bf16r(a, U, U)
    a(f'v_cmp_gt_u32 vcc, 16, v{V_LANE}', 's_nop 1', f'v_cndmask_b32 v{U}, v{V_ZERO}, v{U}, vcc')
    a('s_bfm_b64 exec, 18, 0', f'ds_write_b32 v{V_T+1}, v{U} offset:{L_E}', 's_mov_b64 exec, -1')
    a(f'v_mul_u32_u24 v{V_T}, 205, v0', f'v_lshrrev_b32 v{V_T}, 14, v{V_T}', f'v_lshl_add_u32 v{V_T+1}, v{V_T}, 2, s{S_T0}', 's_waitcnt lgkmcnt(0)')
    for i in range(6): a(f'ds_read_b32 v{U+i}, v{V_T+1} offset:{L_E+12*i}')
    a(f'v_mul_u32_u24 v{V_T+2}, 80, v{V_T}', f'v_sub_u32 v{V_T+2}, v0, v{V_T+2}', f'v_lshlrev_b32 v{V_T+2}, 5, v{V_T+2}', f'v_mul_u32_u24 v{V_T}, 2560, v{V_T}', f'v_add_u32 v{V_T+2}, v{V_T+2}, v{V_T}')
    for i in range(6):
        a(f's_waitcnt lgkmcnt({5-i})', f'v_lshrrev_b32 v{U+6+(i&1)}, 16, v{U+i}')
        for e in range(4):
            c0 = '0' if i == 0 else f'v{A+2*e}'; c1 = '0' if i == 0 else f'v{A+2*e+1}'
            a(f'v_dot2_f32_bf16 v{A+2*e}, v{WGT+40+4*i+e}, v{U+6+(i&1)}, {c0}', f'v_dot2_f32_bf16 v{A+2*e+1}, v{WGT+40+4*i+e}, v{U+i}, {c1}')
    a('v_cmp_gt_u32 vcc, 240, v0', 's_and_saveexec_b64 s[34:35], vcc', 's_nop 1')
    a(f'ds_write_b128 v{V_T+2}, v[{A}:{A+3}] offset:{L_F}', f'ds_write_b128 v{V_T+2}, v[{A+4}:{A+7}] offset:{L_F+16}')
    a('s_mov_b64 exec, s[34:35]', 's_waitcnt lgkmcnt(0)', 's_barrier')
    done = a.label('md')
    a('v_cmp_gt_u32 vcc, 160, v0', 's_and_saveexec_b64 s[34:35], vcc', f's_cbranch_execz {done}', f'v_lshlrev_b32 v{V_T}, 4, v0')
    for g in range(3): a(f'ds_read_b128 v[{U+4*g}:{U+4*g+3}], v{V_T} offset:{L_F+2560*g}')
    a(f'v_lshrrev_b32 v{V_T}, 2, v0', f'v_mul_u32_u24 v{V_T}, 6144, v{V_T}', f'v_and_b32 v{V_T+1}, 3, v0', f'v_lshl_add_u32 v{V_T}, v{V_T+1}, 4, v{V_T}',
      f's_lshl_b32 s{S_T0}, s{S_M}, 6', f's_add_u32 s{S_T0}, s{S_T0}, {YP}', 's_waitcnt lgkmcnt(0)')
    for e in range(4): a(f'v_add_f32 v{U+e}, v{U+e}, v{U+4+e}')
    for e in range(4): a(f'v_add_f32 v{U+e}, v{U+e}, v{U+8+e}')
    a(f'buffer_store_dwordx4 v[{U}:{U+3}], v{V_T}, {WS}, s{S_T0} offen sc1')
    a(f'{done}:', 's_mov_b64 exec, s[34:35]')

def phase_f(a):
    U = 80
    a(f'v_dot2_f32_bf16 v{V_SIG}, v{H_X}, v{V_XW+5}, 0')
    for j in range(1, 5): a(f'v_dot2_f32_bf16 v{V_SIG}, v{H_X+j}, v{V_XW+5+j}, v{V_SIG}')
    a(f's_mul_i32 s{S_T0}, s{S_M}, 6144', f's_add_u32 s{S_T0}, s{S_T0}, {YP}', f's_add_u32 s{S_T1}, s{S_T0}, 4096', f'v_lshlrev_b32 v{V_T}, 4, v0')
    wave_red(a, [V_SIG], [V_T+1])
    bf16r(a, V_SIG, V_SIG)
    a(f'v_mul_f32 v{V_SIG}, s{S_LOG2E}, v{V_SIG}', f'v_sub_f32 v{V_SIG}, 0, v{V_SIG}', f'v_exp_f32 v{V_SIG}, v{V_SIG}', 's_nop 0',
      f'v_add_f32 v{V_SIG}, 1.0, v{V_SIG}', f'v_rcp_f32 v{V_SIG}, v{V_SIG}', 's_nop 0')
    bf16r(a, V_SIG, V_SIG)
    a(f'v_and_b32 v{V_T+2}, 15, v0', f's_lshl_b32 s{S_T2}, s{S_M}, 4', f'v_add_u32 v{V_T+2}, s{S_T2}, v{V_T+2}', f'v_lshlrev_b32 v{V_T+2}, 1, v{V_T+2}')
    a(f'ds_read_u16 v{U+16}, v{V_T+2} offset:{L_H}', f'ds_read_u16 v{U+17}, v{V_T+2} offset:{L_XN}')
    srd(a, SRD_A, P_OUT, 1280)
    lbl = a.label('fspin')
    spin_begin(a, lbl)
    for i in range(4): a(f'v_mov_b32 v{U+4+i}, 0')
    a(f'buffer_load_dwordx4 v[{U}:{U+3}], v{V_T}, {WS}, s{S_T0} offen sc1')
    sk = a.label('f2')
    a(f's_cmp_ge_u32 s{S_WAVE}, 2', f's_cbranch_scc1 {sk}', f'buffer_load_dwordx4 v[{U+4}:{U+7}], v{V_T}, {WS}, s{S_T1} offen sc1', f'{sk}:', 's_waitcnt vmcnt(0)')
    spin_end(a, lbl, list(range(U, U+8)), V_T+1)
    stamp(a, 10)
    for e in range(4): a(f'v_add_f32 v{U+e}, v{U+e}, v{U+4+e}')
    a('s_nop 0')
    for d in ('row_ror:4', 'row_ror:8'):
        for e in range(4): dpp(a, 'v_add_f32', U+e, d)
    swap_reduce(a, U, 2, 'v_permlane16_swap_b32')
    a(f'v_and_b32 v{V_T}, 3, v{V_LANE}', f'v_lshlrev_b32 v{V_T}, 4, v{V_T}', f'v_bfe_u32 v{V_T+1}, v{V_LANE}, 4, 1', f'v_lshl_add_u32 v{V_T}, v{V_T+1}, 3, v{V_T}',
      f'v_lshrrev_b32 v{V_T+1}, 5, v{V_LANE}', f'v_lshl_add_u32 v{V_T}, v{V_T+1}, 2, v{V_T}', f's_lshl_b32 s{S_T0}, s{S_WAVE}, 6', f'v_add_u32 v{V_T}, s{S_T0}, v{V_T}')
    swap_reduce(a, U, 1, 'v_permlane32_swap_b32')
    a(f'ds_write_b32 v{V_T}, v{U} offset:{L_G}', 's_waitcnt lgkmcnt(0)', 's_barrier')
    done = a.label('fd')
    a(f's_cmp_ge_u32 s{S_WAVE}, 1', f's_cbranch_scc1 {done}')
    a(f'v_and_b32 v{V_T}, 15, v0', f'v_lshlrev_b32 v{V_T}, 2, v{V_T}')
    for w in range(4): a(f'ds_read_b32 v{U+w}, v{V_T} offset:{L_G+64*w}')
    a(f'v_lshlrev_b32 v{U+16}, 16, v{U+16}', f'v_lshlrev_b32 v{U+17}, 16, v{U+17}', 's_bfm_b64 exec, 16, 0', 's_waitcnt lgkmcnt(0)')
    a(f'v_add_f32 v{U}, v{U}, v{U+1}', f'v_add_f32 v{U+2}, v{U+2}, v{U+3}', f'v_add_f32 v{U}, v{U}, v{U+2}')
    bf16r(a, U, U)
    a(f'v_mul_f32 v{U}, v{U}, v{V_SIG}')
    bf16r(a, U, U)
    a(f'v_add_f32 v{U}, v{U+17}, v{U}')
    bf16r(a, U, U)
    a(f'v_add_f32 v{U}, v{U+16}, v{U}', f'v_cvt_pk_bf16_f32 v{U}, v{U}, v{U}')
    a(f'buffer_store_short v{U}, v{V_T+2}, {R(SRD_A)}, 0 offen', 's_mov_b64 exec, -1', f'{done}:')

def build():
    a = Asm()
    name = NAME_BASE + '_kernel'
    hdr = header([f'; @launch grid=(256,1,1) block=(256,1,1) lds={LDS_BYTES}'])
    a('.amdgcn_target "amdgcn-amd-amdhsa--gfx950"', '.text')
    end = a.label('end')
    a(f'.globl {name}', '.p2align 8', f'.type {name},@function', f'{name}:', 'L_code_start:')
    prologue(a, end)
    stamp(a, 0)
    startup(a)
    stream(a)
    stamp(a, 3)
    a('L_tail_start:')
    phase_t1(a)
    stamp(a, 4)
    dbg_check(a)
    rm = a.label('rolem'); fin = a.label('fin')
    a('s_cmp_ge_u32 s2, 160', f's_cbranch_scc1 {rm}')
    phase_w(a); stamp(a, 6)
    a(f's_branch {fin}', f'{rm}:')
    phase_h(a); stamp(a, 8)
    phase_m(a); stamp(a, 9)
    a(f's_cmp_ge_u32 s{S_M}, 40', f's_cbranch_scc1 {fin}')
    phase_f(a); stamp(a, 11)
    a(f'{fin}:', 's_waitcnt vmcnt(0) lgkmcnt(0)')
    stamp(a, 15)
    a(f'{end}:', 's_endpgm', 'L_code_end:')
    a('.section .rodata,"a"', '.p2align 6')
    a.lines.append(kernel_desc(name, 256, 102))
    return '\n'.join(hdr) + '\n' + a.text()

if __name__ == '__main__':
    for x in sys.argv[1:]:
        if x == 'stamp': OPT['stamp'] = 1
        elif '=' in x:
            k, v = x.split('='); assert k in OPT, k; OPT[k] = int(v)
    sys.stdout.write(build())
```

```python
import sys, struct
from asmlib import *

def f2u(x): return struct.unpack('<I', struct.pack('<f', x))[0]
SCALE = f2u(192 ** -0.5); LOG2E = f2u(1.4426950408889634); INV640 = f2u(1.0/640); EPS = f2u(1e-5); NEGBIG = f2u(-3.0e38)
KV_BYTES = 402653184; HEAD_BYTES = 12582912
CNT, OP, HP, YP, EPOCH, TS, QP2, WS_USED = 0x40000, 0x50000, 0x90000, 0xA0000, 0xE8000, 0xF0000, 0x100000, 0x200000
L_RED = 0
L_A, L_B, L_C, L_D, L_E, L_F, L_G = 0, 3072, 4096, 14336, 14592, 15104, 3072
L_XN = 24576
L_H = 29696
L_SM = 34816
L_OV = 35840
LDS_BYTES = 38912
S_WAVE = 3
SRD_K, SRD_V, SRD_WS, SRD_A, SRD_B = 8, 12, 16, 20, 24
S_HEAD, S_MEM, S_SCALE, S_LOG2E = 28, 29, 30, 31
S_T0, S_T1, S_T2, S_T3 = 32, 33, 34, 35
P_X, P_K, P_V, P_WQ, P_WO, P_BX, P_WR, P_WG = 36, 38, 40, 42, 44, 46, 48, 50
P_WU, P_WD, P_OUT, P_DBG, P_WS = 52, 54, 56, 58, 60
S_OFF, S_HB, S_CNT, S_NX, S_SPIN, S_M = 62, 63, 64, 65, 66, 67
S_G = 68
S_ROT, S_TAG, S_K, S_SU = 76, 77, 78, 79
S_ROW = 86
SRD_C, SRD_D, SRD_E = 88, 92, 96
V_LANE, V_OFFB, V_ZERO = 1, 2, 3
V_Q, V_ACC, V_M, V_L, V_T = 4, 16, 40, 41, 42
V_ATOM, V_SIG, V_E, V_DBG = 56, 57, 58, 59
V_CPF = 52
V_RING = 64
PF = 116
WGT = 192
V_XW = 176
WS = f's[{SRD_WS}:{SRD_WS+3}]'
OPT = dict(P=0, NS=120, hrot=37, cpf=1, cpf2=1, stamp=0, stampw=0, wmode=1, qov=1, npre=4, ov=0, fast=1, wsplit=6)

def srd(a, reg, ptr, size):
    a(f's_mov_b32 s{reg}, s{ptr}', f's_and_b32 s{reg+1}, s{ptr+1}, 0xffff', f's_mov_b32 s{reg+2}, {size}', f's_mov_b32 s{reg+3}, 0x20000')
def R(a_): return f's[{a_}:{a_+3}]'
def stamp(a, slot):
    if not OPT['stamp']: return
    sk = a.label('ts')
    a(f"s_cmp_lg_u32 s{S_WAVE}, {OPT['stampw']}", f's_cbranch_scc1 {sk}')
    a('s_memrealtime s[80:81]', 's_waitcnt lgkmcnt(0)')
    a(f's_lshl_b32 s82, s2, 7', f's_add_u32 s82, s82, {TS + slot*8}')
    a('v_mov_b32 v62, s80', 'v_mov_b32 v63, s81', 's_mov_b64 s[84:85], exec', 's_mov_b64 exec, 1')
    a(f'buffer_store_dwordx2 v[62:63], v{V_ZERO}, {WS}, s82 offen')
    a('s_mov_b64 exec, s[84:85]', 's_nop 1')
    a(f'{sk}:')
def bf16r(a, dst, src):
    a(f'v_cvt_pk_bf16_f32 v{dst}, v{src}, v{src}', f'v_and_b32 v{dst}, 0xffff0000, v{dst}')
def dpp(a, ins, v, d): a(f'{ins}_dpp v{v}, v{v}, v{v} {d} row_mask:0xf bank_mask:0xf')
def wave_red(a, vs, ts, op='v_add_f32'):
    pad = max(0, 2 - (len(vs) - 1))
    for d in ('quad_perm:[1,0,3,2]', 'quad_perm:[2,3,0,1]', 'row_half_mirror', 'row_mirror'):
        a('s_nop 1')
        for v in vs: dpp(a, op, v, d)
    for p in ('v_permlane16_swap_b32', 'v_permlane32_swap_b32'):
        for v, t in zip(vs, ts): a(f'v_mov_b32 v{t}, v{v}')
        a('s_nop 1')
        for v, t in zip(vs, ts): a(f'{p} v{t}, v{v}')
        a('s_nop 0')
        for v, t in zip(vs, ts): a(f'{op} v{v}, v{v}, v{t}')
def groups_red(a, v, t, op):
    a('s_nop 1'); dpp(a, op, v, 'row_ror:8')
    for p in ('v_permlane16_swap_b32', 'v_permlane32_swap_b32'):
        a(f'v_mov_b32 v{t}, v{v}', 's_nop 1', f'{p} v{t}, v{v}', 's_nop 0', f'{op} v{v}, v{v}, v{t}')
def swap_reduce(a, base, n, p):
    a('s_nop 1')
    for i in range(n): a(f'{p} v{base+i}, v{base+n+i}')
    a('s_nop 0')
    for i in range(n): a(f'v_add_f32 v{base+i}, v{base+i}, v{base+n+i}')
def unpack5(a, src, dst):
    for j in range(5): a(f'v_lshlrev_b32 v{dst+2*j}, 16, v{src+j}', f'v_and_b32 v{dst+2*j+1}, 0xffff0000, v{src+j}')
def layernorm(a, x, t):
    s1, s2, u, w2, sd, mean = t, t+1, t+2, t+3, t+4, t+5
    a('s_nop 0', f'v_readfirstlane_b32 s{S_T0}, v{x}', 's_nop 1')
    a(f'v_subrev_f32 v{s1}, s{S_T0}, v{x}', f'v_mul_f32 v{s2}, v{s1}, v{s1}')
    for i in range(1, 10):
        a(f'v_subrev_f32 v{u}, s{S_T0}, v{x+i}', f'v_add_f32 v{s1}, v{s1}, v{u}', f'v_fmac_f32 v{s2}, v{u}, v{u}')
    wave_red(a, [s1, s2], [u, w2])
    a(f'v_mul_f32 v{s1}, 0x{INV640:08x}, v{s1}', f'v_mul_f32 v{s2}, 0x{INV640:08x}, v{s2}')
    a(f'v_fma_f32 v{s2}, -v{s1}, v{s1}, v{s2}', f'v_max_f32 v{s2}, 0, v{s2}')
    a(f'v_add_f32 v{mean}, s{S_T0}, v{s1}')
    bf16r(a, s2, s2)
    a(f'v_add_f32 v{s2}, 0x{EPS:08x}, v{s2}')
    bf16r(a, s2, s2)
    a(f'v_sqrt_f32 v{sd}, v{s2}')
    bf16r(a, mean, mean)
    bf16r(a, sd, sd)
    a(f'v_rcp_f32 v{sd}, v{sd}')
    for i in range(0, 10, 2):
        a(f'v_sub_f32 v{x+i}, v{x+i}, v{mean}', f'v_sub_f32 v{x+i+1}, v{x+i+1}, v{mean}', f'v_cvt_pk_bf16_f32 v{u}, v{x+i}, v{x+i+1}',
          f'v_lshlrev_b32 v{x+i}, 16, v{u}', f'v_and_b32 v{x+i+1}, 0xffff0000, v{u}', f'v_mul_f32 v{x+i}, v{x+i}, v{sd}', f'v_mul_f32 v{x+i+1}, v{x+i+1}, v{sd}')
def pv_unit(a, vreg, plo, phi):
    for j in range(3):
        for i in range(4):
            a(f'v_dot2_f32_bf16 v{V_ACC+8*j+2*i}, v{vreg+4*j+i}, v{plo}, v{V_ACC+8*j+2*i}')
            a(f'v_dot2_f32_bf16 v{V_ACC+8*j+2*i+1}, v{vreg+4*j+i}, v{phi}, v{V_ACC+8*j+2*i+1}')
def acc_reduce_write(a, lbase, t):
    a('s_nop 2')
    for i in range(24): dpp(a, 'v_add_f32', V_ACC+i, 'row_ror:8')
    swap_reduce(a, V_ACC, 12, 'v_permlane16_swap_b32')
    a(f'v_and_b32 v{t}, 7, v{V_LANE}', f'v_mul_u32_u24 v{t}, 96, v{t}', f'v_bfe_u32 v{t+1}, v{V_LANE}, 4, 1', f'v_mul_u32_u24 v{t+1}, 48, v{t+1}', f'v_add_u32 v{t}, v{t}, v{t+1}',
      f'v_lshrrev_b32 v{t+1}, 5, v{V_LANE}', f'v_mul_u32_u24 v{t+1}, 24, v{t+1}', f's_mul_i32 s{S_T0}, s{S_WAVE}, 768', f'v_add3_u32 v{t}, v{t}, v{t+1}, s{S_T0}')
    swap_reduce(a, V_ACC, 6, 'v_permlane32_swap_b32')
    for i in range(3): a(f'ds_write_b64 v{t}, v[{V_ACC+2*i}:{V_ACC+2*i+1}] offset:{lbase+8*i}')
def m_index(a):
    a(f's_sub_u32 s{S_T0}, s2, 160', f's_and_b32 s{S_T1}, s{S_T0}, 7', f's_mul_i32 s{S_T1}, s{S_T1}, 12', f's_lshr_b32 s{S_T0}, s{S_T0}, 3', f's_add_u32 s{S_M}, s{S_T0}, s{S_T1}')
def role_branch(a, wbody, mbody):
    lm = a.label('rm'); le = a.label('re')
    a('s_cmp_ge_u32 s2, 160', f's_cbranch_scc1 {lm}'); wbody(); a(f's_branch {le}', f'{lm}:'); mbody(); a(f'{le}:')
def spin_begin(a, lbl): a(f's_mov_b32 s{S_SPIN}, 0', f'{lbl}:')
def spin_end(a, lbl, regs, t):
    ok = a.label('ok')
    a(f'v_max3_u32 v{t}, v{regs[0]}, v{regs[1]}, v{regs[2]}'); rest = regs[3:]
    while len(rest) >= 2:
        a(f'v_max3_u32 v{t}, v{t}, v{rest[0]}, v{rest[1]}'); rest = rest[2:]
    if rest: a(f'v_max_u32 v{t}, v{t}, v{rest[0]}')
    a(f'v_cmp_eq_u32 vcc, -1, v{t}', f's_cbranch_vccz {ok}')
    a(f's_add_u32 s{S_SPIN}, s{S_SPIN}, 1', f's_cmp_lt_u32 s{S_SPIN}, 200000', f's_cbranch_scc1 {lbl}')
    a(f'{ok}:')
def sent_check(a, regs, t):
    a(f'v_max3_u32 v{t}, v{regs[0]}, v{regs[1]}, v{regs[2]}'); rest = regs[3:]
    while len(rest) >= 2:
        a(f'v_max3_u32 v{t}, v{t}, v{rest[0]}, v{rest[1]}'); rest = rest[2:]
    if rest: a(f'v_max_u32 v{t}, v{t}, v{rest[0]}')
    a(f'v_cmp_eq_u32 vcc, -1, v{t}')
def poll2(a, issue_fn, nregs, baseA, baseB, nloads, post, t):
    lbl = a.label('spin'); okA = a.label('okA'); okB = a.label('okB'); join = a.label('join')
    a(f's_mov_b32 s{S_SPIN}, 0')
    issue_fn(baseA)
    a(f'{lbl}:')
    issue_fn(baseB)
    a(f's_waitcnt vmcnt({nloads})'); sent_check(a, list(range(baseA, baseA+nregs)), t); a(f's_cbranch_vccz {okA}')
    issue_fn(baseA)
    a(f's_waitcnt vmcnt({nloads})'); sent_check(a, list(range(baseB, baseB+nregs)), t); a(f's_cbranch_vccz {okB}')
    a(f's_add_u32 s{S_SPIN}, s{S_SPIN}, 1', f's_cmp_lt_u32 s{S_SPIN}, 100000', f's_cbranch_scc1 {lbl}', f's_branch {okA}')
    a(f'{okB}:'); post(baseB); a(f's_branch {join}')
    a(f'{okA}:'); post(baseA)
    a(f'{join}:')
def code_prefetch(a, start, end, n, vtmp):
    pc = a.label('pc')
    a(f's_getpc_b64 s[{SRD_C}:{SRD_C+1}]', f'{pc}:')
    if start == 'L_code_start': a(f's_sub_u32 s{SRD_C}, s{SRD_C}, {pc}-{start}', f's_subb_u32 s{SRD_C+1}, s{SRD_C+1}, 0')
    else: a(f's_add_u32 s{SRD_C}, s{SRD_C}, {start}-{pc}', f's_addc_u32 s{SRD_C+1}, s{SRD_C+1}, 0')
    a(f's_and_b32 s{SRD_C+1}, s{SRD_C+1}, 0xffff', f's_mov_b32 s{SRD_C+2}, {end}-{start}', f's_mov_b32 s{SRD_C+3}, 0x20000')
    a(f's_lshr_b32 s{S_T0}, s2, 3', f's_mul_i32 s{S_T0}, s{S_T0}, ((({end}-{start})+31)/32+15)&0xfffffff0')
    a(f'v_lshlrev_b32 v{vtmp}, 4, v{V_LANE}')
    for i in range(n): a(f'buffer_load_dwordx4 v[{V_CPF}:{V_CPF+3}], v{vtmp}, {R(SRD_C)}, s{S_T0} offen offset:{1024*i}')

def prologue(a, endlabel):
    a('s_cmp_ge_u32 s2, 256', f's_cbranch_scc1 {endlabel}')
    a('s_load_dwordx16 s[36:51], s[0:1], 0', 's_load_dwordx8 s[52:59], s[0:1], 64', 's_load_dwordx2 s[60:61], s[0:1], 96')
    a(f'v_lshrrev_b32 v{V_LANE}, 6, v0', f'v_mov_b32 v{V_ZERO}, 0', f'v_readfirstlane_b32 s{S_WAVE}, v{V_LANE}', f'v_and_b32 v{V_LANE}, 63, v0')
    a(f'v_lshrrev_b32 v{V_T}, 3, v{V_LANE}', f'v_mul_u32_u24 v{V_T}, 384, v{V_T}', f'v_and_b32 v{V_T+1}, 7, v{V_LANE}', f'v_lshl_add_u32 v{V_OFFB}, v{V_T+1}, 4, v{V_T}')
    a(f's_mov_b32 s{S_SCALE}, 0x{SCALE:08x}', f's_mov_b32 s{S_LOG2E}, 0x{LOG2E:08x}')
    a(f's_lshr_b32 s{S_T0}, s2, 3', f's_and_b32 s{S_MEM}, s2, 7', f's_lshl_b32 s{S_T1}, s{S_MEM}, 2', f's_add_u32 s{S_T0}, s{S_T0}, s{S_T1}', f's_and_b32 s{S_HEAD}, s{S_T0}, 31')
    a(f's_lshl_b32 s{S_ROW}, s{S_HEAD}, 3', f's_add_u32 s{S_ROW}, s{S_ROW}, s{S_MEM}')
    a('s_waitcnt lgkmcnt(0)')
    srd(a, SRD_WS, P_WS, WS_USED)

V_PA, V_PB, S_PA, S_PB, S_PRE = 48, 49, 87, 100, 101
def w_setup(a):
    srd(a, SRD_C, P_WO, 7864320)
    a(f's_and_b32 s{S_T0}, s2, 7', f's_mul_i32 s{S_T0}, s{S_T0}, 768', f's_mul_i32 s{S_T1}, s{S_WAVE}, 192', f's_add_u32 s{S_T0}, s{S_T0}, s{S_T1}',
      f's_mul_i32 s{S_T0}, s{S_T0}, 1280', f's_lshr_b32 s{S_T1}, s2, 3', f's_lshl_b32 s{S_T1}, s{S_T1}, 6', f's_add_u32 s{S_PA}, s{S_T0}, s{S_T1}')
    a(f'v_lshrrev_b32 v{V_PA}, 2, v{V_LANE}', f'v_mul_u32_u24 v{V_PA}, 1280, v{V_PA}', f'v_and_b32 v{V_PB}, 3, v{V_LANE}', f'v_lshl_add_u32 v{V_PA}, v{V_PB}, 4, v{V_PA}')
def w_loads():
    return [f'buffer_load_dwordx4 v[{WGT+4*p}:{WGT+4*p+3}], v{V_PA}, {R(SRD_C)}, s{S_PA} offen nt\ns_add_u32 s{S_PA}, s{S_PA}, {16*1280}' for p in range(12)]
def m_setup(a):
    a(f's_cmp_ge_u32 s{S_WAVE}, 2', f's_cselect_b32 s{S_T0}, s{P_WU}, s{P_WG}', f's_cselect_b32 s{S_T1}, s{P_WU+1}, s{P_WG+1}')
    srd(a, SRD_C, S_T0, 1966080); srd(a, SRD_D, P_WD, 1966080)
    a(f'v_and_b32 v{V_PB}, 127, v0', f'v_lshrrev_b32 v{V_PA}, 1, v{V_PB}', f'v_mul_u32_u24 v{V_PA}, 3072, v{V_PA}', f'v_and_b32 v{V_PB}, 1, v{V_PB}', f'v_lshl_add_u32 v{V_PA}, v{V_PB}, 4, v{V_PA}')
    a(f's_lshl_b32 s{S_PA}, s{S_M}, 5')
    a(f'v_mul_u32_u24 v{V_PB}, 205, v0', f'v_lshrrev_b32 v{V_PB}, 14, v{V_PB}', f'v_mul_u32_u24 v50, 80, v{V_PB}', f'v_sub_u32 v50, v0, v50',
      f'v_mul_u32_u24 v{V_PB}, 1280, v{V_PB}', f'v_lshl_add_u32 v{V_PB}, v50, 4, v{V_PB}', f's_mul_i32 s{S_PB}, s{S_M}, {16*1280}')
def m_loads():
    l = [f'buffer_load_dwordx4 v[{WGT+4*p}:{WGT+4*p+3}], v{V_PA}, {R(SRD_C)}, s{S_PA} offen nt\ns_add_u32 s{S_PA}, s{S_PA}, {64*3072}' for p in range(10)]
    l += [f'buffer_load_dwordx4 v[{WGT+40+4*i}:{WGT+40+4*i+3}], v{V_PB}, {R(SRD_D)}, s{S_PB} offen nt\ns_add_u32 s{S_PB}, s{S_PB}, 3840' for i in range(6)]
    return l
def w_weights(a):
    w_setup(a)
    for l in w_loads(): a(l)
def m_weights(a):
    m_setup(a)
    for l in m_loads(): a(l)
NW_W, NW_M = 12, 16

def setoff(a):
    a(f's_add_u32 s{S_OFF}, s{S_NX}, s{S_ROT}', f's_and_b32 s{S_OFF}, s{S_OFF}, 4095', f's_mul_i32 s{S_OFF}, s{S_OFF}, 3072', f's_add_u32 s{S_OFF}, s{S_OFF}, s{S_HB}')
def issue(a, r):
    for j in range(3): a(f'buffer_load_dwordx4 v[{r+4*j}:{r+4*j+3}], v{V_OFFB}, {R(SRD_K)}, s{S_OFF} offen offset:{128*j} nt')
    for j in range(3): a(f'buffer_load_dwordx4 v[{r+12+4*j}:{r+12+4*j+3}], v{V_OFFB}, {R(SRD_V)}, s{S_OFF} offen offset:{128*j} nt')
def atomic(a):
    a(f'v_mov_b32 v{V_ATOM}, 1', 's_mov_b64 exec, 1', f'buffer_atomic_add v{V_ATOM}, v{V_ZERO}, {WS}, s{S_CNT} offen sc0', 's_mov_b64 exec, -1')
def static_next(a):
    a(f's_mov_b32 s{S_NX}, s{S_SU}', f's_add_u32 s{S_SU}, s{S_SU}, 32', f's_add_u32 s{S_K}, s{S_K}, 1')
def compute_unit(a, r):
    K, V = r, r+12
    t0, t1, t2, t3, t4, t5 = V_T, V_T+1, V_T+2, V_T+3, V_T+4, V_T+5
    for i in range(4):
        for j, t in enumerate((t0, t1, t2)):
            c = '0' if i == 0 else f'v{t}'
            a(f'v_dot2_f32_bf16 v{t}, v{K+4*j+i}, v{V_Q+4*j+i}, {c}')
    a('s_nop 2', f'v_add_f32 v{t0}, v{t0}, v{t1}', f'v_add_f32 v{t0}, v{t0}, v{t2}')
    for d in ('quad_perm:[1,0,3,2]', 'quad_perm:[2,3,0,1]', 'row_half_mirror'):
        a('s_nop 1'); dpp(a, 'v_add_f32', t0, d)
    bf16r(a, t0, t0)
    a(f'v_mul_f32 v{t0}, s{S_SCALE}, v{t0}')
    bf16r(a, t0, t0)
    a(f'v_max_f32 v{t1}, v{V_M}, v{t0}', f'v_sub_f32 v{t2}, v{V_M}, v{t1}', f'v_sub_f32 v{t3}, v{t0}, v{t1}',
      f'v_mul_f32 v{t2}, s{S_LOG2E}, v{t2}', f'v_mul_f32 v{t3}, s{S_LOG2E}, v{t3}', f'v_exp_f32 v{t2}, v{t2}', f'v_exp_f32 v{t3}, v{t3}', f'v_mov_b32 v{V_M}, v{t1}',
      f'v_fma_f32 v{V_L}, v{V_L}, v{t2}, v{t3}', f'v_cvt_pk_bf16_f32 v{t4}, v{t3}, 0', f'v_cvt_pk_bf16_f32 v{t5}, 0, v{t3}')
    for i in range(12):
        a(f'v_pk_mul_f32 v[{V_ACC+2*i}:{V_ACC+2*i+1}], v[{V_ACC+2*i}:{V_ACC+2*i+1}], v[{t2}:{t2+1}] op_sel_hi:[1,0]')
    pv_unit(a, V, t4, t5)

def startup(a):
    P = OPT['P']; NC = 2 if OPT['cpf'] else 0
    X, XF, W = 64, 70, 80
    srd(a, SRD_A, P_X, 1280); srd(a, SRD_B, P_WQ, 7864320)
    a(f'v_lshlrev_b32 v{V_T}, 2, v{V_LANE}', f's_mov_b32 s{S_T0}, {EPOCH}')
    a(f'buffer_load_dword v{V_E}, v{V_ZERO}, {WS}, s{S_T0} offen sc1')
    for j in range(5): a(f'buffer_load_dword v{X+j}, v{V_T}, {R(SRD_A)}, 0 offen offset:{256*j}')
    a(f'v_lshrrev_b32 v{V_T+1}, 3, v{V_LANE}', f'v_mul_u32_u24 v{V_T+1}, 12288, v{V_T+1}', f'v_and_b32 v{V_T+2}, 7, v{V_LANE}', f'v_lshl_add_u32 v{V_T+1}, v{V_T+2}, 4, v{V_T+1}')
    a(f's_mul_i32 s70, s{S_MEM}, 80', f's_lshl_b32 s{S_T1}, s{S_WAVE}, 3', f's_add_u32 s70, s70, s{S_T1}',
      f's_mul_i32 s{S_T1}, s70, 12288', f's_mul_i32 s{S_T2}, s{S_HEAD}, 384', f's_add_u32 s{S_T1}, s{S_T1}, s{S_T2}')
    third = a.label('q3')
    for u in range(3):
        if u == 2: a(f's_cmp_ge_u32 s{S_WAVE}, 2', f's_cbranch_scc1 {third}')
        for j in range(3): a(f'buffer_load_dwordx4 v[{W+12*u+4*j}:{W+12*u+4*j+3}], v{V_T+1}, {R(SRD_B)}, s{S_T1} offen offset:{128*j} nt')
        a(f's_add_u32 s{S_T1}, s{S_T1}, {32*12288}')
    a(f'{third}:')
    srd(a, SRD_K, P_K, KV_BYTES); srd(a, SRD_V, P_V, KV_BYTES)
    for i in range(4): a(f'v_mov_b32 v{V_T+2+i}, -1')
    a(f's_lshl_b32 s{S_T0}, s{S_ROW}, 10', f's_add_u32 s{S_T0}, s{S_T0}, {OP}', f'v_lshlrev_b32 v{V_T}, 2, v0')
    a(f'buffer_store_dword v{V_T+2}, v{V_T}, {WS}, s{S_T0} offen sc1')
    def wclr():
        sk = a.label('wc')
        a(f's_cmp_lg_u32 s{S_WAVE}, 0', f's_cbranch_scc1 {sk}')
        a(f's_and_b32 s{S_T0}, s2, 7', f's_mul_i32 s{S_T0}, s{S_T0}, 2560', f's_lshr_b32 s{S_T1}, s2, 3', f's_lshl_b32 s{S_T1}, s{S_T1}, 7',
          f's_add_u32 s{S_T0}, s{S_T0}, s{S_T1}', f's_add_u32 s{S_T0}, s{S_T0}, {HP}')
        a('v_cmp_gt_u32 vcc, 32, v0', 's_and_saveexec_b64 s[34:35], vcc', f'buffer_store_dword v{V_T+2}, v{V_T}, {WS}, s{S_T0} offen sc1', 's_mov_b64 exec, s[34:35]', f'{sk}:')
    def mclr():
        m_index(a)
        sk = a.label('mc')
        a(f's_cmp_ge_u32 s{S_WAVE}, 3', f's_cbranch_scc1 {sk}')
        a(f'v_lshrrev_b32 v{V_T}, 2, v0', f'v_mul_u32_u24 v{V_T}, 6144, v{V_T}', f'v_and_b32 v{V_T+1}, 3, v0', f'v_lshl_add_u32 v{V_T}, v{V_T+1}, 4, v{V_T}',
          f's_lshl_b32 s{S_T0}, s{S_M}, 6', f's_add_u32 s{S_T0}, s{S_T0}, {YP}')
        a('v_cmp_gt_u32 vcc, 160, v0', 's_and_saveexec_b64 s[34:35], vcc', f'buffer_store_dwordx4 v[{V_T+2}:{V_T+5}], v{V_T}, {WS}, s{S_T0} offen sc1', 's_mov_b64 exec, s[34:35]', f'{sk}:')
    role_branch(a, wclr, mclr)
    sk = a.label('cz')
    a(f's_lshl_b32 s{S_CNT}, s{S_HEAD}, 8', f's_add_u32 s{S_CNT}, s{S_CNT}, {CNT}')
    a(f's_or_b32 s{S_T0}, s{S_MEM}, s{S_WAVE}', f's_cmp_lg_u32 s{S_T0}, 0', f's_cbranch_scc1 {sk}', 's_mov_b64 exec, 1')
    a(f'buffer_store_dword v{V_ZERO}, v{V_ZERO}, {WS}, s{S_CNT} offen sc1', 's_mov_b64 exec, -1', f'{sk}:')
    a(f's_mul_i32 s{S_HB}, s{S_HEAD}, {HEAD_BYTES}', f"s_mul_i32 s{S_ROT}, s{S_HEAD}, {OPT['hrot']}")
    a(f's_lshl_b32 s{S_SU}, s{S_MEM}, 2', f's_add_u32 s{S_SU}, s{S_SU}, s{S_WAVE}', f's_mov_b32 s{S_K}, 0')
    nopf = a.label('nopf'); pfd = a.label('pfd')
    a(f's_cmp_ge_u32 s{S_WAVE}, 3', f's_cbranch_scc1 {nopf}')
    if NC: code_prefetch(a, 'L_code_start', 'L_code_end', NC, V_T)
    for k in range(P):
        static_next(a); setoff(a); issue(a, PF + 24*k)
    a(f's_waitcnt vmcnt({7+NC+6*P})', f's_branch {pfd}', f'{nopf}:', 's_waitcnt vmcnt(7)', f'{pfd}:')
    a(f'v_readfirstlane_b32 s{S_TAG}, v{V_E}')
    unpack5(a, X, XF)
    a(f's_add_u32 s{S_TAG}, s{S_TAG}, 1')
    for i in range(24): a(f'v_mov_b32 v{V_ACC+i}, 0')
    layernorm(a, XF, V_T+4)
    for j in range(5): a(f'v_cvt_pk_bf16_f32 v{X+j}, v{XF+2*j}, v{XF+2*j+1}')
    a(f's_mul_i32 s{S_T2}, s{S_WAVE}, 1280', f'v_lshlrev_b32 v{V_T}, 2, v{V_LANE}', f'v_add_u32 v{V_T}, s{S_T2}, v{V_T}')
    for j in range(5): a(f'ds_write_b32 v{V_T}, v{X+j} offset:{L_XN+256*j}')
    a(f's_lshl_b32 s{S_T0}, s70, 1', f's_add_u32 s{S_T0}, s{S_T0}, s{S_T2}', f'v_lshrrev_b32 v{V_T}, 3, v{V_LANE}', f'v_lshlrev_b32 v{V_T}, 1, v{V_T}', f'v_add_u32 v{V_T}, s{S_T0}, v{V_T}')
    a('s_waitcnt lgkmcnt(0)')
    for u in range(3): a(f'ds_read_u16 v{X+u}, v{V_T} offset:{L_XN+64*u}')
    w3 = a.label('w3'); w3d = a.label('w3d')
    a(f's_cmp_ge_u32 s{S_WAVE}, 3', f's_cbranch_scc1 {w3}', f's_waitcnt lgkmcnt(0) vmcnt({NC+6*P})', f's_branch {w3d}',
      f'{w3}:', 's_waitcnt lgkmcnt(0) vmcnt(0)', f'{w3d}:')
    NE = OPT['wsplit']
    if NE:
        ske = a.label('ske')
        role_branch(a, lambda: w_setup(a), lambda: m_setup(a))
        a(f's_cmp_ge_u32 s{S_WAVE}, 3', f's_cbranch_scc1 {ske}')
        role_branch(a, lambda: [a(l) for l in w_loads()[:NE]], lambda: [a(l) for l in m_loads()[10:10+NE]])
        a(f'{ske}:')
    stamp(a, 12)
    skip = a.label('q3b')
    for u in range(3):
        if u == 2: a(f's_cmp_ge_u32 s{S_WAVE}, 2', f's_cbranch_scc1 {skip}')
        a(f'v_lshlrev_b32 v{X+4}, 16, v{X+u}')
        pv_unit(a, W+12*u, X+u, X+4)
    a(f'{skip}:')
    acc_reduce_write(a, L_A, V_T)
    a('s_waitcnt lgkmcnt(0)', 's_barrier')
    stamp(a, 1)
    gat = a.label('gat'); qrdy = a.label('qrdy')
    a(f's_cmp_ge_u32 s{S_WAVE}, 3', f's_cbranch_scc1 {gat}')
    a(f'v_lshlrev_b32 v{V_T}, 2, v0')
    for w in range(4): a(f'ds_read_b32 v{96+w}, v{V_T} offset:{L_A+768*w}')
    a(f's_lshl_b32 s{S_T0}, s{S_ROW}, 11', f's_add_u32 s{S_T0}, s{S_T0}, {QP2}', f'v_lshlrev_b32 v{V_T}, 3, v0', 's_waitcnt lgkmcnt(0)')
    a('v_add_f32 v96, v96, v97', 'v_add_f32 v98, v98, v99', f'v_mov_b32 v97, s{S_TAG}', 'v_add_f32 v96, v96, v98')
    a(f'buffer_store_dwordx2 v[96:97], v{V_T}, {WS}, s{S_T0} offen sc1')
    if OPT['wmode'] == 1: a('s_waitcnt vmcnt(0)')
    if OPT['wmode'] <= 1:
        if NE:
            role_branch(a, lambda: [a(l) for l in w_loads()[NE:]], lambda: [a(l) for l in m_loads()[:10] + m_loads()[10+NE:]])
        else:
            role_branch(a, lambda: w_weights(a), lambda: m_weights(a))
    a(f's_branch {qrdy}')
    a(f'{gat}:')
    a(f's_lshl_b32 s{S_T0}, s{S_HEAD}, 14', f's_add_u32 s{S_T0}, s{S_T0}, {QP2}')
    a(f's_add_u32 s{S_T1}, s{S_T0}, 4096', f's_add_u32 s{S_T2}, s{S_T0}, 8192', f's_add_u32 s{S_T3}, s{S_T0}, 12288', f'v_lshlrev_b32 v{V_T}, 3, v{V_LANE}')
    def qissue(base):
        for s in range(8):
            for j in range(3):
                r = base + 2*(3*s+j)
                a(f'buffer_load_dwordx2 v[{r}:{r+1}], v{V_T}, {WS}, s{S_T0 + s//2} offen offset:{2048*(s&1)+512*j} sc1')
    def qcheck(base):
        tags = [base + 2*i + 1 for i in range(24)]
        a(f'v_min3_u32 v{V_T+2}, v{tags[0]}, v{tags[1]}, v{tags[2]}', f'v_max3_u32 v{V_T+3}, v{tags[0]}, v{tags[1]}, v{tags[2]}')
        for i in range(3, 23, 2):
            a(f'v_min3_u32 v{V_T+2}, v{V_T+2}, v{tags[i]}, v{tags[i+1]}', f'v_max3_u32 v{V_T+3}, v{V_T+3}, v{tags[i]}, v{tags[i+1]}')
        a(f'v_min_u32 v{V_T+2}, v{V_T+2}, v{tags[23]}', f'v_max_u32 v{V_T+3}, v{V_T+3}, v{tags[23]}')
        a(f'v_xor_b32 v{V_T+2}, s{S_TAG}, v{V_T+2}', f'v_xor_b32 v{V_T+3}, s{S_TAG}, v{V_T+3}', f'v_or_b32 v{V_T+2}, v{V_T+2}, v{V_T+3}')
        a(f'v_cmp_ne_u32 vcc, 0, v{V_T+2}')
    def qpost(base):
        for j in range(3):
            for s in range(1, 8): a(f'v_add_f32 v{base+2*j}, v{base+2*j}, v{base+2*(3*s+j)}')
            a(f'v_cvt_pk_bf16_f32 v{base+2*j}, v{base+2*j}, v{base+2*j}')
            a(f'ds_write_b16 v{V_T+6+j}, v{base+2*j} offset:{L_SM+64}')
    for j in range(3):
        a(f'v_add_u32 v{V_T+1}, {64*j}, v{V_LANE}', f'v_mul_u32_u24 v{V_T+2}, 2731, v{V_T+1}', f'v_lshrrev_b32 v{V_T+2}, 16, v{V_T+2}',
          f'v_mul_u32_u24 v{V_T+3}, 24, v{V_T+2}', f'v_sub_u32 v{V_T+3}, v{V_T+1}, v{V_T+3}',
          f'v_lshrrev_b32 v{V_T+4}, 3, v{V_T+3}', f'v_and_b32 v{V_T+3}, 7, v{V_T+3}', f'v_lshlrev_b32 v{V_T+4}, 6, v{V_T+4}',
          f'v_lshl_add_u32 v{V_T+4}, v{V_T+2}, 3, v{V_T+4}', f'v_add_lshl_u32 v{V_T+6+j}, v{V_T+4}, v{V_T+3}, 1')
    lbl = a.label('qspin'); ok = a.label('qok'); qjoin = a.label('qjoin')
    if OPT['qov']:
        okb = a.label('qokb')
        a(f's_mov_b32 s{S_SPIN}, 0')
        qissue(64)
        a(f'{lbl}:')
        qissue(116)
        a('s_waitcnt vmcnt(24)'); qcheck(64); a(f's_cbranch_vccz {ok}')
        qissue(64)
        a('s_waitcnt vmcnt(24)'); qcheck(116); a(f's_cbranch_vccz {okb}')
        a(f's_add_u32 s{S_SPIN}, s{S_SPIN}, 1', f's_cmp_lt_u32 s{S_SPIN}, 100000', f's_cbranch_scc1 {lbl}', f's_branch {ok}')
        a(f'{okb}:')
        qpost(116)
        a(f's_branch {qjoin}', f'{ok}:')
    else:
        spin_begin(a, lbl)
        qissue(64)
        a('s_waitcnt vmcnt(0)'); qcheck(64)
        a(f's_cbranch_vccz {ok}', f's_add_u32 s{S_SPIN}, s{S_SPIN}, 1', f's_cmp_lt_u32 s{S_SPIN}, 200000', f's_cbranch_scc1 {lbl}', f'{ok}:')
    qpost(64)
    a(f'{qjoin}:')
    stamp(a, 13)
    srd(a, SRD_A, P_DBG, 256)
    a(f'v_mov_b32 v{V_T}, 1', 's_mov_b64 exec, 1', f'buffer_atomic_add v{V_T}, v{V_ZERO}, {R(SRD_A)}, 0 offen', 's_mov_b64 exec, -1')
    if OPT['wmode'] <= 1: role_branch(a, lambda: w_weights(a), lambda: m_weights(a))
    a(f'{qrdy}:')
    a('s_waitcnt lgkmcnt(0)', 's_barrier')
    a(f'v_and_b32 v{V_T}, 7, v{V_LANE}', f'v_lshlrev_b32 v{V_T}, 4, v{V_T}')
    for j in range(3): a(f'ds_read_b128 v[{V_Q+4*j}:{V_Q+4*j+3}], v{V_T} offset:{L_SM+64+128*j}')

def late_loads(a):
    srd(a, SRD_E, P_DBG, 256)
    a(f'buffer_load_dword v{V_DBG}, v{V_ZERO}, {R(SRD_E)}, 0 offen sc1')
    sk = a.label('lx')
    a('s_cmp_lt_u32 s2, 160', f's_cbranch_scc1 {sk}')
    srd(a, SRD_D, P_X, 1280); srd(a, SRD_E, P_WR, 1280)
    a(f'v_lshlrev_b32 v50, 2, v{V_LANE}')
    for j in range(5): a(f'buffer_load_dword v{V_XW+j}, v50, {R(SRD_D)}, 0 offen offset:{256*j}')
    for j in range(5): a(f'buffer_load_dword v{V_XW+5+j}, v50, {R(SRD_E)}, 0 offen offset:{256*j}')
    a(f'{sk}:')
    if OPT['cpf2']: code_prefetch(a, 'L_tail_start', 'L_code_end', 1, 50)

def stream(a):
    P, NS = OPT['P'], OPT['NS']
    static_next(a); setoff(a); issue(a, V_RING)
    NWX = 0
    if OPT['wmode'] == 2:
        role_branch(a, lambda: w_weights(a), lambda: m_weights(a)); NWX = NW_W
    for i in range(24): a(f'v_mov_b32 v{V_ACC+i}, 0')
    a(f'v_mov_b32 v{V_M}, 0x{NEGBIG:08x}', f'v_mov_b32 v{V_L}, 0', 's_waitcnt lgkmcnt(0)')
    if P:
        sk = a.label('pfs')
        a(f's_cmp_ge_u32 s{S_WAVE}, 3', f's_cbranch_scc1 {sk}', f's_waitcnt vmcnt({6+NWX})')
        for k in range(P): compute_unit(a, PF + 24*k)
        a(f'{sk}:')
    stamp(a, 2)
    loop = a.label('loop'); done = a.label('sdone'); late = a.label('late')
    drains = []; backs = []; pres = []
    NPRE = OPT['npre'] if OPT['wmode'] == 3 else 0
    if NPRE:
        role_branch(a, lambda: w_setup(a), lambda: m_setup(a))
        a(f's_mov_b32 s{S_PRE}, 0')
    def prepare():
        a(f's_mov_b32 s{S_NX}, s{S_SU}', f's_add_u32 s{S_SU}, s{S_SU}, 32'); setoff(a)
        a(f's_cmp_ge_u32 s{S_K}, {NS}')
    if OPT['fast']:
        prepare()
    a(f'{loop}:')
    for t in range(2):
        a('s_waitcnt vmcnt(0)')
        dyn = a.label('dyn'); cont = a.label('cont'); dl = a.label('drain'); drains.append((dl, t)); sw = a.label('sw'); backs.append((sw, cont))
        if OPT['fast']:
            a(f's_cbranch_scc1 {dyn}')
            issue(a, V_RING + 24*((t+1) % 2))
            a(f's_add_u32 s{S_K}, s{S_K}, 1', f's_cmp_eq_u32 s{S_K}, {NS}', f's_cbranch_scc1 {sw}')
            a(f'{cont}:')
        else:
            a(f's_cmp_ge_u32 s{S_K}, {NS}', f's_cbranch_scc1 {dyn}')
            static_next(a)
            a(f's_cmp_lt_u32 s{S_K}, {NS}', f's_cbranch_scc0 {sw}')
            a(f'{cont}:')
            setoff(a)
            issue(a, V_RING + 24*((t+1) % 2))
        if NPRE:
            pl = a.label('pre'); pb = a.label('preb'); pres.append((pl, pb, t))
            a(f's_cmp_lt_u32 s{S_PRE}, {NPRE}', f's_cbranch_scc1 {pl}', f'{pb}:')
        compute_unit(a, V_RING + 24*t)
        if OPT['fast']: prepare()
        if t == 0:
            nxt = a.label('n1'); a(f's_branch {nxt}')
        else:
            a(f's_branch {loop}')
        a(f'{dyn}:')
        a(f'v_readfirstlane_b32 s{S_NX}, v{V_ATOM}', 's_nop 0', f's_add_u32 s{S_NX}, s{S_NX}, {32*NS}', f's_cmp_ge_u32 s{S_NX}, 4096', f's_cbranch_scc1 {dl}')
        if OPT['fast']:
            setoff(a); issue(a, V_RING + 24*((t+1) % 2)); atomic(a)
        else:
            atomic(a)
        a(f's_branch {cont}')
        if t == 0: a(f'{nxt}:')
    for pl, pb, t in pres:
        a(f'{pl}:')
        ks = [k for k in range(NPRE) if k % 2 == t]
        ents = [(k, a.label('pe')) for k in ks]
        for k, e in ents[:-1]: a(f's_cmp_eq_u32 s{S_PRE}, {k}', f's_cbranch_scc1 {e}')
        a(f's_branch {ents[-1][1]}')
        for k, e in ents:
            a(f'{e}:')
            wl, ml = w_loads(), m_loads()
            pw, pm = -(-len(wl) // NPRE), -(-len(ml) // NPRE)
            role_branch(a, lambda: [a(l) for l in wl[pw*k:pw*(k+1)]], lambda: [a(l) for l in ml[pm*k:pm*(k+1)]])
            a(f's_add_u32 s{S_PRE}, s{S_PRE}, 1', f's_branch {pb}')
    for sw, cont in backs:
        a(f'{sw}:')
        atomic(a); late_loads(a)
        a(f's_branch {cont}')
    for dl, t in drains:
        a(f'{dl}:'); compute_unit(a, V_RING + 24*t); a(f's_branch {done}')
    a(f'{done}:')

def phase_t1(a):
    t = V_T
    a('s_nop 2', f'v_mov_b32 v{t+2}, v{V_M}')
    groups_red(a, t+2, t+3, 'v_max_f32')
    a(f'v_sub_f32 v{t+4}, v{V_M}, v{t+2}', f'v_mul_f32 v{t+4}, s{S_LOG2E}, v{t+4}', f'v_exp_f32 v{t+4}, v{t+4}', 's_nop 0', f'v_mul_f32 v{V_L}, v{V_L}, v{t+4}')
    for i in range(12): a(f'v_pk_mul_f32 v[{V_ACC+2*i}:{V_ACC+2*i+1}], v[{V_ACC+2*i}:{V_ACC+2*i+1}], v[{t+4}:{t+5}] op_sel_hi:[1,0]')
    groups_red(a, V_L, t+3, 'v_add_f32')
    a(f'v_mov_b32 v{t+3}, v{V_L}', f's_lshl_b32 s{S_T1}, s{S_WAVE}, 3', f'v_mov_b32 v{t+6}, s{S_T1}', f'ds_write_b64 v{t+6}, v[{t+2}:{t+3}] offset:{L_SM}')
    acc_reduce_write(a, L_A, t+6)
    a('s_waitcnt lgkmcnt(0)', 's_barrier')
    a(f'ds_read_b128 v[100:103], v{V_ZERO} offset:{L_SM}', f'ds_read_b128 v[104:107], v{V_ZERO} offset:{L_SM+16}', f'v_lshlrev_b32 v{t}, 2, v0')
    for w in range(4): a(f'ds_read_b32 v{96+w}, v{t} offset:{L_A+768*w}')
    a(f's_lshl_b32 s{S_T0}, s{S_ROW}, 10', f's_add_u32 s{S_T0}, s{S_T0}, {OP}', 's_waitcnt lgkmcnt(4)')
    a('v_max_f32 v108, v100, v102', 'v_max3_f32 v108, v108, v104, v106')
    for w in range(4): a(f'v_sub_f32 v{110+w}, v{100+2*w}, v108', f'v_mul_f32 v{110+w}, s{S_LOG2E}, v{110+w}')
    for w in range(4): a(f'v_exp_f32 v{110+w}, v{110+w}')
    a('s_waitcnt lgkmcnt(0)', 'v_mul_f32 v96, v96, v110', 'v_mul_f32 v109, v101, v110')
    for w in range(1, 4): a(f'v_fmac_f32 v96, v{96+w}, v{110+w}', f'v_fmac_f32 v109, v{101+2*w}, v{110+w}')
    a('v_cmp_eq_u32 vcc, 192, v0', 's_nop 1', 'v_cndmask_b32 v96, v96, v108, vcc', 'v_cmp_eq_u32 vcc, 193, v0', 's_nop 1', 'v_cndmask_b32 v96, v96, v109, vcc')
    a('v_cmp_lt_u32 vcc, 193, v0', 's_nop 1', f'v_cndmask_b32 v96, v96, v{V_ZERO}, vcc')
    a('v_cmp_gt_u32 vcc, 196, v0', 's_and_saveexec_b64 s[34:35], vcc')
    sk = a.label('t1s')
    a(f's_cbranch_execz {sk}', f'buffer_store_dword v96, v{t}, {WS}, s{S_T0} offen sc1', f'{sk}:', 's_mov_b64 exec, s[34:35]')

def dbg_check(a):
    ok = a.label('dok'); lp = a.label('dlp')
    a(f'v_readfirstlane_b32 s{S_T0}, v{V_DBG}', 's_nop 0', f's_cmp_ge_u32 s{S_T0}, 256', f's_cbranch_scc1 {ok}')
    srd(a, SRD_A, P_DBG, 256)
    a(f's_mov_b32 s{S_SPIN}, 0', f'{lp}:', f'buffer_load_dword v{V_DBG}, v{V_ZERO}, {R(SRD_A)}, 0 offen sc1', 's_waitcnt vmcnt(0)')
    a(f'v_readfirstlane_b32 s{S_T0}, v{V_DBG}', 's_nop 0', f's_cmp_ge_u32 s{S_T0}, 256', f's_cbranch_scc1 {ok}')
    a(f's_add_u32 s{S_SPIN}, s{S_SPIN}, 1', f's_cmp_lt_u32 s{S_SPIN}, 200000', f's_cbranch_scc1 {lp}', f'{ok}:')
    sk = a.label('ep')
    a(f's_or_b32 s{S_T0}, s2, s{S_WAVE}', f's_cmp_lg_u32 s{S_T0}, 0', f's_cbranch_scc1 {sk}')
    a(f'v_mov_b32 v{V_T}, s{S_TAG}', f's_mov_b32 s{S_T0}, {EPOCH}', 's_mov_b64 exec, 1', f'buffer_store_dword v{V_T}, v{V_ZERO}, {WS}, s{S_T0} offen sc1', 's_mov_b64 exec, -1', f'{sk}:')

def phase_w(a):
    a(f's_and_b32 s{S_T0}, s2, 7', f's_lshl_b32 s{S_T0}, s{S_T0}, 2', f's_add_u32 s{S_T0}, s{S_T0}, s{S_WAVE}',
      f's_lshl_b32 s{S_T0}, s{S_T0}, 13', f's_add_u32 s{S_T0}, s{S_T0}, {OP}', f's_add_u32 s{S_T1}, s{S_T0}, 4096', f'v_lshlrev_b32 v{V_T}, 4, v{V_LANE}')
    a(f's_mul_i32 s{S_T2}, s{S_WAVE}, 768', f'v_add_u32 v{V_T+2}, s{S_T2}, v{V_T}')
    a('s_bfm_b64 exec, 49, 0')
    O = 108
    def w_issue(Pr):
        for s in range(8): a(f'buffer_load_dwordx4 v[{Pr+4*s}:{Pr+4*s+3}], v{V_T}, {WS}, s{S_T0 if s < 4 else S_T1} offen offset:{1024*(s&3)} sc1')
    def w_post(Pr):
        Mx, Ls, Fs = 96, 97, 98
        a(f'v_max3_f32 v{Mx}, v{Pr}, v{Pr+4}, v{Pr+8}', f'v_max3_f32 v{Mx}, v{Mx}, v{Pr+12}, v{Pr+16}', f'v_max3_f32 v{Mx}, v{Mx}, v{Pr+20}, v{Pr+24}', f'v_max_f32 v{Mx}, v{Mx}, v{Pr+28}')
        for s in range(8): a(f'v_sub_f32 v{Fs+s}, v{Pr+4*s}, v{Mx}', f'v_mul_f32 v{Fs+s}, s{S_LOG2E}, v{Fs+s}')
        for s in range(8): a(f'v_exp_f32 v{Fs+s}, v{Fs+s}')
        a(f'v_mul_f32 v{Ls}, v{Pr+1}, v{Fs}')
        for s in range(1, 8): a(f'v_fmac_f32 v{Ls}, v{Pr+4*s+1}, v{Fs+s}')
        a(f'v_rcp_f32 v{Ls}, v{Ls}', 's_nop 0')
        for s in range(8): a(f'v_mul_f32 v{Fs+s}, v{Fs+s}, v{Ls}')
        for s in range(8): a(f'v_readlane_b32 s{S_G+s}, v{Fs+s}, 48')
        a('s_nop 1')
        for e in range(4): a(f'v_mul_f32 v{O+e}, s{S_G}, v{Pr+e}')
        for s in range(1, 8):
            for e in range(4): a(f'v_fmac_f32 v{O+e}, s{S_G+s}, v{Pr+4*s+e}')
    if OPT['ov']:
        poll2(a, w_issue, 32, 64, 128, 8, w_post, V_T+1)
    else:
        lbl = a.label('wspin'); spin_begin(a, lbl); w_issue(64); a('s_waitcnt vmcnt(0)'); spin_end(a, lbl, list(range(64, 96)), V_T+1); w_post(64)
    stamp(a, 5)
    for e in range(4): bf16r(a, O+e, O+e)
    a('s_bfm_b64 exec, 48, 0', f'ds_write_b128 v{V_T+2}, v[{O}:{O+3}] offset:{L_OV}', 's_mov_b64 exec, -1')
    a(f'v_lshrrev_b32 v{V_T}, 5, v{V_LANE}', f'v_mul_u32_u24 v{V_T}, 24, v{V_T}', f'v_bfe_u32 v{V_T+1}, v{V_LANE}, 2, 3', f'v_add_lshl_u32 v{V_T}, v{V_T}, v{V_T+1}, 2',
      f'v_add_u32 v{V_T}, s{S_T2}, v{V_T}', 's_waitcnt lgkmcnt(0)')
    U = 112
    for p in range(12): a(f'ds_read_b32 v{U+p}, v{V_T} offset:{L_OV+4*(48*(p&3)+8*(p>>2))}')
    A = 160
    for p in range(12):
        a(f's_waitcnt lgkmcnt({11-p})', f'v_lshrrev_b32 v{U+12+(p&1)}, 16, v{U+p}')
        for i in range(4):
            c0 = '0' if p == 0 else f'v{A+2*i}'; c1 = '0' if p == 0 else f'v{A+2*i+1}'
            a(f'v_dot2_f32_bf16 v{A+2*i}, v{WGT+4*p+i}, v{U+12+(p&1)}, {c0}', f'v_dot2_f32_bf16 v{A+2*i+1}, v{WGT+4*p+i}, v{U+p}, {c1}')
    a('s_nop 2')
    for d in ('row_ror:4', 'row_ror:8'):
        for i in range(8): dpp(a, 'v_add_f32', A+i, d)
    swap_reduce(a, A, 4, 'v_permlane16_swap_b32')
    a(f'v_and_b32 v{V_T}, 3, v{V_LANE}', f'v_lshlrev_b32 v{V_T}, 5, v{V_T}', f'v_bfe_u32 v{V_T+1}, v{V_LANE}, 4, 1', f'v_lshl_add_u32 v{V_T}, v{V_T+1}, 4, v{V_T}',
      f'v_lshrrev_b32 v{V_T+1}, 5, v{V_LANE}', f'v_lshl_add_u32 v{V_T}, v{V_T+1}, 3, v{V_T}', f's_lshl_b32 s{S_T0}, s{S_WAVE}, 7', f'v_add_u32 v{V_T}, s{S_T0}, v{V_T}')
    swap_reduce(a, A, 2, 'v_permlane32_swap_b32')
    a(f'ds_write_b64 v{V_T}, v[{A}:{A+1}] offset:{L_B}', 's_waitcnt lgkmcnt(0)', 's_barrier')
    done = a.label('wd')
    a(f's_cmp_ge_u32 s{S_WAVE}, 1', f's_cbranch_scc1 {done}')
    a(f'v_and_b32 v{V_T}, 31, v0', f'v_lshlrev_b32 v{V_T}, 2, v{V_T}')
    for w in range(4): a(f'ds_read_b32 v{U+w}, v{V_T} offset:{L_B+128*w}')
    a(f's_and_b32 s{S_T0}, s2, 7', f's_mul_i32 s{S_T0}, s{S_T0}, 2560', f's_lshr_b32 s{S_T1}, s2, 3', f's_lshl_b32 s{S_T1}, s{S_T1}, 7',
      f's_add_u32 s{S_T0}, s{S_T0}, s{S_T1}', f's_add_u32 s{S_T0}, s{S_T0}, {HP}', 's_bfm_b64 exec, 32, 0', 's_waitcnt lgkmcnt(0)')
    a(f'v_add_f32 v{U}, v{U}, v{U+1}', f'v_add_f32 v{U+2}, v{U+2}, v{U+3}', f'v_add_f32 v{U}, v{U}, v{U+2}')
    a(f'buffer_store_dword v{U}, v{V_T}, {WS}, s{S_T0} offen sc1', 's_mov_b64 exec, -1', f'{done}:')

H_HN, H_X = 70, 64
def phase_h(a):
    a(f's_mul_i32 s{S_T0}, s{S_WAVE}, 5120', f's_add_u32 s{S_T0}, s{S_T0}, {HP}', f's_add_u32 s{S_T1}, s{S_T0}, 2560', f'v_lshlrev_b32 v{V_T}, 3, v{V_LANE}')
    a(f's_mul_i32 s{S_T2}, s{S_WAVE}, 2560', f'v_add_u32 v{V_T+2}, s{S_T2}, v{V_T}')
    unpack5(a, V_XW, H_HN)
    Q = 160
    def h_issue(P):
        for b in range(2):
            for j in range(5): a(f'buffer_load_dwordx2 v[{P+10*b+2*j}:{P+10*b+2*j+1}], v{V_T}, {WS}, s{S_T0+b} offen offset:{512*j} sc1')
    def h_post(P):
        for i in range(10): a(f'v_add_f32 v{Q+i}, v{P+i}, v{P+10+i}')
    if OPT['ov']:
        poll2(a, h_issue, 20, 80, 140, 10, h_post, V_T+1)
    else:
        lbl = a.label('hspin'); spin_begin(a, lbl); h_issue(80); a('s_waitcnt vmcnt(0)'); spin_end(a, lbl, list(range(80, 100)), V_T+1); h_post(80)
    stamp(a, 7)
    for j in range(5): a(f'ds_write_b64 v{V_T+2}, v[{Q+2*j}:{Q+2*j+1}] offset:{L_C+512*j}')
    a('s_waitcnt lgkmcnt(0)', 's_barrier')
    Rr = 100
    for w in range(4):
        for j in range(5): a(f'ds_read_b64 v[{Rr+10*w+2*j}:{Rr+10*w+2*j+1}], v{V_T} offset:{L_C+2560*w+512*j}')
    a(f's_mul_i32 s{S_T0}, s{S_WAVE}, 1280', f'v_lshlrev_b32 v{V_T}, 2, v{V_LANE}', f'v_add_u32 v{V_T}, s{S_T0}, v{V_T}', 's_waitcnt lgkmcnt(0)')
    for i in range(10): a(f'v_add_f32 v{Rr+i}, v{Rr+i}, v{Rr+10+i}', f'v_add_f32 v{Rr+20+i}, v{Rr+20+i}, v{Rr+30+i}')
    for i in range(10): a(f'v_add_f32 v{Rr+i}, v{Rr+i}, v{Rr+20+i}')
    for j in range(5):
        i = 2*j
        a(f'v_cvt_pk_bf16_f32 v{V_T+1}, v{Rr+i}, v{Rr+i+1}', f'v_lshlrev_b32 v{Rr+i}, 16, v{V_T+1}', f'v_and_b32 v{Rr+i+1}, 0xffff0000, v{V_T+1}',
          f'v_add_f32 v{H_HN+i}, v{H_HN+i}, v{Rr+i}', f'v_add_f32 v{H_HN+i+1}, v{H_HN+i+1}, v{Rr+i+1}', f'v_cvt_pk_bf16_f32 v{H_X+j}, v{H_HN+i}, v{H_HN+i+1}',
          f'v_lshlrev_b32 v{H_HN+i}, 16, v{H_X+j}', f'v_and_b32 v{H_HN+i+1}, 0xffff0000, v{H_X+j}')
        a(f'ds_write_b32 v{V_T}, v{H_X+j} offset:{L_H+256*j}')
    layernorm(a, H_HN, V_T+4)
    for j in range(5):
        a(f'v_cvt_pk_bf16_f32 v{H_X+j}, v{H_HN+2*j}, v{H_HN+2*j+1}', f'ds_write_b32 v{V_T}, v{H_X+j} offset:{L_XN+256*j}')

def phase_m(a):
    U, A = 80, 96
    a(f'v_and_b32 v{V_T}, 127, v0', f'v_lshrrev_b32 v{V_T}, 1, v{V_T}', f'v_lshlrev_b32 v{V_T}, 1, v{V_T}', f's_mul_i32 s{S_T0}, s{S_WAVE}, 1280', f'v_add_u32 v{V_T}, s{S_T0}, v{V_T}', 's_waitcnt vmcnt(0) lgkmcnt(0)')
    for p in range(10): a(f'ds_read_u16 v{U+p}, v{V_T} offset:{L_XN+128*p}')
    for p in range(10):
        a(f's_waitcnt lgkmcnt({9-p})', f'v_lshlrev_b32 v{U+10+(p&1)}, 16, v{U+p}')
        for i in range(4):
            c0 = '0' if p == 0 else f'v{A+2*i}'; c1 = '0' if p == 0 else f'v{A+2*i+1}'
            a(f'v_dot2_f32_bf16 v{A+2*i}, v{WGT+4*p+i}, v{U+p}, {c0}', f'v_dot2_f32_bf16 v{A+2*i+1}, v{WGT+4*p+i}, v{U+10+(p&1)}, {c1}')
    a('s_nop 2')
    for d in ('quad_perm:[2,3,0,1]', 'row_ror:4', 'row_ror:8'):
        for i in range(8): dpp(a, 'v_add_f32', A+i, d)
    swap_reduce(a, A, 4, 'v_permlane16_swap_b32')
    a(f'v_and_b32 v{V_T}, 1, v{V_LANE}', f'v_lshlrev_b32 v{V_T}, 5, v{V_T}', f'v_bfe_u32 v{V_T+1}, v{V_LANE}, 4, 1', f'v_lshl_add_u32 v{V_T}, v{V_T+1}, 4, v{V_T}',
      f'v_lshrrev_b32 v{V_T+1}, 5, v{V_LANE}', f'v_lshl_add_u32 v{V_T}, v{V_T+1}, 3, v{V_T}', f's_lshl_b32 s{S_T0}, s{S_WAVE}, 6', f'v_add_u32 v{V_T}, s{S_T0}, v{V_T}')
    swap_reduce(a, A, 2, 'v_permlane32_swap_b32')
    a(f'ds_write_b64 v{V_T}, v[{A}:{A+1}] offset:{L_D}', 's_waitcnt lgkmcnt(0)', 's_barrier')
    a(f'v_and_b32 v{V_T}, 15, v{V_LANE}', f'v_lshlrev_b32 v{V_T}, 2, v{V_T}')
    for k in range(4): a(f'ds_read_b32 v{U+k}, v{V_T} offset:{L_D+64*k}')
    a(f's_lshl_b32 s{S_T0}, s{S_WAVE}, 7', f'v_lshlrev_b32 v{V_T+1}, 2, v{V_LANE}', f'v_add_u32 v{V_T+1}, s{S_T0}, v{V_T+1}', 's_waitcnt lgkmcnt(0)')
    a(f'v_add_f32 v{U}, v{U}, v{U+1}', f'v_add_f32 v{U+2}, v{U+2}, v{U+3}')
    bf16r(a, U, U); bf16r(a, U+2, U+2)
    a(f'v_mul_f32 v{U+1}, s{S_LOG2E}, v{U}', f'v_sub_f32 v{U+1}, 0, v{U+1}', f'v_exp_f32 v{U+1}, v{U+1}', 's_nop 0', f'v_add_f32 v{U+1}, 1.0, v{U+1}', f'v_rcp_f32 v{U+1}, v{U+1}', 's_nop 0', f'v_mul_f32 v{U}, v{U}, v{U+1}')
    bf16r(a, U, U)
    a(f'v_mul_f32 v{U}, v{U}, v{U+2}')
    bf16r(a, U, U)
    a(f'v_cmp_gt_u32 vcc, 16, v{V_LANE}', 's_nop 1', f'v_cndmask_b32 v{U}, v{V_ZERO}, v{U}, vcc')
    a('s_bfm_b64 exec, 18, 0', f'ds_write_b32 v{V_T+1}, v{U} offset:{L_E}', 's_mov_b64 exec, -1')
    a(f'v_mul_u32_u24 v{V_T}, 205, v0', f'v_lshrrev_b32 v{V_T}, 14, v{V_T}', f'v_lshl_add_u32 v{V_T+1}, v{V_T}, 2, s{S_T0}', 's_waitcnt lgkmcnt(0)')
    for i in range(6): a(f'ds_read_b32 v{U+i}, v{V_T+1} offset:{L_E+12*i}')
    a(f'v_mul_u32_u24 v{V_T+2}, 80, v{V_T}', f'v_sub_u32 v{V_T+2}, v0, v{V_T+2}', f'v_lshlrev_b32 v{V_T+2}, 5, v{V_T+2}', f'v_mul_u32_u24 v{V_T}, 2560, v{V_T}', f'v_add_u32 v{V_T+2}, v{V_T+2}, v{V_T}')
    for i in range(6):
        a(f's_waitcnt lgkmcnt({5-i})', f'v_lshrrev_b32 v{U+6+(i&1)}, 16, v{U+i}')
        for e in range(4):
            c0 = '0' if i == 0 else f'v{A+2*e}'; c1 = '0' if i == 0 else f'v{A+2*e+1}'
            a(f'v_dot2_f32_bf16 v{A+2*e}, v{WGT+40+4*i+e}, v{U+6+(i&1)}, {c0}', f'v_dot2_f32_bf16 v{A+2*e+1}, v{WGT+40+4*i+e}, v{U+i}, {c1}')
    a('v_cmp_gt_u32 vcc, 240, v0', 's_and_saveexec_b64 s[34:35], vcc', 's_nop 1')
    a(f'ds_write_b128 v{V_T+2}, v[{A}:{A+3}] offset:{L_F}', f'ds_write_b128 v{V_T+2}, v[{A+4}:{A+7}] offset:{L_F+16}')
    a('s_mov_b64 exec, s[34:35]', 's_waitcnt lgkmcnt(0)', 's_barrier')
    done = a.label('md')
    a('v_cmp_gt_u32 vcc, 160, v0', 's_and_saveexec_b64 s[34:35], vcc', f's_cbranch_execz {done}', f'v_lshlrev_b32 v{V_T}, 4, v0')
    for g in range(3): a(f'ds_read_b128 v[{U+4*g}:{U+4*g+3}], v{V_T} offset:{L_F+2560*g}')
    a(f'v_lshrrev_b32 v{V_T}, 2, v0', f'v_mul_u32_u24 v{V_T}, 6144, v{V_T}', f'v_and_b32 v{V_T+1}, 3, v0', f'v_lshl_add_u32 v{V_T}, v{V_T+1}, 4, v{V_T}',
      f's_lshl_b32 s{S_T0}, s{S_M}, 6', f's_add_u32 s{S_T0}, s{S_T0}, {YP}', 's_waitcnt lgkmcnt(0)')
    for e in range(4): a(f'v_add_f32 v{U+e}, v{U+e}, v{U+4+e}')
    for e in range(4): a(f'v_add_f32 v{U+e}, v{U+e}, v{U+8+e}')
    a(f'buffer_store_dwordx4 v[{U}:{U+3}], v{V_T}, {WS}, s{S_T0} offen sc1')
    a(f'{done}:', 's_mov_b64 exec, s[34:35]')

def phase_f(a):
    U = 80
    a(f'v_dot2_f32_bf16 v{V_SIG}, v{H_X}, v{V_XW+5}, 0')
    for j in range(1, 5): a(f'v_dot2_f32_bf16 v{V_SIG}, v{H_X+j}, v{V_XW+5+j}, v{V_SIG}')
    a(f's_mul_i32 s{S_T0}, s{S_M}, 6144', f's_add_u32 s{S_T0}, s{S_T0}, {YP}', f's_add_u32 s{S_T1}, s{S_T0}, 4096', f'v_lshlrev_b32 v{V_T}, 3, v0')
    wave_red(a, [V_SIG], [V_T+1])
    bf16r(a, V_SIG, V_SIG)
    a(f'v_mul_f32 v{V_SIG}, s{S_LOG2E}, v{V_SIG}', f'v_sub_f32 v{V_SIG}, 0, v{V_SIG}', f'v_exp_f32 v{V_SIG}, v{V_SIG}', 's_nop 0',
      f'v_add_f32 v{V_SIG}, 1.0, v{V_SIG}', f'v_rcp_f32 v{V_SIG}, v{V_SIG}', 's_nop 0')
    bf16r(a, V_SIG, V_SIG)
    a(f'v_and_b32 v{V_T+2}, 15, v0', f's_lshl_b32 s{S_T2}, s{S_M}, 4', f'v_add_u32 v{V_T+2}, s{S_T2}, v{V_T+2}', f'v_lshlrev_b32 v{V_T+2}, 1, v{V_T+2}')
    HH = 126
    a(f'ds_read_u16 v{HH}, v{V_T+2} offset:{L_H}', f'ds_read_u16 v{HH+1}, v{V_T+2} offset:{L_XN}')
    srd(a, SRD_A, P_OUT, 1280)
    Y = 100
    def f_issue(P):
        a(f'buffer_load_dwordx2 v[{P}:{P+1}], v{V_T}, {WS}, s{S_T0} offen sc1', f'buffer_load_dwordx2 v[{P+2}:{P+3}], v{V_T}, {WS}, s{S_T0} offen offset:2048 sc1',
          f'buffer_load_dwordx2 v[{P+4}:{P+5}], v{V_T}, {WS}, s{S_T1} offen sc1')
    def f_post(P):
        a(f'v_add_f32 v{Y}, v{P}, v{P+2}', f'v_add_f32 v{Y+1}, v{P+1}, v{P+3}', f'v_add_f32 v{Y}, v{Y}, v{P+4}', f'v_add_f32 v{Y+1}, v{Y+1}, v{P+5}')
    if OPT['ov']:
        poll2(a, f_issue, 6, 80, 88, 3, f_post, V_T+1)
    else:
        lbl = a.label('fspin'); spin_begin(a, lbl); f_issue(80); a('s_waitcnt vmcnt(0)'); spin_end(a, lbl, list(range(80, 86)), V_T+1); f_post(80)
    stamp(a, 10)
    a('s_nop 1'); dpp(a, 'v_add_f32', Y, 'row_ror:8'); dpp(a, 'v_add_f32', Y+1, 'row_ror:8')
    swap_reduce(a, Y, 1, 'v_permlane16_swap_b32')
    a(f'v_mov_b32 v{Y+1}, v{Y}', f'v_and_b32 v{V_T}, 7, v{V_LANE}', f'v_lshlrev_b32 v{V_T}, 3, v{V_T}', f'v_bfe_u32 v{V_T+1}, v{V_LANE}, 4, 1', f'v_lshl_add_u32 v{V_T}, v{V_T+1}, 2, v{V_T}',
      f's_lshl_b32 s{S_T0}, s{S_WAVE}, 6', f'v_add_u32 v{V_T}, s{S_T0}, v{V_T}')
    a(f'v_permlane32_swap_b32 v{Y}, v{Y+1}', 's_nop 0', f'v_add_f32 v{Y}, v{Y}, v{Y+1}')
    a(f'ds_write_b32 v{V_T}, v{Y} offset:{L_G}', 's_waitcnt lgkmcnt(0)', 's_barrier')
    done = a.label('fd')
    a(f's_cmp_ge_u32 s{S_WAVE}, 1', f's_cbranch_scc1 {done}')
    a(f'v_and_b32 v{V_T}, 15, v0', f'v_lshlrev_b32 v{V_T}, 2, v{V_T}')
    U = 104
    for w in range(4): a(f'ds_read_b32 v{U+w}, v{V_T} offset:{L_G+64*w}')
    a(f'v_lshlrev_b32 v{U+16}, 16, v{HH}', f'v_lshlrev_b32 v{U+17}, 16, v{HH+1}', 's_bfm_b64 exec, 16, 0', 's_waitcnt lgkmcnt(0)')
    a(f'v_add_f32 v{U}, v{U}, v{U+1}', f'v_add_f32 v{U+2}, v{U+2}, v{U+3}', f'v_add_f32 v{U}, v{U}, v{U+2}')
    bf16r(a, U, U)
    a(f'v_mul_f32 v{U}, v{U}, v{V_SIG}')
    bf16r(a, U, U)
    a(f'v_add_f32 v{U}, v{U+17}, v{U}')
    bf16r(a, U, U)
    a(f'v_add_f32 v{U}, v{U+16}, v{U}', f'v_cvt_pk_bf16_f32 v{U}, v{U}, v{U}')
    a(f'buffer_store_short v{U}, v{V_T+2}, {R(SRD_A)}, 0 offen', 's_mov_b64 exec, -1', f'{done}:')

def build():
    a = Asm()
    name = NAME_BASE + '_kernel'
    hdr = header([f'; @launch grid=(256,1,1) block=(256,1,1) lds={LDS_BYTES}'])
    a('.amdgcn_target "amdgcn-amd-amdhsa--gfx950"', '.text')
    end = a.label('end')
    a(f'.globl {name}', '.p2align 8', f'.type {name},@function', f'{name}:', 'L_code_start:')
    prologue(a, end)
    stamp(a, 0)
    startup(a)
    stream(a)
    stamp(a, 3)
    a('L_tail_start:')
    phase_t1(a)
    stamp(a, 4)
    dbg_check(a)
    rm = a.label('rolem'); fin = a.label('fin')
    a('s_cmp_ge_u32 s2, 160', f's_cbranch_scc1 {rm}')
    phase_w(a); stamp(a, 6)
    a(f's_branch {fin}', f'{rm}:')
    phase_h(a); stamp(a, 8)
    phase_m(a); stamp(a, 9)
    a(f's_cmp_ge_u32 s{S_M}, 40', f's_cbranch_scc1 {fin}')
    phase_f(a); stamp(a, 11)
    a(f'{fin}:', 's_waitcnt vmcnt(0) lgkmcnt(0)')
    stamp(a, 15)
    a(f'{end}:', 's_endpgm', 'L_code_end:')
    a('.section .rodata,"a"', '.p2align 6')
    a.lines.append(kernel_desc(name, 256, 102))
    return '\n'.join(hdr) + '\n' + a.text()

if __name__ == '__main__':
    for x in sys.argv[1:]:
        if x == 'stamp': OPT['stamp'] = 1
        elif '=' in x:
            k, v = x.split('='); assert k in OPT, k; OPT[k] = int(v)
    sys.stdout.write(build())
```

```python
import sys, struct
from asmlib import *

def f2u(x): return struct.unpack('<I', struct.pack('<f', x))[0]
SCALE = f2u(192 ** -0.5); LOG2E = f2u(1.4426950408889634); INV640 = f2u(1.0/640); EPS = f2u(1e-5); NEGBIG = f2u(-3.0e38)
KV_BYTES = 402653184; HEAD_BYTES = 12582912
CNT, OP, HP, YP, EPOCH, TS, QP2, WS_USED = 0x40000, 0x50000, 0x90000, 0xA0000, 0xE8000, 0xF0000, 0x100000, 0x200000
L_RED = 0
L_A, L_B, L_C, L_D, L_E, L_F, L_G = 0, 3072, 4096, 14336, 14592, 15104, 3072
L_XN = 24576
L_H = 29696
L_SM = 34816
L_OV = 35840
LDS_BYTES = 38912
S_WAVE = 3
SRD_K, SRD_V, SRD_WS, SRD_A, SRD_B = 8, 12, 16, 20, 24
S_HEAD, S_MEM, S_SCALE, S_LOG2E = 28, 29, 30, 31
S_T0, S_T1, S_T2, S_T3 = 32, 33, 34, 35
P_X, P_K, P_V, P_WQ, P_WO, P_BX, P_WR, P_WG = 36, 38, 40, 42, 44, 46, 48, 50
P_WU, P_WD, P_OUT, P_DBG, P_WS = 52, 54, 56, 58, 60
S_OFF, S_HB, S_CNT, S_NX, S_SPIN, S_M = 62, 63, 64, 65, 66, 67
S_G = 68
S_ROT, S_TAG, S_K, S_SU = 76, 77, 78, 79
S_ROW = 86
SRD_C, SRD_D, SRD_E = 88, 92, 96
V_LANE, V_OFFB, V_ZERO = 1, 2, 3
V_Q, V_ACC, V_M, V_L, V_T = 4, 16, 40, 41, 42
V_ATOM, V_SIG, V_E, V_DBG = 56, 57, 58, 59
V_CPF = 52
V_RING = 64
PF = 116
WGT = 192
V_XW = 176
WS = f's[{SRD_WS}:{SRD_WS+3}]'
OPT = dict(P=0, NS=120, hrot=37, cpf=1, cpf2=1, stamp=0, stampw=0, wmode=1, qov=1, npre=4, ov=0, fast=1, wsplit=6, dstamp=0)

def srd(a, reg, ptr, size):
    a(f's_mov_b32 s{reg}, s{ptr}', f's_and_b32 s{reg+1}, s{ptr+1}, 0xffff', f's_mov_b32 s{reg+2}, {size}', f's_mov_b32 s{reg+3}, 0x20000')
def R(a_): return f's[{a_}:{a_+3}]'
def stamp(a, slot):
    if not OPT['stamp']: return
    sk = a.label('ts')
    a(f"s_cmp_lg_u32 s{S_WAVE}, {OPT['stampw']}", f's_cbranch_scc1 {sk}')
    a('s_memrealtime s[80:81]', 's_waitcnt lgkmcnt(0)')
    a(f's_lshl_b32 s82, s2, 7', f's_add_u32 s82, s82, {TS + slot*8}')
    a('v_mov_b32 v62, s80', 'v_mov_b32 v63, s81', 's_mov_b64 s[84:85], exec', 's_mov_b64 exec, 1')
    a(f'buffer_store_dwordx2 v[62:63], v{V_ZERO}, {WS}, s82 offen')
    a('s_mov_b64 exec, s[84:85]', 's_nop 1')
    a(f'{sk}:')
def dstamp(a, word, neg=False):
    if not OPT['dstamp']: return
    sk = a.label('ds')
    a(f's_cmp_lg_u32 s{S_WAVE}, 0', f's_cbranch_scc1 {sk}')
    a('s_memrealtime s[80:81]', 's_waitcnt lgkmcnt(0)')
    if neg: a('s_not_b32 s80, s80')
    a(f's_mov_b32 s84, s{P_DBG}', f's_and_b32 s85, s{P_DBG+1}, 0xffff')
    a('v_mov_b32 v62, s80', f'v_mov_b32 v63, {4*word}', 's_mov_b64 s[82:83], exec', 's_mov_b64 exec, 1')
    a(f'global_atomic_umax v63, v62, s[84:85]')
    a('s_mov_b64 exec, s[82:83]', 's_nop 1')
    a(f'{sk}:')
def bf16r(a, dst, src):
    a(f'v_cvt_pk_bf16_f32 v{dst}, v{src}, v{src}', f'v_and_b32 v{dst}, 0xffff0000, v{dst}')
def dpp(a, ins, v, d): a(f'{ins}_dpp v{v}, v{v}, v{v} {d} row_mask:0xf bank_mask:0xf')
def wave_red(a, vs, ts, op='v_add_f32'):
    pad = max(0, 2 - (len(vs) - 1))
    for d in ('quad_perm:[1,0,3,2]', 'quad_perm:[2,3,0,1]', 'row_half_mirror', 'row_mirror'):
        a('s_nop 1')
        for v in vs: dpp(a, op, v, d)
    for p in ('v_permlane16_swap_b32', 'v_permlane32_swap_b32'):
        for v, t in zip(vs, ts): a(f'v_mov_b32 v{t}, v{v}')
        a('s_nop 1')
        for v, t in zip(vs, ts): a(f'{p} v{t}, v{v}')
        a('s_nop 0')
        for v, t in zip(vs, ts): a(f'{op} v{v}, v{v}, v{t}')
def groups_red(a, v, t, op):
    a('s_nop 1'); dpp(a, op, v, 'row_ror:8')
    for p in ('v_permlane16_swap_b32', 'v_permlane32_swap_b32'):
        a(f'v_mov_b32 v{t}, v{v}', 's_nop 1', f'{p} v{t}, v{v}', 's_nop 0', f'{op} v{v}, v{v}, v{t}')
def swap_reduce(a, base, n, p):
    a('s_nop 1')
    for i in range(n): a(f'{p} v{base+i}, v{base+n+i}')
    a('s_nop 0')
    for i in range(n): a(f'v_add_f32 v{base+i}, v{base+i}, v{base+n+i}')
def unpack5(a, src, dst):
    for j in range(5): a(f'v_lshlrev_b32 v{dst+2*j}, 16, v{src+j}', f'v_and_b32 v{dst+2*j+1}, 0xffff0000, v{src+j}')
def layernorm(a, x, t):
    s1, s2, u, w2, sd, mean = t, t+1, t+2, t+3, t+4, t+5
    a('s_nop 0', f'v_readfirstlane_b32 s{S_T0}, v{x}', 's_nop 1')
    a(f'v_subrev_f32 v{s1}, s{S_T0}, v{x}', f'v_mul_f32 v{s2}, v{s1}, v{s1}')
    for i in range(1, 10):
        a(f'v_subrev_f32 v{u}, s{S_T0}, v{x+i}', f'v_add_f32 v{s1}, v{s1}, v{u}', f'v_fmac_f32 v{s2}, v{u}, v{u}')
    wave_red(a, [s1, s2], [u, w2])
    a(f'v_mul_f32 v{s1}, 0x{INV640:08x}, v{s1}', f'v_mul_f32 v{s2}, 0x{INV640:08x}, v{s2}')
    a(f'v_fma_f32 v{s2}, -v{s1}, v{s1}, v{s2}', f'v_max_f32 v{s2}, 0, v{s2}')
    a(f'v_add_f32 v{mean}, s{S_T0}, v{s1}')
    bf16r(a, s2, s2)
    a(f'v_add_f32 v{s2}, 0x{EPS:08x}, v{s2}')
    bf16r(a, s2, s2)
    a(f'v_sqrt_f32 v{sd}, v{s2}')
    bf16r(a, mean, mean)
    bf16r(a, sd, sd)
    a(f'v_rcp_f32 v{sd}, v{sd}')
    for i in range(0, 10, 2):
        a(f'v_sub_f32 v{x+i}, v{x+i}, v{mean}', f'v_sub_f32 v{x+i+1}, v{x+i+1}, v{mean}', f'v_cvt_pk_bf16_f32 v{u}, v{x+i}, v{x+i+1}',
          f'v_lshlrev_b32 v{x+i}, 16, v{u}', f'v_and_b32 v{x+i+1}, 0xffff0000, v{u}', f'v_mul_f32 v{x+i}, v{x+i}, v{sd}', f'v_mul_f32 v{x+i+1}, v{x+i+1}, v{sd}')
def pv_unit(a, vreg, plo, phi):
    for j in range(3):
        for i in range(4):
            a(f'v_dot2_f32_bf16 v{V_ACC+8*j+2*i}, v{vreg+4*j+i}, v{plo}, v{V_ACC+8*j+2*i}')
            a(f'v_dot2_f32_bf16 v{V_ACC+8*j+2*i+1}, v{vreg+4*j+i}, v{phi}, v{V_ACC+8*j+2*i+1}')
def acc_reduce_write(a, lbase, t):
    a('s_nop 2')
    for i in range(24): dpp(a, 'v_add_f32', V_ACC+i, 'row_ror:8')
    swap_reduce(a, V_ACC, 12, 'v_permlane16_swap_b32')
    a(f'v_and_b32 v{t}, 7, v{V_LANE}', f'v_mul_u32_u24 v{t}, 96, v{t}', f'v_bfe_u32 v{t+1}, v{V_LANE}, 4, 1', f'v_mul_u32_u24 v{t+1}, 48, v{t+1}', f'v_add_u32 v{t}, v{t}, v{t+1}',
      f'v_lshrrev_b32 v{t+1}, 5, v{V_LANE}', f'v_mul_u32_u24 v{t+1}, 24, v{t+1}', f's_mul_i32 s{S_T0}, s{S_WAVE}, 768', f'v_add3_u32 v{t}, v{t}, v{t+1}, s{S_T0}')
    swap_reduce(a, V_ACC, 6, 'v_permlane32_swap_b32')
    for i in range(3): a(f'ds_write_b64 v{t}, v[{V_ACC+2*i}:{V_ACC+2*i+1}] offset:{lbase+8*i}')
def m_index(a):
    a(f's_sub_u32 s{S_T0}, s2, 160', f's_and_b32 s{S_T1}, s{S_T0}, 7', f's_mul_i32 s{S_T1}, s{S_T1}, 12', f's_lshr_b32 s{S_T0}, s{S_T0}, 3', f's_add_u32 s{S_M}, s{S_T0}, s{S_T1}')
def role_branch(a, wbody, mbody):
    lm = a.label('rm'); le = a.label('re')
    a('s_cmp_ge_u32 s2, 160', f's_cbranch_scc1 {lm}'); wbody(); a(f's_branch {le}', f'{lm}:'); mbody(); a(f'{le}:')
def spin_begin(a, lbl): a(f's_mov_b32 s{S_SPIN}, 0', f'{lbl}:')
def spin_end(a, lbl, regs, t):
    ok = a.label('ok')
    a(f'v_max3_u32 v{t}, v{regs[0]}, v{regs[1]}, v{regs[2]}'); rest = regs[3:]
    while len(rest) >= 2:
        a(f'v_max3_u32 v{t}, v{t}, v{rest[0]}, v{rest[1]}'); rest = rest[2:]
    if rest: a(f'v_max_u32 v{t}, v{t}, v{rest[0]}')
    a(f'v_cmp_eq_u32 vcc, -1, v{t}', f's_cbranch_vccz {ok}')
    a(f's_add_u32 s{S_SPIN}, s{S_SPIN}, 1', f's_cmp_lt_u32 s{S_SPIN}, 200000', f's_cbranch_scc1 {lbl}')
    a(f'{ok}:')
def sent_check(a, regs, t):
    a(f'v_max3_u32 v{t}, v{regs[0]}, v{regs[1]}, v{regs[2]}'); rest = regs[3:]
    while len(rest) >= 2:
        a(f'v_max3_u32 v{t}, v{t}, v{rest[0]}, v{rest[1]}'); rest = rest[2:]
    if rest: a(f'v_max_u32 v{t}, v{t}, v{rest[0]}')
    a(f'v_cmp_eq_u32 vcc, -1, v{t}')
def poll2(a, issue_fn, nregs, baseA, baseB, nloads, post, t):
    lbl = a.label('spin'); okA = a.label('okA'); okB = a.label('okB'); join = a.label('join')
    a(f's_mov_b32 s{S_SPIN}, 0')
    issue_fn(baseA)
    a(f'{lbl}:')
    issue_fn(baseB)
    a(f's_waitcnt vmcnt({nloads})'); sent_check(a, list(range(baseA, baseA+nregs)), t); a(f's_cbranch_vccz {okA}')
    issue_fn(baseA)
    a(f's_waitcnt vmcnt({nloads})'); sent_check(a, list(range(baseB, baseB+nregs)), t); a(f's_cbranch_vccz {okB}')
    a(f's_add_u32 s{S_SPIN}, s{S_SPIN}, 1', f's_cmp_lt_u32 s{S_SPIN}, 100000', f's_cbranch_scc1 {lbl}', f's_branch {okA}')
    a(f'{okB}:'); post(baseB); a(f's_branch {join}')
    a(f'{okA}:'); post(baseA)
    a(f'{join}:')
def code_prefetch(a, start, end, n, vtmp):
    pc = a.label('pc')
    a(f's_getpc_b64 s[{SRD_C}:{SRD_C+1}]', f'{pc}:')
    if start == 'L_code_start': a(f's_sub_u32 s{SRD_C}, s{SRD_C}, {pc}-{start}', f's_subb_u32 s{SRD_C+1}, s{SRD_C+1}, 0')
    else: a(f's_add_u32 s{SRD_C}, s{SRD_C}, {start}-{pc}', f's_addc_u32 s{SRD_C+1}, s{SRD_C+1}, 0')
    a(f's_and_b32 s{SRD_C+1}, s{SRD_C+1}, 0xffff', f's_mov_b32 s{SRD_C+2}, {end}-{start}', f's_mov_b32 s{SRD_C+3}, 0x20000')
    a(f's_lshr_b32 s{S_T0}, s2, 3', f's_mul_i32 s{S_T0}, s{S_T0}, ((({end}-{start})+31)/32+15)&0xfffffff0')
    a(f'v_lshlrev_b32 v{vtmp}, 4, v{V_LANE}')
    for i in range(n): a(f'buffer_load_dwordx4 v[{V_CPF}:{V_CPF+3}], v{vtmp}, {R(SRD_C)}, s{S_T0} offen offset:{1024*i}')

def prologue(a, endlabel):
    a('s_cmp_ge_u32 s2, 256', f's_cbranch_scc1 {endlabel}')
    a('s_load_dwordx16 s[36:51], s[0:1], 0', 's_load_dwordx8 s[52:59], s[0:1], 64', 's_load_dwordx2 s[60:61], s[0:1], 96')
    a(f'v_lshrrev_b32 v{V_LANE}, 6, v0', f'v_mov_b32 v{V_ZERO}, 0', f'v_readfirstlane_b32 s{S_WAVE}, v{V_LANE}', f'v_and_b32 v{V_LANE}, 63, v0')
    a(f'v_lshrrev_b32 v{V_T}, 3, v{V_LANE}', f'v_mul_u32_u24 v{V_T}, 384, v{V_T}', f'v_and_b32 v{V_T+1}, 7, v{V_LANE}', f'v_lshl_add_u32 v{V_OFFB}, v{V_T+1}, 4, v{V_T}')
    a(f's_mov_b32 s{S_SCALE}, 0x{SCALE:08x}', f's_mov_b32 s{S_LOG2E}, 0x{LOG2E:08x}')
    a(f's_lshr_b32 s{S_T0}, s2, 3', f's_and_b32 s{S_MEM}, s2, 7', f's_lshl_b32 s{S_T1}, s{S_MEM}, 2', f's_add_u32 s{S_T0}, s{S_T0}, s{S_T1}', f's_and_b32 s{S_HEAD}, s{S_T0}, 31')
    a(f's_lshl_b32 s{S_ROW}, s{S_HEAD}, 3', f's_add_u32 s{S_ROW}, s{S_ROW}, s{S_MEM}')
    a('s_waitcnt lgkmcnt(0)')
    srd(a, SRD_WS, P_WS, WS_USED)

V_PA, V_PB, S_PA, S_PB, S_PRE = 48, 49, 87, 100, 101
def w_setup(a):
    srd(a, SRD_C, P_WO, 7864320)
    a(f's_and_b32 s{S_T0}, s2, 7', f's_mul_i32 s{S_T0}, s{S_T0}, 768', f's_mul_i32 s{S_T1}, s{S_WAVE}, 192', f's_add_u32 s{S_T0}, s{S_T0}, s{S_T1}',
      f's_mul_i32 s{S_T0}, s{S_T0}, 1280', f's_lshr_b32 s{S_T1}, s2, 3', f's_lshl_b32 s{S_T1}, s{S_T1}, 6', f's_add_u32 s{S_PA}, s{S_T0}, s{S_T1}')
    a(f'v_lshrrev_b32 v{V_PA}, 2, v{V_LANE}', f'v_mul_u32_u24 v{V_PA}, 1280, v{V_PA}', f'v_and_b32 v{V_PB}, 3, v{V_LANE}', f'v_lshl_add_u32 v{V_PA}, v{V_PB}, 4, v{V_PA}')
def w_loads():
    return [f'buffer_load_dwordx4 v[{WGT+4*p}:{WGT+4*p+3}], v{V_PA}, {R(SRD_C)}, s{S_PA} offen nt\ns_add_u32 s{S_PA}, s{S_PA}, {16*1280}' for p in range(12)]
def m_setup(a):
    a(f's_cmp_ge_u32 s{S_WAVE}, 2', f's_cselect_b32 s{S_T0}, s{P_WU}, s{P_WG}', f's_cselect_b32 s{S_T1}, s{P_WU+1}, s{P_WG+1}')
    srd(a, SRD_C, S_T0, 1966080); srd(a, SRD_D, P_WD, 1966080)
    a(f'v_and_b32 v{V_PB}, 127, v0', f'v_lshrrev_b32 v{V_PA}, 1, v{V_PB}', f'v_mul_u32_u24 v{V_PA}, 3072, v{V_PA}', f'v_and_b32 v{V_PB}, 1, v{V_PB}', f'v_lshl_add_u32 v{V_PA}, v{V_PB}, 4, v{V_PA}')
    a(f's_lshl_b32 s{S_PA}, s{S_M}, 5')
    a(f'v_mul_u32_u24 v{V_PB}, 205, v0', f'v_lshrrev_b32 v{V_PB}, 14, v{V_PB}', f'v_mul_u32_u24 v50, 80, v{V_PB}', f'v_sub_u32 v50, v0, v50',
      f'v_mul_u32_u24 v{V_PB}, 1280, v{V_PB}', f'v_lshl_add_u32 v{V_PB}, v50, 4, v{V_PB}', f's_mul_i32 s{S_PB}, s{S_M}, {16*1280}')
def m_loads():
    l = [f'buffer_load_dwordx4 v[{WGT+4*p}:{WGT+4*p+3}], v{V_PA}, {R(SRD_C)}, s{S_PA} offen nt\ns_add_u32 s{S_PA}, s{S_PA}, {64*3072}' for p in range(10)]
    l += [f'buffer_load_dwordx4 v[{WGT+40+4*i}:{WGT+40+4*i+3}], v{V_PB}, {R(SRD_D)}, s{S_PB} offen nt\ns_add_u32 s{S_PB}, s{S_PB}, 3840' for i in range(6)]
    return l
def w_weights(a):
    w_setup(a)
    for l in w_loads(): a(l)
def m_weights(a):
    m_setup(a)
    for l in m_loads(): a(l)
NW_W, NW_M = 12, 16

def setoff(a):
    a(f's_add_u32 s{S_OFF}, s{S_NX}, s{S_ROT}', f's_and_b32 s{S_OFF}, s{S_OFF}, 4095', f's_mul_i32 s{S_OFF}, s{S_OFF}, 3072', f's_add_u32 s{S_OFF}, s{S_OFF}, s{S_HB}')
def issue(a, r):
    for j in range(3): a(f'buffer_load_dwordx4 v[{r+4*j}:{r+4*j+3}], v{V_OFFB}, {R(SRD_K)}, s{S_OFF} offen offset:{128*j} nt')
    for j in range(3): a(f'buffer_load_dwordx4 v[{r+12+4*j}:{r+12+4*j+3}], v{V_OFFB}, {R(SRD_V)}, s{S_OFF} offen offset:{128*j} nt')
def atomic(a):
    a(f'v_mov_b32 v{V_ATOM}, 1', 's_mov_b64 exec, 1', f'buffer_atomic_add v{V_ATOM}, v{V_ZERO}, {WS}, s{S_CNT} offen sc0', 's_mov_b64 exec, -1')
def static_next(a):
    a(f's_mov_b32 s{S_NX}, s{S_SU}', f's_add_u32 s{S_SU}, s{S_SU}, 32', f's_add_u32 s{S_K}, s{S_K}, 1')
def compute_unit(a, r):
    K, V = r, r+12
    t0, t1, t2, t3, t4, t5 = V_T, V_T+1, V_T+2, V_T+3, V_T+4, V_T+5
    for i in range(4):
        for j, t in enumerate((t0, t1, t2)):
            c = '0' if i == 0 else f'v{t}'
            a(f'v_dot2_f32_bf16 v{t}, v{K+4*j+i}, v{V_Q+4*j+i}, {c}')
    a('s_nop 2', f'v_add_f32 v{t0}, v{t0}, v{t1}', f'v_add_f32 v{t0}, v{t0}, v{t2}')
    for d in ('quad_perm:[1,0,3,2]', 'quad_perm:[2,3,0,1]', 'row_half_mirror'):
        a('s_nop 1'); dpp(a, 'v_add_f32', t0, d)
    bf16r(a, t0, t0)
    a(f'v_mul_f32 v{t0}, s{S_SCALE}, v{t0}')
    bf16r(a, t0, t0)
    a(f'v_max_f32 v{t1}, v{V_M}, v{t0}', f'v_sub_f32 v{t2}, v{V_M}, v{t1}', f'v_sub_f32 v{t3}, v{t0}, v{t1}',
      f'v_mul_f32 v{t2}, s{S_LOG2E}, v{t2}', f'v_mul_f32 v{t3}, s{S_LOG2E}, v{t3}', f'v_exp_f32 v{t2}, v{t2}', f'v_exp_f32 v{t3}, v{t3}', f'v_mov_b32 v{V_M}, v{t1}',
      f'v_fma_f32 v{V_L}, v{V_L}, v{t2}, v{t3}', f'v_cvt_pk_bf16_f32 v{t4}, v{t3}, 0', f'v_cvt_pk_bf16_f32 v{t5}, 0, v{t3}')
    for i in range(12):
        a(f'v_pk_mul_f32 v[{V_ACC+2*i}:{V_ACC+2*i+1}], v[{V_ACC+2*i}:{V_ACC+2*i+1}], v[{t2}:{t2+1}] op_sel_hi:[1,0]')
    pv_unit(a, V, t4, t5)

def startup(a):
    P = OPT['P']; NC = 2 if OPT['cpf'] else 0
    X, XF, W = 64, 70, 80
    srd(a, SRD_A, P_X, 1280); srd(a, SRD_B, P_WQ, 7864320)
    a(f'v_lshlrev_b32 v{V_T}, 2, v{V_LANE}', f's_mov_b32 s{S_T0}, {EPOCH}')
    a(f'buffer_load_dword v{V_E}, v{V_ZERO}, {WS}, s{S_T0} offen sc1')
    for j in range(5): a(f'buffer_load_dword v{X+j}, v{V_T}, {R(SRD_A)}, 0 offen offset:{256*j}')
    a(f'v_lshrrev_b32 v{V_T+1}, 3, v{V_LANE}', f'v_mul_u32_u24 v{V_T+1}, 12288, v{V_T+1}', f'v_and_b32 v{V_T+2}, 7, v{V_LANE}', f'v_lshl_add_u32 v{V_T+1}, v{V_T+2}, 4, v{V_T+1}')
    a(f's_mul_i32 s70, s{S_MEM}, 80', f's_lshl_b32 s{S_T1}, s{S_WAVE}, 3', f's_add_u32 s70, s70, s{S_T1}',
      f's_mul_i32 s{S_T1}, s70, 12288', f's_mul_i32 s{S_T2}, s{S_HEAD}, 384', f's_add_u32 s{S_T1}, s{S_T1}, s{S_T2}')
    third = a.label('q3')
    for u in range(3):
        if u == 2: a(f's_cmp_ge_u32 s{S_WAVE}, 2', f's_cbranch_scc1 {third}')
        for j in range(3): a(f'buffer_load_dwordx4 v[{W+12*u+4*j}:{W+12*u+4*j+3}], v{V_T+1}, {R(SRD_B)}, s{S_T1} offen offset:{128*j} nt')
        a(f's_add_u32 s{S_T1}, s{S_T1}, {32*12288}')
    a(f'{third}:')
    srd(a, SRD_K, P_K, KV_BYTES); srd(a, SRD_V, P_V, KV_BYTES)
    for i in range(4): a(f'v_mov_b32 v{V_T+2+i}, -1')
    a(f's_lshl_b32 s{S_T0}, s{S_ROW}, 10', f's_add_u32 s{S_T0}, s{S_T0}, {OP}', f'v_lshlrev_b32 v{V_T}, 2, v0')
    a(f'buffer_store_dword v{V_T+2}, v{V_T}, {WS}, s{S_T0} offen sc1')
    def wclr():
        sk = a.label('wc')
        a(f's_cmp_lg_u32 s{S_WAVE}, 0', f's_cbranch_scc1 {sk}')
        a(f's_and_b32 s{S_T0}, s2, 7', f's_mul_i32 s{S_T0}, s{S_T0}, 2560', f's_lshr_b32 s{S_T1}, s2, 3', f's_lshl_b32 s{S_T1}, s{S_T1}, 7',
          f's_add_u32 s{S_T0}, s{S_T0}, s{S_T1}', f's_add_u32 s{S_T0}, s{S_T0}, {HP}')
        a('v_cmp_gt_u32 vcc, 32, v0', 's_and_saveexec_b64 s[34:35], vcc', f'buffer_store_dword v{V_T+2}, v{V_T}, {WS}, s{S_T0} offen sc1', 's_mov_b64 exec, s[34:35]', f'{sk}:')
    def mclr():
        m_index(a)
        sk = a.label('mc')
        a(f's_cmp_ge_u32 s{S_WAVE}, 3', f's_cbranch_scc1 {sk}')
        a(f'v_lshrrev_b32 v{V_T}, 2, v0', f'v_mul_u32_u24 v{V_T}, 6144, v{V_T}', f'v_and_b32 v{V_T+1}, 3, v0', f'v_lshl_add_u32 v{V_T}, v{V_T+1}, 4, v{V_T}',
          f's_lshl_b32 s{S_T0}, s{S_M}, 6', f's_add_u32 s{S_T0}, s{S_T0}, {YP}')
        a('v_cmp_gt_u32 vcc, 160, v0', 's_and_saveexec_b64 s[34:35], vcc', f'buffer_store_dwordx4 v[{V_T+2}:{V_T+5}], v{V_T}, {WS}, s{S_T0} offen sc1', 's_mov_b64 exec, s[34:35]', f'{sk}:')
    role_branch(a, wclr, mclr)
    sk = a.label('cz')
    a(f's_lshl_b32 s{S_CNT}, s{S_HEAD}, 8', f's_add_u32 s{S_CNT}, s{S_CNT}, {CNT}')
    a(f's_or_b32 s{S_T0}, s{S_MEM}, s{S_WAVE}', f's_cmp_lg_u32 s{S_T0}, 0', f's_cbranch_scc1 {sk}', 's_mov_b64 exec, 1')
    a(f'buffer_store_dword v{V_ZERO}, v{V_ZERO}, {WS}, s{S_CNT} offen sc1', 's_mov_b64 exec, -1', f'{sk}:')
    a(f's_mul_i32 s{S_HB}, s{S_HEAD}, {HEAD_BYTES}', f"s_mul_i32 s{S_ROT}, s{S_HEAD}, {OPT['hrot']}")
    a(f's_lshl_b32 s{S_SU}, s{S_MEM}, 2', f's_add_u32 s{S_SU}, s{S_SU}, s{S_WAVE}', f's_mov_b32 s{S_K}, 0')
    nopf = a.label('nopf'); pfd = a.label('pfd')
    a(f's_cmp_ge_u32 s{S_WAVE}, 3', f's_cbranch_scc1 {nopf}')
    if NC: code_prefetch(a, 'L_code_start', 'L_code_end', NC, V_T)
    for k in range(P):
        static_next(a); setoff(a); issue(a, PF + 24*k)
    a(f's_waitcnt vmcnt({7+NC+6*P})', f's_branch {pfd}', f'{nopf}:', 's_waitcnt vmcnt(7)', f'{pfd}:')
    a(f'v_readfirstlane_b32 s{S_TAG}, v{V_E}')
    unpack5(a, X, XF)
    a(f's_add_u32 s{S_TAG}, s{S_TAG}, 1')
    for i in range(24): a(f'v_mov_b32 v{V_ACC+i}, 0')
    layernorm(a, XF, V_T+4)
    for j in range(5): a(f'v_cvt_pk_bf16_f32 v{X+j}, v{XF+2*j}, v{XF+2*j+1}')
    a(f's_mul_i32 s{S_T2}, s{S_WAVE}, 1280', f'v_lshlrev_b32 v{V_T}, 2, v{V_LANE}', f'v_add_u32 v{V_T}, s{S_T2}, v{V_T}')
    for j in range(5): a(f'ds_write_b32 v{V_T}, v{X+j} offset:{L_XN+256*j}')
    a(f's_lshl_b32 s{S_T0}, s70, 1', f's_add_u32 s{S_T0}, s{S_T0}, s{S_T2}', f'v_lshrrev_b32 v{V_T}, 3, v{V_LANE}', f'v_lshlrev_b32 v{V_T}, 1, v{V_T}', f'v_add_u32 v{V_T}, s{S_T0}, v{V_T}')
    a('s_waitcnt lgkmcnt(0)')
    for u in range(3): a(f'ds_read_u16 v{X+u}, v{V_T} offset:{L_XN+64*u}')
    w3 = a.label('w3'); w3d = a.label('w3d')
    a(f's_cmp_ge_u32 s{S_WAVE}, 3', f's_cbranch_scc1 {w3}', f's_waitcnt lgkmcnt(0) vmcnt({NC+6*P})', f's_branch {w3d}',
      f'{w3}:', 's_waitcnt lgkmcnt(0) vmcnt(0)', f'{w3d}:')
    NE = OPT['wsplit']
    if NE:
        ske = a.label('ske')
        role_branch(a, lambda: w_setup(a), lambda: m_setup(a))
        a(f's_cmp_ge_u32 s{S_WAVE}, 3', f's_cbranch_scc1 {ske}')
        role_branch(a, lambda: [a(l) for l in w_loads()[:NE]], lambda: [a(l) for l in m_loads()[10:10+NE]])
        a(f'{ske}:')
    stamp(a, 12)
    skip = a.label('q3b')
    for u in range(3):
        if u == 2: a(f's_cmp_ge_u32 s{S_WAVE}, 2', f's_cbranch_scc1 {skip}')
        a(f'v_lshlrev_b32 v{X+4}, 16, v{X+u}')
        pv_unit(a, W+12*u, X+u, X+4)
    a(f'{skip}:')
    acc_reduce_write(a, L_A, V_T)
    a('s_waitcnt lgkmcnt(0)', 's_barrier')
    stamp(a, 1)
    gat = a.label('gat'); qrdy = a.label('qrdy')
    a(f's_cmp_ge_u32 s{S_WAVE}, 3', f's_cbranch_scc1 {gat}')
    a(f'v_lshlrev_b32 v{V_T}, 2, v0')
    for w in range(4): a(f'ds_read_b32 v{96+w}, v{V_T} offset:{L_A+768*w}')
    a(f's_lshl_b32 s{S_T0}, s{S_ROW}, 11', f's_add_u32 s{S_T0}, s{S_T0}, {QP2}', f'v_lshlrev_b32 v{V_T}, 3, v0', 's_waitcnt lgkmcnt(0)')
    a('v_add_f32 v96, v96, v97', 'v_add_f32 v98, v98, v99', f'v_mov_b32 v97, s{S_TAG}', 'v_add_f32 v96, v96, v98')
    a(f'buffer_store_dwordx2 v[96:97], v{V_T}, {WS}, s{S_T0} offen sc1')
    if OPT['wmode'] == 1: a('s_waitcnt vmcnt(0)')
    if OPT['wmode'] <= 1:
        if NE:
            role_branch(a, lambda: [a(l) for l in w_loads()[NE:]], lambda: [a(l) for l in m_loads()[:10] + m_loads()[10+NE:]])
        else:
            role_branch(a, lambda: w_weights(a), lambda: m_weights(a))
    a(f's_branch {qrdy}')
    a(f'{gat}:')
    a(f's_lshl_b32 s{S_T0}, s{S_HEAD}, 14', f's_add_u32 s{S_T0}, s{S_T0}, {QP2}')
    a(f's_add_u32 s{S_T1}, s{S_T0}, 4096', f's_add_u32 s{S_T2}, s{S_T0}, 8192', f's_add_u32 s{S_T3}, s{S_T0}, 12288', f'v_lshlrev_b32 v{V_T}, 3, v{V_LANE}')
    def qissue(base):
        for s in range(8):
            for j in range(3):
                r = base + 2*(3*s+j)
                a(f'buffer_load_dwordx2 v[{r}:{r+1}], v{V_T}, {WS}, s{S_T0 + s//2} offen offset:{2048*(s&1)+512*j} sc1')
    def qcheck(base):
        tags = [base + 2*i + 1 for i in range(24)]
        a(f'v_min3_u32 v{V_T+2}, v{tags[0]}, v{tags[1]}, v{tags[2]}', f'v_max3_u32 v{V_T+3}, v{tags[0]}, v{tags[1]}, v{tags[2]}')
        for i in range(3, 23, 2):
            a(f'v_min3_u32 v{V_T+2}, v{V_T+2}, v{tags[i]}, v{tags[i+1]}', f'v_max3_u32 v{V_T+3}, v{V_T+3}, v{tags[i]}, v{tags[i+1]}')
        a(f'v_min_u32 v{V_T+2}, v{V_T+2}, v{tags[23]}', f'v_max_u32 v{V_T+3}, v{V_T+3}, v{tags[23]}')
        a(f'v_xor_b32 v{V_T+2}, s{S_TAG}, v{V_T+2}', f'v_xor_b32 v{V_T+3}, s{S_TAG}, v{V_T+3}', f'v_or_b32 v{V_T+2}, v{V_T+2}, v{V_T+3}')
        a(f'v_cmp_ne_u32 vcc, 0, v{V_T+2}')
    def qpost(base):
        for j in range(3):
            for s in range(1, 8): a(f'v_add_f32 v{base+2*j}, v{base+2*j}, v{base+2*(3*s+j)}')
            a(f'v_cvt_pk_bf16_f32 v{base+2*j}, v{base+2*j}, v{base+2*j}')
            a(f'ds_write_b16 v{V_T+6+j}, v{base+2*j} offset:{L_SM+64}')
    for j in range(3):
        a(f'v_add_u32 v{V_T+1}, {64*j}, v{V_LANE}', f'v_mul_u32_u24 v{V_T+2}, 2731, v{V_T+1}', f'v_lshrrev_b32 v{V_T+2}, 16, v{V_T+2}',
          f'v_mul_u32_u24 v{V_T+3}, 24, v{V_T+2}', f'v_sub_u32 v{V_T+3}, v{V_T+1}, v{V_T+3}',
          f'v_lshrrev_b32 v{V_T+4}, 3, v{V_T+3}', f'v_and_b32 v{V_T+3}, 7, v{V_T+3}', f'v_lshlrev_b32 v{V_T+4}, 6, v{V_T+4}',
          f'v_lshl_add_u32 v{V_T+4}, v{V_T+2}, 3, v{V_T+4}', f'v_add_lshl_u32 v{V_T+6+j}, v{V_T+4}, v{V_T+3}, 1')
    lbl = a.label('qspin'); ok = a.label('qok'); qjoin = a.label('qjoin')
    if OPT['qov']:
        okb = a.label('qokb')
        a(f's_mov_b32 s{S_SPIN}, 0')
        qissue(64)
        a(f'{lbl}:')
        qissue(116)
        a('s_waitcnt vmcnt(24)'); qcheck(64); a(f's_cbranch_vccz {ok}')
        qissue(64)
        a('s_waitcnt vmcnt(24)'); qcheck(116); a(f's_cbranch_vccz {okb}')
        a(f's_add_u32 s{S_SPIN}, s{S_SPIN}, 1', f's_cmp_lt_u32 s{S_SPIN}, 100000', f's_cbranch_scc1 {lbl}', f's_branch {ok}')
        a(f'{okb}:')
        qpost(116)
        a(f's_branch {qjoin}', f'{ok}:')
    else:
        spin_begin(a, lbl)
        qissue(64)
        a('s_waitcnt vmcnt(0)'); qcheck(64)
        a(f's_cbranch_vccz {ok}', f's_add_u32 s{S_SPIN}, s{S_SPIN}, 1', f's_cmp_lt_u32 s{S_SPIN}, 200000', f's_cbranch_scc1 {lbl}', f'{ok}:')
    qpost(64)
    a(f'{qjoin}:')
    stamp(a, 13)
    srd(a, SRD_A, P_DBG, 256)
    a(f'v_mov_b32 v{V_T}, 1', 's_mov_b64 exec, 1', f'buffer_atomic_add v{V_T}, v{V_ZERO}, {R(SRD_A)}, 0 offen', 's_mov_b64 exec, -1')
    if OPT['wmode'] <= 1: role_branch(a, lambda: w_weights(a), lambda: m_weights(a))
    a(f'{qrdy}:')
    a('s_waitcnt lgkmcnt(0)', 's_barrier')
    a(f'v_and_b32 v{V_T}, 7, v{V_LANE}', f'v_lshlrev_b32 v{V_T}, 4, v{V_T}')
    for j in range(3): a(f'ds_read_b128 v[{V_Q+4*j}:{V_Q+4*j+3}], v{V_T} offset:{L_SM+64+128*j}')

def late_loads(a):
    srd(a, SRD_E, P_DBG, 256)
    a(f'buffer_load_dword v{V_DBG}, v{V_ZERO}, {R(SRD_E)}, 0 offen sc1')
    sk = a.label('lx')
    a('s_cmp_lt_u32 s2, 160', f's_cbranch_scc1 {sk}')
    srd(a, SRD_D, P_X, 1280); srd(a, SRD_E, P_WR, 1280)
    a(f'v_lshlrev_b32 v50, 2, v{V_LANE}')
    for j in range(5): a(f'buffer_load_dword v{V_XW+j}, v50, {R(SRD_D)}, 0 offen offset:{256*j}')
    for j in range(5): a(f'buffer_load_dword v{V_XW+5+j}, v50, {R(SRD_E)}, 0 offen offset:{256*j}')
    a(f'{sk}:')
    if OPT['cpf2']: code_prefetch(a, 'L_tail_start', 'L_code_end', 1, 50)

def stream(a):
    P, NS = OPT['P'], OPT['NS']
    static_next(a); setoff(a); issue(a, V_RING)
    NWX = 0
    if OPT['wmode'] == 2:
        role_branch(a, lambda: w_weights(a), lambda: m_weights(a)); NWX = NW_W
    for i in range(24): a(f'v_mov_b32 v{V_ACC+i}, 0')
    a(f'v_mov_b32 v{V_M}, 0x{NEGBIG:08x}', f'v_mov_b32 v{V_L}, 0', 's_waitcnt lgkmcnt(0)')
    if P:
        sk = a.label('pfs')
        a(f's_cmp_ge_u32 s{S_WAVE}, 3', f's_cbranch_scc1 {sk}', f's_waitcnt vmcnt({6+NWX})')
        for k in range(P): compute_unit(a, PF + 24*k)
        a(f'{sk}:')
    stamp(a, 2); dstamp(a, 6)
    loop = a.label('loop'); done = a.label('sdone'); late = a.label('late')
    drains = []; backs = []; pres = []
    NPRE = OPT['npre'] if OPT['wmode'] == 3 else 0
    if NPRE:
        role_branch(a, lambda: w_setup(a), lambda: m_setup(a))
        a(f's_mov_b32 s{S_PRE}, 0')
    def prepare():
        a(f's_mov_b32 s{S_NX}, s{S_SU}', f's_add_u32 s{S_SU}, s{S_SU}, 32'); setoff(a)
        a(f's_cmp_ge_u32 s{S_K}, {NS}')
    if OPT['fast']:
        prepare()
    a(f'{loop}:')
    for t in range(2):
        a('s_waitcnt vmcnt(0)')
        dyn = a.label('dyn'); cont = a.label('cont'); dl = a.label('drain'); drains.append((dl, t)); sw = a.label('sw'); backs.append((sw, cont))
        if OPT['fast']:
            a(f's_cbranch_scc1 {dyn}')
            issue(a, V_RING + 24*((t+1) % 2))
            a(f's_add_u32 s{S_K}, s{S_K}, 1', f's_cmp_eq_u32 s{S_K}, {NS}', f's_cbranch_scc1 {sw}')
            a(f'{cont}:')
        else:
            a(f's_cmp_ge_u32 s{S_K}, {NS}', f's_cbranch_scc1 {dyn}')
            static_next(a)
            a(f's_cmp_lt_u32 s{S_K}, {NS}', f's_cbranch_scc0 {sw}')
            a(f'{cont}:')
            setoff(a)
            issue(a, V_RING + 24*((t+1) % 2))
        if NPRE:
            pl = a.label('pre'); pb = a.label('preb'); pres.append((pl, pb, t))
            a(f's_cmp_lt_u32 s{S_PRE}, {NPRE}', f's_cbranch_scc1 {pl}', f'{pb}:')
        compute_unit(a, V_RING + 24*t)
        if OPT['fast']: prepare()
        if t == 0:
            nxt = a.label('n1'); a(f's_branch {nxt}')
        else:
            a(f's_branch {loop}')
        a(f'{dyn}:')
        a(f'v_readfirstlane_b32 s{S_NX}, v{V_ATOM}', 's_nop 0', f's_add_u32 s{S_NX}, s{S_NX}, {32*NS}', f's_cmp_ge_u32 s{S_NX}, 4096', f's_cbranch_scc1 {dl}')
        if OPT['fast']:
            setoff(a); issue(a, V_RING + 24*((t+1) % 2)); atomic(a)
        else:
            atomic(a)
        a(f's_branch {cont}')
        if t == 0: a(f'{nxt}:')
    for pl, pb, t in pres:
        a(f'{pl}:')
        ks = [k for k in range(NPRE) if k % 2 == t]
        ents = [(k, a.label('pe')) for k in ks]
        for k, e in ents[:-1]: a(f's_cmp_eq_u32 s{S_PRE}, {k}', f's_cbranch_scc1 {e}')
        a(f's_branch {ents[-1][1]}')
        for k, e in ents:
            a(f'{e}:')
            wl, ml = w_loads(), m_loads()
            pw, pm = -(-len(wl) // NPRE), -(-len(ml) // NPRE)
            role_branch(a, lambda: [a(l) for l in wl[pw*k:pw*(k+1)]], lambda: [a(l) for l in ml[pm*k:pm*(k+1)]])
            a(f's_add_u32 s{S_PRE}, s{S_PRE}, 1', f's_branch {pb}')
    for sw, cont in backs:
        a(f'{sw}:')
        atomic(a); late_loads(a)
        a(f's_branch {cont}')
    for dl, t in drains:
        a(f'{dl}:'); compute_unit(a, V_RING + 24*t); a(f's_branch {done}')
    a(f'{done}:')

def phase_t1(a):
    t = V_T
    a('s_nop 2', f'v_mov_b32 v{t+2}, v{V_M}')
    groups_red(a, t+2, t+3, 'v_max_f32')
    a(f'v_sub_f32 v{t+4}, v{V_M}, v{t+2}', f'v_mul_f32 v{t+4}, s{S_LOG2E}, v{t+4}', f'v_exp_f32 v{t+4}, v{t+4}', 's_nop 0', f'v_mul_f32 v{V_L}, v{V_L}, v{t+4}')
    for i in range(12): a(f'v_pk_mul_f32 v[{V_ACC+2*i}:{V_ACC+2*i+1}], v[{V_ACC+2*i}:{V_ACC+2*i+1}], v[{t+4}:{t+5}] op_sel_hi:[1,0]')
    groups_red(a, V_L, t+3, 'v_add_f32')
    a(f'v_mov_b32 v{t+3}, v{V_L}', f's_lshl_b32 s{S_T1}, s{S_WAVE}, 3', f'v_mov_b32 v{t+6}, s{S_T1}', f'ds_write_b64 v{t+6}, v[{t+2}:{t+3}] offset:{L_SM}')
    acc_reduce_write(a, L_A, t+6)
    a('s_waitcnt lgkmcnt(0)', 's_barrier')
    a(f'ds_read_b128 v[100:103], v{V_ZERO} offset:{L_SM}', f'ds_read_b128 v[104:107], v{V_ZERO} offset:{L_SM+16}', f'v_lshlrev_b32 v{t}, 2, v0')
    for w in range(4): a(f'ds_read_b32 v{96+w}, v{t} offset:{L_A+768*w}')
    a(f's_lshl_b32 s{S_T0}, s{S_ROW}, 10', f's_add_u32 s{S_T0}, s{S_T0}, {OP}', 's_waitcnt lgkmcnt(4)')
    a('v_max_f32 v108, v100, v102', 'v_max3_f32 v108, v108, v104, v106')
    for w in range(4): a(f'v_sub_f32 v{110+w}, v{100+2*w}, v108', f'v_mul_f32 v{110+w}, s{S_LOG2E}, v{110+w}')
    for w in range(4): a(f'v_exp_f32 v{110+w}, v{110+w}')
    a('s_waitcnt lgkmcnt(0)', 'v_mul_f32 v96, v96, v110', 'v_mul_f32 v109, v101, v110')
    for w in range(1, 4): a(f'v_fmac_f32 v96, v{96+w}, v{110+w}', f'v_fmac_f32 v109, v{101+2*w}, v{110+w}')
    a('v_cmp_eq_u32 vcc, 192, v0', 's_nop 1', 'v_cndmask_b32 v96, v96, v108, vcc', 'v_cmp_eq_u32 vcc, 193, v0', 's_nop 1', 'v_cndmask_b32 v96, v96, v109, vcc')
    a('v_cmp_lt_u32 vcc, 193, v0', 's_nop 1', f'v_cndmask_b32 v96, v96, v{V_ZERO}, vcc')
    a('v_cmp_gt_u32 vcc, 196, v0', 's_and_saveexec_b64 s[34:35], vcc')
    sk = a.label('t1s')
    a(f's_cbranch_execz {sk}', f'buffer_store_dword v96, v{t}, {WS}, s{S_T0} offen sc1', f'{sk}:', 's_mov_b64 exec, s[34:35]')

def dbg_check(a):
    ok = a.label('dok'); lp = a.label('dlp')
    a(f'v_readfirstlane_b32 s{S_T0}, v{V_DBG}', 's_nop 0', f's_cmp_ge_u32 s{S_T0}, 256', f's_cbranch_scc1 {ok}')
    srd(a, SRD_A, P_DBG, 256)
    a(f's_mov_b32 s{S_SPIN}, 0', f'{lp}:', f'buffer_load_dword v{V_DBG}, v{V_ZERO}, {R(SRD_A)}, 0 offen sc1', 's_waitcnt vmcnt(0)')
    a(f'v_readfirstlane_b32 s{S_T0}, v{V_DBG}', 's_nop 0', f's_cmp_ge_u32 s{S_T0}, 256', f's_cbranch_scc1 {ok}')
    a(f's_add_u32 s{S_SPIN}, s{S_SPIN}, 1', f's_cmp_lt_u32 s{S_SPIN}, 200000', f's_cbranch_scc1 {lp}', f'{ok}:')
    sk = a.label('ep')
    a(f's_or_b32 s{S_T0}, s2, s{S_WAVE}', f's_cmp_lg_u32 s{S_T0}, 0', f's_cbranch_scc1 {sk}')
    a(f'v_mov_b32 v{V_T}, s{S_TAG}', f's_mov_b32 s{S_T0}, {EPOCH}', 's_mov_b64 exec, 1', f'buffer_store_dword v{V_T}, v{V_ZERO}, {WS}, s{S_T0} offen sc1', 's_mov_b64 exec, -1', f'{sk}:')

def phase_w(a):
    a(f's_and_b32 s{S_T0}, s2, 7', f's_lshl_b32 s{S_T0}, s{S_T0}, 2', f's_add_u32 s{S_T0}, s{S_T0}, s{S_WAVE}',
      f's_lshl_b32 s{S_T0}, s{S_T0}, 13', f's_add_u32 s{S_T0}, s{S_T0}, {OP}', f's_add_u32 s{S_T1}, s{S_T0}, 4096', f'v_lshlrev_b32 v{V_T}, 4, v{V_LANE}')
    a(f's_mul_i32 s{S_T2}, s{S_WAVE}, 768', f'v_add_u32 v{V_T+2}, s{S_T2}, v{V_T}')
    a('s_bfm_b64 exec, 49, 0')
    O = 108
    def w_issue(Pr):
        for s in range(8): a(f'buffer_load_dwordx4 v[{Pr+4*s}:{Pr+4*s+3}], v{V_T}, {WS}, s{S_T0 if s < 4 else S_T1} offen offset:{1024*(s&3)} sc1')
    def w_post(Pr):
        Mx, Ls, Fs = 96, 97, 98
        a(f'v_max3_f32 v{Mx}, v{Pr}, v{Pr+4}, v{Pr+8}', f'v_max3_f32 v{Mx}, v{Mx}, v{Pr+12}, v{Pr+16}', f'v_max3_f32 v{Mx}, v{Mx}, v{Pr+20}, v{Pr+24}', f'v_max_f32 v{Mx}, v{Mx}, v{Pr+28}')
        for s in range(8): a(f'v_sub_f32 v{Fs+s}, v{Pr+4*s}, v{Mx}', f'v_mul_f32 v{Fs+s}, s{S_LOG2E}, v{Fs+s}')
        for s in range(8): a(f'v_exp_f32 v{Fs+s}, v{Fs+s}')
        a(f'v_mul_f32 v{Ls}, v{Pr+1}, v{Fs}')
        for s in range(1, 8): a(f'v_fmac_f32 v{Ls}, v{Pr+4*s+1}, v{Fs+s}')
        a(f'v_rcp_f32 v{Ls}, v{Ls}', 's_nop 0')
        for s in range(8): a(f'v_mul_f32 v{Fs+s}, v{Fs+s}, v{Ls}')
        for s in range(8): a(f'v_readlane_b32 s{S_G+s}, v{Fs+s}, 48')
        a('s_nop 1')
        for e in range(4): a(f'v_mul_f32 v{O+e}, s{S_G}, v{Pr+e}')
        for s in range(1, 8):
            for e in range(4): a(f'v_fmac_f32 v{O+e}, s{S_G+s}, v{Pr+4*s+e}')
    if OPT['ov']:
        poll2(a, w_issue, 32, 64, 128, 8, w_post, V_T+1)
    else:
        lbl = a.label('wspin'); spin_begin(a, lbl); w_issue(64); a('s_waitcnt vmcnt(0)'); spin_end(a, lbl, list(range(64, 96)), V_T+1); w_post(64)
    stamp(a, 5)
    for e in range(4): bf16r(a, O+e, O+e)
    a('s_bfm_b64 exec, 48, 0', f'ds_write_b128 v{V_T+2}, v[{O}:{O+3}] offset:{L_OV}', 's_mov_b64 exec, -1')
    a(f'v_lshrrev_b32 v{V_T}, 5, v{V_LANE}', f'v_mul_u32_u24 v{V_T}, 24, v{V_T}', f'v_bfe_u32 v{V_T+1}, v{V_LANE}, 2, 3', f'v_add_lshl_u32 v{V_T}, v{V_T}, v{V_T+1}, 2',
      f'v_add_u32 v{V_T}, s{S_T2}, v{V_T}', 's_waitcnt lgkmcnt(0)')
    U = 112
    for p in range(12): a(f'ds_read_b32 v{U+p}, v{V_T} offset:{L_OV+4*(48*(p&3)+8*(p>>2))}')
    A = 160
    for p in range(12):
        a(f's_waitcnt lgkmcnt({11-p})', f'v_lshrrev_b32 v{U+12+(p&1)}, 16, v{U+p}')
        for i in range(4):
            c0 = '0' if p == 0 else f'v{A+2*i}'; c1 = '0' if p == 0 else f'v{A+2*i+1}'
            a(f'v_dot2_f32_bf16 v{A+2*i}, v{WGT+4*p+i}, v{U+12+(p&1)}, {c0}', f'v_dot2_f32_bf16 v{A+2*i+1}, v{WGT+4*p+i}, v{U+p}, {c1}')
    a('s_nop 2')
    for d in ('row_ror:4', 'row_ror:8'):
        for i in range(8): dpp(a, 'v_add_f32', A+i, d)
    swap_reduce(a, A, 4, 'v_permlane16_swap_b32')
    a(f'v_and_b32 v{V_T}, 3, v{V_LANE}', f'v_lshlrev_b32 v{V_T}, 5, v{V_T}', f'v_bfe_u32 v{V_T+1}, v{V_LANE}, 4, 1', f'v_lshl_add_u32 v{V_T}, v{V_T+1}, 4, v{V_T}',
      f'v_lshrrev_b32 v{V_T+1}, 5, v{V_LANE}', f'v_lshl_add_u32 v{V_T}, v{V_T+1}, 3, v{V_T}', f's_lshl_b32 s{S_T0}, s{S_WAVE}, 7', f'v_add_u32 v{V_T}, s{S_T0}, v{V_T}')
    swap_reduce(a, A, 2, 'v_permlane32_swap_b32')
    a(f'ds_write_b64 v{V_T}, v[{A}:{A+1}] offset:{L_B}', 's_waitcnt lgkmcnt(0)', 's_barrier')
    done = a.label('wd')
    a(f's_cmp_ge_u32 s{S_WAVE}, 1', f's_cbranch_scc1 {done}')
    a(f'v_and_b32 v{V_T}, 31, v0', f'v_lshlrev_b32 v{V_T}, 2, v{V_T}')
    for w in range(4): a(f'ds_read_b32 v{U+w}, v{V_T} offset:{L_B+128*w}')
    a(f's_and_b32 s{S_T0}, s2, 7', f's_mul_i32 s{S_T0}, s{S_T0}, 2560', f's_lshr_b32 s{S_T1}, s2, 3', f's_lshl_b32 s{S_T1}, s{S_T1}, 7',
      f's_add_u32 s{S_T0}, s{S_T0}, s{S_T1}', f's_add_u32 s{S_T0}, s{S_T0}, {HP}', 's_bfm_b64 exec, 32, 0', 's_waitcnt lgkmcnt(0)')
    a(f'v_add_f32 v{U}, v{U}, v{U+1}', f'v_add_f32 v{U+2}, v{U+2}, v{U+3}', f'v_add_f32 v{U}, v{U}, v{U+2}')
    a(f'buffer_store_dword v{U}, v{V_T}, {WS}, s{S_T0} offen sc1', 's_mov_b64 exec, -1', f'{done}:')

H_HN, H_X = 70, 64
def phase_h(a):
    a(f's_mul_i32 s{S_T0}, s{S_WAVE}, 5120', f's_add_u32 s{S_T0}, s{S_T0}, {HP}', f's_add_u32 s{S_T1}, s{S_T0}, 2560', f'v_lshlrev_b32 v{V_T}, 3, v{V_LANE}')
    a(f's_mul_i32 s{S_T2}, s{S_WAVE}, 2560', f'v_add_u32 v{V_T+2}, s{S_T2}, v{V_T}')
    unpack5(a, V_XW, H_HN)
    Q = 160
    def h_issue(P):
        for b in range(2):
            for j in range(5): a(f'buffer_load_dwordx2 v[{P+10*b+2*j}:{P+10*b+2*j+1}], v{V_T}, {WS}, s{S_T0+b} offen offset:{512*j} sc1')
    def h_post(P):
        for i in range(10): a(f'v_add_f32 v{Q+i}, v{P+i}, v{P+10+i}')
    if OPT['ov']:
        poll2(a, h_issue, 20, 80, 140, 10, h_post, V_T+1)
    else:
        lbl = a.label('hspin'); spin_begin(a, lbl); h_issue(80); a('s_waitcnt vmcnt(0)'); spin_end(a, lbl, list(range(80, 100)), V_T+1); h_post(80)
    stamp(a, 7)
    for j in range(5): a(f'ds_write_b64 v{V_T+2}, v[{Q+2*j}:{Q+2*j+1}] offset:{L_C+512*j}')
    a('s_waitcnt lgkmcnt(0)', 's_barrier')
    Rr = 100
    for w in range(4):
        for j in range(5): a(f'ds_read_b64 v[{Rr+10*w+2*j}:{Rr+10*w+2*j+1}], v{V_T} offset:{L_C+2560*w+512*j}')
    a(f's_mul_i32 s{S_T0}, s{S_WAVE}, 1280', f'v_lshlrev_b32 v{V_T}, 2, v{V_LANE}', f'v_add_u32 v{V_T}, s{S_T0}, v{V_T}', 's_waitcnt lgkmcnt(0)')
    for i in range(10): a(f'v_add_f32 v{Rr+i}, v{Rr+i}, v{Rr+10+i}', f'v_add_f32 v{Rr+20+i}, v{Rr+20+i}, v{Rr+30+i}')
    for i in range(10): a(f'v_add_f32 v{Rr+i}, v{Rr+i}, v{Rr+20+i}')
    for j in range(5):
        i = 2*j
        a(f'v_cvt_pk_bf16_f32 v{V_T+1}, v{Rr+i}, v{Rr+i+1}', f'v_lshlrev_b32 v{Rr+i}, 16, v{V_T+1}', f'v_and_b32 v{Rr+i+1}, 0xffff0000, v{V_T+1}',
          f'v_add_f32 v{H_HN+i}, v{H_HN+i}, v{Rr+i}', f'v_add_f32 v{H_HN+i+1}, v{H_HN+i+1}, v{Rr+i+1}', f'v_cvt_pk_bf16_f32 v{H_X+j}, v{H_HN+i}, v{H_HN+i+1}',
          f'v_lshlrev_b32 v{H_HN+i}, 16, v{H_X+j}', f'v_and_b32 v{H_HN+i+1}, 0xffff0000, v{H_X+j}')
        a(f'ds_write_b32 v{V_T}, v{H_X+j} offset:{L_H+256*j}')
    layernorm(a, H_HN, V_T+4)
    for j in range(5):
        a(f'v_cvt_pk_bf16_f32 v{H_X+j}, v{H_HN+2*j}, v{H_HN+2*j+1}', f'ds_write_b32 v{V_T}, v{H_X+j} offset:{L_XN+256*j}')

def phase_m(a):
    U, A = 80, 96
    a(f'v_and_b32 v{V_T}, 127, v0', f'v_lshrrev_b32 v{V_T}, 1, v{V_T}', f'v_lshlrev_b32 v{V_T}, 1, v{V_T}', f's_mul_i32 s{S_T0}, s{S_WAVE}, 1280', f'v_add_u32 v{V_T}, s{S_T0}, v{V_T}', 's_waitcnt vmcnt(0) lgkmcnt(0)')
    for p in range(10): a(f'ds_read_u16 v{U+p}, v{V_T} offset:{L_XN+128*p}')
    for p in range(10):
        a(f's_waitcnt lgkmcnt({9-p})', f'v_lshlrev_b32 v{U+10+(p&1)}, 16, v{U+p}')
        for i in range(4):
            c0 = '0' if p == 0 else f'v{A+2*i}'; c1 = '0' if p == 0 else f'v{A+2*i+1}'
            a(f'v_dot2_f32_bf16 v{A+2*i}, v{WGT+4*p+i}, v{U+p}, {c0}', f'v_dot2_f32_bf16 v{A+2*i+1}, v{WGT+4*p+i}, v{U+10+(p&1)}, {c1}')
    a('s_nop 2')
    for d in ('quad_perm:[2,3,0,1]', 'row_ror:4', 'row_ror:8'):
        for i in range(8): dpp(a, 'v_add_f32', A+i, d)
    swap_reduce(a, A, 4, 'v_permlane16_swap_b32')
    a(f'v_and_b32 v{V_T}, 1, v{V_LANE}', f'v_lshlrev_b32 v{V_T}, 5, v{V_T}', f'v_bfe_u32 v{V_T+1}, v{V_LANE}, 4, 1', f'v_lshl_add_u32 v{V_T}, v{V_T+1}, 4, v{V_T}',
      f'v_lshrrev_b32 v{V_T+1}, 5, v{V_LANE}', f'v_lshl_add_u32 v{V_T}, v{V_T+1}, 3, v{V_T}', f's_lshl_b32 s{S_T0}, s{S_WAVE}, 6', f'v_add_u32 v{V_T}, s{S_T0}, v{V_T}')
    swap_reduce(a, A, 2, 'v_permlane32_swap_b32')
    a(f'ds_write_b64 v{V_T}, v[{A}:{A+1}] offset:{L_D}', 's_waitcnt lgkmcnt(0)', 's_barrier')
    a(f'v_and_b32 v{V_T}, 15, v{V_LANE}', f'v_lshlrev_b32 v{V_T}, 2, v{V_T}')
    for k in range(4): a(f'ds_read_b32 v{U+k}, v{V_T} offset:{L_D+64*k}')
    a(f's_lshl_b32 s{S_T0}, s{S_WAVE}, 7', f'v_lshlrev_b32 v{V_T+1}, 2, v{V_LANE}', f'v_add_u32 v{V_T+1}, s{S_T0}, v{V_T+1}', 's_waitcnt lgkmcnt(0)')
    a(f'v_add_f32 v{U}, v{U}, v{U+1}', f'v_add_f32 v{U+2}, v{U+2}, v{U+3}')
    bf16r(a, U, U); bf16r(a, U+2, U+2)
    a(f'v_mul_f32 v{U+1}, s{S_LOG2E}, v{U}', f'v_sub_f32 v{U+1}, 0, v{U+1}', f'v_exp_f32 v{U+1}, v{U+1}', 's_nop 0', f'v_add_f32 v{U+1}, 1.0, v{U+1}', f'v_rcp_f32 v{U+1}, v{U+1}', 's_nop 0', f'v_mul_f32 v{U}, v{U}, v{U+1}')
    bf16r(a, U, U)
    a(f'v_mul_f32 v{U}, v{U}, v{U+2}')
    bf16r(a, U, U)
    a(f'v_cmp_gt_u32 vcc, 16, v{V_LANE}', 's_nop 1', f'v_cndmask_b32 v{U}, v{V_ZERO}, v{U}, vcc')
    a('s_bfm_b64 exec, 18, 0', f'ds_write_b32 v{V_T+1}, v{U} offset:{L_E}', 's_mov_b64 exec, -1')
    a(f'v_mul_u32_u24 v{V_T}, 205, v0', f'v_lshrrev_b32 v{V_T}, 14, v{V_T}', f'v_lshl_add_u32 v{V_T+1}, v{V_T}, 2, s{S_T0}', 's_waitcnt lgkmcnt(0)')
    for i in range(6): a(f'ds_read_b32 v{U+i}, v{V_T+1} offset:{L_E+12*i}')
    a(f'v_mul_u32_u24 v{V_T+2}, 80, v{V_T}', f'v_sub_u32 v{V_T+2}, v0, v{V_T+2}', f'v_lshlrev_b32 v{V_T+2}, 5, v{V_T+2}', f'v_mul_u32_u24 v{V_T}, 2560, v{V_T}', f'v_add_u32 v{V_T+2}, v{V_T+2}, v{V_T}')
    for i in range(6):
        a(f's_waitcnt lgkmcnt({5-i})', f'v_lshrrev_b32 v{U+6+(i&1)}, 16, v{U+i}')
        for e in range(4):
            c0 = '0' if i == 0 else f'v{A+2*e}'; c1 = '0' if i == 0 else f'v{A+2*e+1}'
            a(f'v_dot2_f32_bf16 v{A+2*e}, v{WGT+40+4*i+e}, v{U+6+(i&1)}, {c0}', f'v_dot2_f32_bf16 v{A+2*e+1}, v{WGT+40+4*i+e}, v{U+i}, {c1}')
    a('v_cmp_gt_u32 vcc, 240, v0', 's_and_saveexec_b64 s[34:35], vcc', 's_nop 1')
    a(f'ds_write_b128 v{V_T+2}, v[{A}:{A+3}] offset:{L_F}', f'ds_write_b128 v{V_T+2}, v[{A+4}:{A+7}] offset:{L_F+16}')
    a('s_mov_b64 exec, s[34:35]', 's_waitcnt lgkmcnt(0)', 's_barrier')
    done = a.label('md')
    a('v_cmp_gt_u32 vcc, 160, v0', 's_and_saveexec_b64 s[34:35], vcc', f's_cbranch_execz {done}', f'v_lshlrev_b32 v{V_T}, 4, v0')
    for g in range(3): a(f'ds_read_b128 v[{U+4*g}:{U+4*g+3}], v{V_T} offset:{L_F+2560*g}')
    a(f'v_lshrrev_b32 v{V_T}, 2, v0', f'v_mul_u32_u24 v{V_T}, 6144, v{V_T}', f'v_and_b32 v{V_T+1}, 3, v0', f'v_lshl_add_u32 v{V_T}, v{V_T+1}, 4, v{V_T}',
      f's_lshl_b32 s{S_T0}, s{S_M}, 6', f's_add_u32 s{S_T0}, s{S_T0}, {YP}', 's_waitcnt lgkmcnt(0)')
    for e in range(4): a(f'v_add_f32 v{U+e}, v{U+e}, v{U+4+e}')
    for e in range(4): a(f'v_add_f32 v{U+e}, v{U+e}, v{U+8+e}')
    a(f'buffer_store_dwordx4 v[{U}:{U+3}], v{V_T}, {WS}, s{S_T0} offen sc1')
    a(f'{done}:', 's_mov_b64 exec, s[34:35]')

def phase_f(a):
    U = 80
    a(f'v_dot2_f32_bf16 v{V_SIG}, v{H_X}, v{V_XW+5}, 0')
    for j in range(1, 5): a(f'v_dot2_f32_bf16 v{V_SIG}, v{H_X+j}, v{V_XW+5+j}, v{V_SIG}')
    a(f's_mul_i32 s{S_T0}, s{S_M}, 6144', f's_add_u32 s{S_T0}, s{S_T0}, {YP}', f's_add_u32 s{S_T1}, s{S_T0}, 4096', f'v_lshlrev_b32 v{V_T}, 3, v0')
    wave_red(a, [V_SIG], [V_T+1])
    bf16r(a, V_SIG, V_SIG)
    a(f'v_mul_f32 v{V_SIG}, s{S_LOG2E}, v{V_SIG}', f'v_sub_f32 v{V_SIG}, 0, v{V_SIG}', f'v_exp_f32 v{V_SIG}, v{V_SIG}', 's_nop 0',
      f'v_add_f32 v{V_SIG}, 1.0, v{V_SIG}', f'v_rcp_f32 v{V_SIG}, v{V_SIG}', 's_nop 0')
    bf16r(a, V_SIG, V_SIG)
    a(f'v_and_b32 v{V_T+2}, 15, v0', f's_lshl_b32 s{S_T2}, s{S_M}, 4', f'v_add_u32 v{V_T+2}, s{S_T2}, v{V_T+2}', f'v_lshlrev_b32 v{V_T+2}, 1, v{V_T+2}')
    HH = 126
    a(f'ds_read_u16 v{HH}, v{V_T+2} offset:{L_H}', f'ds_read_u16 v{HH+1}, v{V_T+2} offset:{L_XN}')
    srd(a, SRD_A, P_OUT, 1280)
    Y = 100
    def f_issue(P):
        a(f'buffer_load_dwordx2 v[{P}:{P+1}], v{V_T}, {WS}, s{S_T0} offen sc1', f'buffer_load_dwordx2 v[{P+2}:{P+3}], v{V_T}, {WS}, s{S_T0} offen offset:2048 sc1',
          f'buffer_load_dwordx2 v[{P+4}:{P+5}], v{V_T}, {WS}, s{S_T1} offen sc1')
    def f_post(P):
        a(f'v_add_f32 v{Y}, v{P}, v{P+2}', f'v_add_f32 v{Y+1}, v{P+1}, v{P+3}', f'v_add_f32 v{Y}, v{Y}, v{P+4}', f'v_add_f32 v{Y+1}, v{Y+1}, v{P+5}')
    if OPT['ov']:
        poll2(a, f_issue, 6, 80, 88, 3, f_post, V_T+1)
    else:
        lbl = a.label('fspin'); spin_begin(a, lbl); f_issue(80); a('s_waitcnt vmcnt(0)'); spin_end(a, lbl, list(range(80, 86)), V_T+1); f_post(80)
    stamp(a, 10)
    a('s_nop 1'); dpp(a, 'v_add_f32', Y, 'row_ror:8'); dpp(a, 'v_add_f32', Y+1, 'row_ror:8')
    swap_reduce(a, Y, 1, 'v_permlane16_swap_b32')
    a(f'v_mov_b32 v{Y+1}, v{Y}', f'v_and_b32 v{V_T}, 7, v{V_LANE}', f'v_lshlrev_b32 v{V_T}, 3, v{V_T}', f'v_bfe_u32 v{V_T+1}, v{V_LANE}, 4, 1', f'v_lshl_add_u32 v{V_T}, v{V_T+1}, 2, v{V_T}',
      f's_lshl_b32 s{S_T0}, s{S_WAVE}, 6', f'v_add_u32 v{V_T}, s{S_T0}, v{V_T}')
    a(f'v_permlane32_swap_b32 v{Y}, v{Y+1}', 's_nop 0', f'v_add_f32 v{Y}, v{Y}, v{Y+1}')
    a(f'ds_write_b32 v{V_T}, v{Y} offset:{L_G}', 's_waitcnt lgkmcnt(0)', 's_barrier')
    done = a.label('fd')
    a(f's_cmp_ge_u32 s{S_WAVE}, 1', f's_cbranch_scc1 {done}')
    a(f'v_and_b32 v{V_T}, 15, v0', f'v_lshlrev_b32 v{V_T}, 2, v{V_T}')
    U = 104
    for w in range(4): a(f'ds_read_b32 v{U+w}, v{V_T} offset:{L_G+64*w}')
    a(f'v_lshlrev_b32 v{U+16}, 16, v{HH}', f'v_lshlrev_b32 v{U+17}, 16, v{HH+1}', 's_bfm_b64 exec, 16, 0', 's_waitcnt lgkmcnt(0)')
    a(f'v_add_f32 v{U}, v{U}, v{U+1}', f'v_add_f32 v{U+2}, v{U+2}, v{U+3}', f'v_add_f32 v{U}, v{U}, v{U+2}')
    bf16r(a, U, U)
    a(f'v_mul_f32 v{U}, v{U}, v{V_SIG}')
    bf16r(a, U, U)
    a(f'v_add_f32 v{U}, v{U+17}, v{U}')
    bf16r(a, U, U)
    a(f'v_add_f32 v{U}, v{U+16}, v{U}', f'v_cvt_pk_bf16_f32 v{U}, v{U}, v{U}')
    a(f'buffer_store_short v{U}, v{V_T+2}, {R(SRD_A)}, 0 offen', 's_mov_b64 exec, -1', f'{done}:')

def build():
    a = Asm()
    name = NAME_BASE + '_kernel'
    hdr = header([f'; @launch grid=(256,1,1) block=(256,1,1) lds={LDS_BYTES}'])
    a('.amdgcn_target "amdgcn-amd-amdhsa--gfx950"', '.text')
    end = a.label('end')
    a(f'.globl {name}', '.p2align 8', f'.type {name},@function', f'{name}:', 'L_code_start:')
    prologue(a, end)
    stamp(a, 0); dstamp(a, 4, True)
    startup(a)
    stream(a)
    stamp(a, 3); dstamp(a, 7)
    a('L_tail_start:')
    phase_t1(a)
    stamp(a, 4)
    dbg_check(a)
    rm = a.label('rolem'); fin = a.label('fin')
    a('s_cmp_ge_u32 s2, 160', f's_cbranch_scc1 {rm}')
    phase_w(a); stamp(a, 6)
    a(f's_branch {fin}', f'{rm}:')
    phase_h(a); stamp(a, 8)
    phase_m(a); stamp(a, 9)
    a(f's_cmp_ge_u32 s{S_M}, 40', f's_cbranch_scc1 {fin}')
    phase_f(a); stamp(a, 11)
    a(f'{fin}:', 's_waitcnt vmcnt(0) lgkmcnt(0)')
    stamp(a, 15); dstamp(a, 5)
    a('s_waitcnt vmcnt(0)')
    a(f'{end}:', 's_endpgm', 'L_code_end:')
    a('.section .rodata,"a"', '.p2align 6')
    a.lines.append(kernel_desc(name, 256, 102))
    return '\n'.join(hdr) + '\n' + a.text()

if __name__ == '__main__':
    for x in sys.argv[1:]:
        if x == 'stamp': OPT['stamp'] = 1
        elif '=' in x:
            k, v = x.split('='); assert k in OPT, k; OPT[k] = int(v)
    sys.stdout.write(build())
```

```python
import sys, struct
from asmlib import *

def f2u(x): return struct.unpack('<I', struct.pack('<f', x))[0]
SCALE = f2u(192 ** -0.5); LOG2E = f2u(1.4426950408889634); INV640 = f2u(1.0/640); EPS = f2u(1e-5); NEGBIG = f2u(-3.0e38)
KV_BYTES = 402653184; HEAD_BYTES = 12582912
CNT, OP, HP, YP, EPOCH, TS, QP2, WS_USED = 0x40000, 0x50000, 0x180000, 0xA0000, 0xE8000, 0xF0000, 0x100000, 0x200000
HPS = 20480 + 256
L_RED = 0
L_A, L_B, L_C, L_D, L_E, L_F, L_G = 0, 3072, 4096, 14336, 14592, 15104, 3072
L_XN = 24576
L_H = 29696
L_SM = 34816
L_OV = 35840
LDS_BYTES = 38912
S_WAVE = 3
SRD_K, SRD_V, SRD_WS, SRD_A, SRD_B = 8, 12, 16, 20, 24
S_HEAD, S_MEM, S_SCALE, S_LOG2E = 28, 29, 30, 31
S_T0, S_T1, S_T2, S_T3 = 32, 33, 34, 35
P_X, P_K, P_V, P_WQ, P_WO, P_BX, P_WR, P_WG = 36, 38, 40, 42, 44, 46, 48, 50
P_WU, P_WD, P_OUT, P_DBG, P_WS = 52, 54, 56, 58, 60
S_OFF, S_HB, S_CNT, S_NX, S_SPIN, S_M = 62, 63, 64, 65, 66, 67
S_G = 68
S_ROT, S_TAG, S_K, S_SU = 76, 77, 78, 79
S_ROW = 86
SRD_C, SRD_D, SRD_E = 88, 92, 96
V_LANE, V_OFFB, V_ZERO = 1, 2, 3
V_Q, V_ACC, V_M, V_L, V_T = 4, 16, 40, 41, 42
V_ATOM, V_SIG, V_E, V_DBG = 56, 57, 58, 59
V_CPF = 52
V_RING = 64
PF = 116
WGT = 192
V_XW = 176
WS = f's[{SRD_WS}:{SRD_WS+3}]'
OPT = dict(P=0, NS=120, hrot=37, cpf=1, cpf2=1, stamp=0, stampw=0, wmode=1, qov=1, npre=4, ov=0, fast=1, wsplit=6, dstamp=0, hr=1, pp=1)

def srd(a, reg, ptr, size):
    a(f's_mov_b32 s{reg}, s{ptr}', f's_and_b32 s{reg+1}, s{ptr+1}, 0xffff', f's_mov_b32 s{reg+2}, {size}', f's_mov_b32 s{reg+3}, 0x20000')
def R(a_): return f's[{a_}:{a_+3}]'
def stamp(a, slot):
    if not OPT['stamp']: return
    sk = a.label('ts')
    a(f"s_cmp_lg_u32 s{S_WAVE}, {OPT['stampw']}", f's_cbranch_scc1 {sk}')
    a('s_memrealtime s[80:81]', 's_waitcnt lgkmcnt(0)')
    a(f's_lshl_b32 s82, s2, 7', f's_add_u32 s82, s82, {TS + slot*8}')
    a('v_mov_b32 v62, s80', 'v_mov_b32 v63, s81', 's_mov_b64 s[84:85], exec', 's_mov_b64 exec, 1')
    a(f'buffer_store_dwordx2 v[62:63], v{V_ZERO}, {WS}, s82 offen')
    a('s_mov_b64 exec, s[84:85]', 's_nop 1')
    a(f'{sk}:')
def dstamp(a, word, neg=False):
    if not OPT['dstamp']: return
    sk = a.label('ds')
    a(f's_cmp_lg_u32 s{S_WAVE}, 0', f's_cbranch_scc1 {sk}')
    a('s_memrealtime s[80:81]', 's_waitcnt lgkmcnt(0)')
    if neg: a('s_not_b32 s80, s80')
    a(f's_mov_b32 s84, s{P_DBG}', f's_and_b32 s85, s{P_DBG+1}, 0xffff')
    a('v_mov_b32 v62, s80', f'v_mov_b32 v63, {4*word}', 's_mov_b64 s[82:83], exec', 's_mov_b64 exec, 1')
    a(f'global_atomic_umax v63, v62, s[84:85]')
    a('s_mov_b64 exec, s[82:83]', 's_nop 1')
    a(f'{sk}:')
def bf16r(a, dst, src):
    a(f'v_cvt_pk_bf16_f32 v{dst}, v{src}, v{src}', f'v_and_b32 v{dst}, 0xffff0000, v{dst}')
def dpp(a, ins, v, d): a(f'{ins}_dpp v{v}, v{v}, v{v} {d} row_mask:0xf bank_mask:0xf')
def wave_red(a, vs, ts, op='v_add_f32'):
    pad = max(0, 2 - (len(vs) - 1))
    for d in ('quad_perm:[1,0,3,2]', 'quad_perm:[2,3,0,1]', 'row_half_mirror', 'row_mirror'):
        a('s_nop 1')
        for v in vs: dpp(a, op, v, d)
    for p in ('v_permlane16_swap_b32', 'v_permlane32_swap_b32'):
        for v, t in zip(vs, ts): a(f'v_mov_b32 v{t}, v{v}')
        a('s_nop 1')
        for v, t in zip(vs, ts): a(f'{p} v{t}, v{v}')
        a('s_nop 0')
        for v, t in zip(vs, ts): a(f'{op} v{v}, v{v}, v{t}')
def groups_red(a, v, t, op):
    a('s_nop 1'); dpp(a, op, v, 'row_ror:8')
    for p in ('v_permlane16_swap_b32', 'v_permlane32_swap_b32'):
        a(f'v_mov_b32 v{t}, v{v}', 's_nop 1', f'{p} v{t}, v{v}', 's_nop 0', f'{op} v{v}, v{v}, v{t}')
def swap_reduce(a, base, n, p):
    a('s_nop 1')
    for i in range(n): a(f'{p} v{base+i}, v{base+n+i}')
    a('s_nop 0')
    for i in range(n): a(f'v_add_f32 v{base+i}, v{base+i}, v{base+n+i}')
def unpack5(a, src, dst):
    for j in range(5): a(f'v_lshlrev_b32 v{dst+2*j}, 16, v{src+j}', f'v_and_b32 v{dst+2*j+1}, 0xffff0000, v{src+j}')
def layernorm(a, x, t):
    s1, s2, u, w2, sd, mean = t, t+1, t+2, t+3, t+4, t+5
    a('s_nop 0', f'v_readfirstlane_b32 s{S_T0}, v{x}', 's_nop 1')
    a(f'v_subrev_f32 v{s1}, s{S_T0}, v{x}', f'v_mul_f32 v{s2}, v{s1}, v{s1}')
    for i in range(1, 10):
        a(f'v_subrev_f32 v{u}, s{S_T0}, v{x+i}', f'v_add_f32 v{s1}, v{s1}, v{u}', f'v_fmac_f32 v{s2}, v{u}, v{u}')
    wave_red(a, [s1, s2], [u, w2])
    a(f'v_mul_f32 v{s1}, 0x{INV640:08x}, v{s1}', f'v_mul_f32 v{s2}, 0x{INV640:08x}, v{s2}')
    a(f'v_fma_f32 v{s2}, -v{s1}, v{s1}, v{s2}', f'v_max_f32 v{s2}, 0, v{s2}')
    a(f'v_add_f32 v{mean}, s{S_T0}, v{s1}')
    bf16r(a, s2, s2)
    a(f'v_add_f32 v{s2}, 0x{EPS:08x}, v{s2}')
    bf16r(a, s2, s2)
    a(f'v_sqrt_f32 v{sd}, v{s2}')
    bf16r(a, mean, mean)
    bf16r(a, sd, sd)
    a(f'v_rcp_f32 v{sd}, v{sd}')
    for i in range(0, 10, 2):
        a(f'v_sub_f32 v{x+i}, v{x+i}, v{mean}', f'v_sub_f32 v{x+i+1}, v{x+i+1}, v{mean}', f'v_cvt_pk_bf16_f32 v{u}, v{x+i}, v{x+i+1}',
          f'v_lshlrev_b32 v{x+i}, 16, v{u}', f'v_and_b32 v{x+i+1}, 0xffff0000, v{u}', f'v_mul_f32 v{x+i}, v{x+i}, v{sd}', f'v_mul_f32 v{x+i+1}, v{x+i+1}, v{sd}')
def pv_unit(a, vreg, plo, phi):
    for j in range(3):
        for i in range(4):
            a(f'v_dot2_f32_bf16 v{V_ACC+8*j+2*i}, v{vreg+4*j+i}, v{plo}, v{V_ACC+8*j+2*i}')
            a(f'v_dot2_f32_bf16 v{V_ACC+8*j+2*i+1}, v{vreg+4*j+i}, v{phi}, v{V_ACC+8*j+2*i+1}')
def acc_reduce_write(a, lbase, t):
    a('s_nop 2')
    for i in range(24): dpp(a, 'v_add_f32', V_ACC+i, 'row_ror:8')
    swap_reduce(a, V_ACC, 12, 'v_permlane16_swap_b32')
    a(f'v_and_b32 v{t}, 7, v{V_LANE}', f'v_mul_u32_u24 v{t}, 96, v{t}', f'v_bfe_u32 v{t+1}, v{V_LANE}, 4, 1', f'v_mul_u32_u24 v{t+1}, 48, v{t+1}', f'v_add_u32 v{t}, v{t}, v{t+1}',
      f'v_lshrrev_b32 v{t+1}, 5, v{V_LANE}', f'v_mul_u32_u24 v{t+1}, 24, v{t+1}', f's_mul_i32 s{S_T0}, s{S_WAVE}, 768', f'v_add3_u32 v{t}, v{t}, v{t+1}, s{S_T0}')
    swap_reduce(a, V_ACC, 6, 'v_permlane32_swap_b32')
    for i in range(3): a(f'ds_write_b64 v{t}, v[{V_ACC+2*i}:{V_ACC+2*i+1}] offset:{lbase+8*i}')
def m_index(a):
    a(f's_sub_u32 s{S_T0}, s2, 160', f's_and_b32 s{S_T1}, s{S_T0}, 7', f's_mul_i32 s{S_T1}, s{S_T1}, 12', f's_lshr_b32 s{S_T0}, s{S_T0}, 3', f's_add_u32 s{S_M}, s{S_T0}, s{S_T1}')
def role_branch(a, wbody, mbody):
    lm = a.label('rm'); le = a.label('re')
    a('s_cmp_ge_u32 s2, 160', f's_cbranch_scc1 {lm}'); wbody(); a(f's_branch {le}', f'{lm}:'); mbody(); a(f'{le}:')
def spin_begin(a, lbl): a(f's_mov_b32 s{S_SPIN}, 0', f'{lbl}:')
def spin_end(a, lbl, regs, t):
    ok = a.label('ok')
    a(f'v_max3_u32 v{t}, v{regs[0]}, v{regs[1]}, v{regs[2]}'); rest = regs[3:]
    while len(rest) >= 2:
        a(f'v_max3_u32 v{t}, v{t}, v{rest[0]}, v{rest[1]}'); rest = rest[2:]
    if rest: a(f'v_max_u32 v{t}, v{t}, v{rest[0]}')
    a(f'v_cmp_eq_u32 vcc, -1, v{t}', f's_cbranch_vccz {ok}')
    a(f's_add_u32 s{S_SPIN}, s{S_SPIN}, 1', f's_cmp_lt_u32 s{S_SPIN}, 200000', f's_cbranch_scc1 {lbl}')
    a(f'{ok}:')
def sent_check(a, regs, t):
    a(f'v_max3_u32 v{t}, v{regs[0]}, v{regs[1]}, v{regs[2]}'); rest = regs[3:]
    while len(rest) >= 2:
        a(f'v_max3_u32 v{t}, v{t}, v{rest[0]}, v{rest[1]}'); rest = rest[2:]
    if rest: a(f'v_max_u32 v{t}, v{t}, v{rest[0]}')
    a(f'v_cmp_eq_u32 vcc, -1, v{t}')
def poll2(a, issue_fn, nregs, baseA, baseB, nloads, post, t):
    lbl = a.label('spin'); okA = a.label('okA'); okB = a.label('okB'); join = a.label('join')
    a(f's_mov_b32 s{S_SPIN}, 0')
    issue_fn(baseA)
    a(f'{lbl}:')
    issue_fn(baseB)
    a(f's_waitcnt vmcnt({nloads})'); sent_check(a, list(range(baseA, baseA+nregs)), t); a(f's_cbranch_vccz {okA}')
    issue_fn(baseA)
    a(f's_waitcnt vmcnt({nloads})'); sent_check(a, list(range(baseB, baseB+nregs)), t); a(f's_cbranch_vccz {okB}')
    a(f's_add_u32 s{S_SPIN}, s{S_SPIN}, 1', f's_cmp_lt_u32 s{S_SPIN}, 100000', f's_cbranch_scc1 {lbl}', f's_branch {okA}')
    a(f'{okB}:'); post(baseB); a(f's_branch {join}')
    a(f'{okA}:'); post(baseA)
    a(f'{join}:')
def code_prefetch(a, start, end, n, vtmp):
    pc = a.label('pc')
    a(f's_getpc_b64 s[{SRD_C}:{SRD_C+1}]', f'{pc}:')
    if start == 'L_code_start': a(f's_sub_u32 s{SRD_C}, s{SRD_C}, {pc}-{start}', f's_subb_u32 s{SRD_C+1}, s{SRD_C+1}, 0')
    else: a(f's_add_u32 s{SRD_C}, s{SRD_C}, {start}-{pc}', f's_addc_u32 s{SRD_C+1}, s{SRD_C+1}, 0')
    a(f's_and_b32 s{SRD_C+1}, s{SRD_C+1}, 0xffff', f's_mov_b32 s{SRD_C+2}, {end}-{start}', f's_mov_b32 s{SRD_C+3}, 0x20000')
    a(f's_lshr_b32 s{S_T0}, s2, 3', f's_mul_i32 s{S_T0}, s{S_T0}, ((({end}-{start})+31)/32+15)&0xfffffff0')
    a(f'v_lshlrev_b32 v{vtmp}, 4, v{V_LANE}')
    for i in range(n): a(f'buffer_load_dwordx4 v[{V_CPF}:{V_CPF+3}], v{vtmp}, {R(SRD_C)}, s{S_T0} offen offset:{1024*i}')

def prologue(a, endlabel):
    a('s_cmp_ge_u32 s2, 256', f's_cbranch_scc1 {endlabel}')
    a('s_load_dwordx16 s[36:51], s[0:1], 0', 's_load_dwordx8 s[52:59], s[0:1], 64', 's_load_dwordx2 s[60:61], s[0:1], 96')
    a(f'v_lshrrev_b32 v{V_LANE}, 6, v0', f'v_mov_b32 v{V_ZERO}, 0', f'v_readfirstlane_b32 s{S_WAVE}, v{V_LANE}', f'v_and_b32 v{V_LANE}, 63, v0')
    a(f'v_lshrrev_b32 v{V_T}, 3, v{V_LANE}', f'v_mul_u32_u24 v{V_T}, 384, v{V_T}', f'v_and_b32 v{V_T+1}, 7, v{V_LANE}', f'v_lshl_add_u32 v{V_OFFB}, v{V_T+1}, 4, v{V_T}')
    a(f's_mov_b32 s{S_SCALE}, 0x{SCALE:08x}', f's_mov_b32 s{S_LOG2E}, 0x{LOG2E:08x}')
    a(f's_lshr_b32 s{S_T0}, s2, 3', f's_and_b32 s{S_MEM}, s2, 7', f's_lshl_b32 s{S_T1}, s{S_MEM}, 2', f's_add_u32 s{S_T0}, s{S_T0}, s{S_T1}', f's_and_b32 s{S_HEAD}, s{S_T0}, 31')
    a(f's_lshl_b32 s{S_ROW}, s{S_HEAD}, 3', f's_add_u32 s{S_ROW}, s{S_ROW}, s{S_MEM}')
    a('s_waitcnt lgkmcnt(0)')
    srd(a, SRD_WS, P_WS, WS_USED)

V_PA, V_PB, S_PA, S_PB, S_PRE = 48, 49, 87, 100, 101
def w_setup(a):
    srd(a, SRD_C, P_WO, 7864320)
    a(f's_and_b32 s{S_T0}, s2, 7', f's_mul_i32 s{S_T0}, s{S_T0}, 768', f's_mul_i32 s{S_T1}, s{S_WAVE}, 192', f's_add_u32 s{S_T0}, s{S_T0}, s{S_T1}',
      f's_mul_i32 s{S_T0}, s{S_T0}, 1280', f's_lshr_b32 s{S_T1}, s2, 3', f's_lshl_b32 s{S_T1}, s{S_T1}, 6', f's_add_u32 s{S_PA}, s{S_T0}, s{S_T1}')
    a(f'v_lshrrev_b32 v{V_PA}, 2, v{V_LANE}', f'v_mul_u32_u24 v{V_PA}, 1280, v{V_PA}', f'v_and_b32 v{V_PB}, 3, v{V_LANE}', f'v_lshl_add_u32 v{V_PA}, v{V_PB}, 4, v{V_PA}')
def w_loads():
    return [f'buffer_load_dwordx4 v[{WGT+4*p}:{WGT+4*p+3}], v{V_PA}, {R(SRD_C)}, s{S_PA} offen nt\ns_add_u32 s{S_PA}, s{S_PA}, {16*1280}' for p in range(12)]
def m_setup(a):
    a(f's_cmp_ge_u32 s{S_WAVE}, 2', f's_cselect_b32 s{S_T0}, s{P_WU}, s{P_WG}', f's_cselect_b32 s{S_T1}, s{P_WU+1}, s{P_WG+1}')
    srd(a, SRD_C, S_T0, 1966080); srd(a, SRD_D, P_WD, 1966080)
    a(f'v_and_b32 v{V_PB}, 127, v0', f'v_lshrrev_b32 v{V_PA}, 1, v{V_PB}', f'v_mul_u32_u24 v{V_PA}, 3072, v{V_PA}', f'v_and_b32 v{V_PB}, 1, v{V_PB}', f'v_lshl_add_u32 v{V_PA}, v{V_PB}, 4, v{V_PA}')
    a(f's_lshl_b32 s{S_PA}, s{S_M}, 5')
    a(f'v_mul_u32_u24 v{V_PB}, 205, v0', f'v_lshrrev_b32 v{V_PB}, 14, v{V_PB}', f'v_mul_u32_u24 v50, 80, v{V_PB}', f'v_sub_u32 v50, v0, v50',
      f'v_mul_u32_u24 v{V_PB}, 1280, v{V_PB}', f'v_lshl_add_u32 v{V_PB}, v50, 4, v{V_PB}', f's_mul_i32 s{S_PB}, s{S_M}, {16*1280}')
def m_loads():
    l = [f'buffer_load_dwordx4 v[{WGT+4*p}:{WGT+4*p+3}], v{V_PA}, {R(SRD_C)}, s{S_PA} offen nt\ns_add_u32 s{S_PA}, s{S_PA}, {64*3072}' for p in range(10)]
    l += [f'buffer_load_dwordx4 v[{WGT+40+4*i}:{WGT+40+4*i+3}], v{V_PB}, {R(SRD_D)}, s{S_PB} offen nt\ns_add_u32 s{S_PB}, s{S_PB}, 3840' for i in range(6)]
    return l
def w_weights(a):
    w_setup(a)
    for l in w_loads(): a(l)
def m_weights(a):
    m_setup(a)
    for l in m_loads(): a(l)
NW_W, NW_M = 12, 16

def setoff(a):
    a(f's_add_u32 s{S_OFF}, s{S_NX}, s{S_ROT}', f's_and_b32 s{S_OFF}, s{S_OFF}, 4095', f's_mul_i32 s{S_OFF}, s{S_OFF}, 3072', f's_add_u32 s{S_OFF}, s{S_OFF}, s{S_HB}')
def issue(a, r):
    for j in range(3): a(f'buffer_load_dwordx4 v[{r+4*j}:{r+4*j+3}], v{V_OFFB}, {R(SRD_K)}, s{S_OFF} offen offset:{128*j} nt')
    for j in range(3): a(f'buffer_load_dwordx4 v[{r+12+4*j}:{r+12+4*j+3}], v{V_OFFB}, {R(SRD_V)}, s{S_OFF} offen offset:{128*j} nt')
def atomic(a):
    a(f'v_mov_b32 v{V_ATOM}, 1', 's_mov_b64 exec, 1', f'buffer_atomic_add v{V_ATOM}, v{V_ZERO}, {WS}, s{S_CNT} offen sc0', 's_mov_b64 exec, -1')
def static_next(a):
    a(f's_mov_b32 s{S_NX}, s{S_SU}', f's_add_u32 s{S_SU}, s{S_SU}, 32', f's_add_u32 s{S_K}, s{S_K}, 1')
def compute_unit(a, r):
    K, V = r, r+12
    t0, t1, t2, t3, t4, t5 = V_T, V_T+1, V_T+2, V_T+3, V_T+4, V_T+5
    for i in range(4):
        for j, t in enumerate((t0, t1, t2)):
            c = '0' if i == 0 else f'v{t}'
            a(f'v_dot2_f32_bf16 v{t}, v{K+4*j+i}, v{V_Q+4*j+i}, {c}')
    a('s_nop 2', f'v_add_f32 v{t0}, v{t0}, v{t1}', f'v_add_f32 v{t0}, v{t0}, v{t2}')
    for d in ('quad_perm:[1,0,3,2]', 'quad_perm:[2,3,0,1]', 'row_half_mirror'):
        a('s_nop 1'); dpp(a, 'v_add_f32', t0, d)
    bf16r(a, t0, t0)
    a(f'v_mul_f32 v{t0}, s{S_SCALE}, v{t0}')
    bf16r(a, t0, t0)
    a(f'v_max_f32 v{t1}, v{V_M}, v{t0}', f'v_sub_f32 v{t2}, v{V_M}, v{t1}', f'v_sub_f32 v{t3}, v{t0}, v{t1}',
      f'v_mul_f32 v{t2}, s{S_LOG2E}, v{t2}', f'v_mul_f32 v{t3}, s{S_LOG2E}, v{t3}', f'v_exp_f32 v{t2}, v{t2}', f'v_exp_f32 v{t3}, v{t3}', f'v_mov_b32 v{V_M}, v{t1}',
      f'v_fma_f32 v{V_L}, v{V_L}, v{t2}, v{t3}', f'v_cvt_pk_bf16_f32 v{t4}, v{t3}, 0', f'v_cvt_pk_bf16_f32 v{t5}, 0, v{t3}')
    for i in range(12):
        a(f'v_pk_mul_f32 v[{V_ACC+2*i}:{V_ACC+2*i+1}], v[{V_ACC+2*i}:{V_ACC+2*i+1}], v[{t2}:{t2+1}] op_sel_hi:[1,0]')
    pv_unit(a, V, t4, t5)

def startup(a):
    P = OPT['P']; NC = 2 if OPT['cpf'] else 0
    X, XF, W = 64, 70, 80
    srd(a, SRD_A, P_X, 1280); srd(a, SRD_B, P_WQ, 7864320)
    a(f'v_lshlrev_b32 v{V_T}, 2, v{V_LANE}', f's_mov_b32 s{S_T0}, {EPOCH}')
    a(f'buffer_load_dword v{V_E}, v{V_ZERO}, {WS}, s{S_T0} offen sc1')
    for j in range(5): a(f'buffer_load_dword v{X+j}, v{V_T}, {R(SRD_A)}, 0 offen offset:{256*j}')
    a(f'v_lshrrev_b32 v{V_T+1}, 3, v{V_LANE}', f'v_mul_u32_u24 v{V_T+1}, 12288, v{V_T+1}', f'v_and_b32 v{V_T+2}, 7, v{V_LANE}', f'v_lshl_add_u32 v{V_T+1}, v{V_T+2}, 4, v{V_T+1}')
    a(f's_mul_i32 s70, s{S_MEM}, 80', f's_lshl_b32 s{S_T1}, s{S_WAVE}, 3', f's_add_u32 s70, s70, s{S_T1}',
      f's_mul_i32 s{S_T1}, s70, 12288', f's_mul_i32 s{S_T2}, s{S_HEAD}, 384', f's_add_u32 s{S_T1}, s{S_T1}, s{S_T2}')
    third = a.label('q3')
    for u in range(3):
        if u == 2: a(f's_cmp_ge_u32 s{S_WAVE}, 2', f's_cbranch_scc1 {third}')
        for j in range(3): a(f'buffer_load_dwordx4 v[{W+12*u+4*j}:{W+12*u+4*j+3}], v{V_T+1}, {R(SRD_B)}, s{S_T1} offen offset:{128*j} nt')
        a(f's_add_u32 s{S_T1}, s{S_T1}, {32*12288}')
    a(f'{third}:')
    srd(a, SRD_K, P_K, KV_BYTES); srd(a, SRD_V, P_V, KV_BYTES)
    for i in range(4): a(f'v_mov_b32 v{V_T+2+i}, -1')
    a(f's_lshl_b32 s{S_T0}, s{S_ROW}, 10', f's_add_u32 s{S_T0}, s{S_T0}, {OP}', f'v_lshlrev_b32 v{V_T}, 2, v0')
    a(f'buffer_store_dword v{V_T+2}, v{V_T}, {WS}, s{S_T0} offen sc1')
    def wclr():
        sk = a.label('wc')
        a(f's_cmp_lg_u32 s{S_WAVE}, 0', f's_cbranch_scc1 {sk}')
        a(f's_and_b32 s{S_T0}, s2, 7', f's_mul_i32 s{S_T0}, s{S_T0}, 2560', f's_lshr_b32 s{S_T1}, s2, 3', f's_lshl_b32 s{S_T1}, s{S_T1}, 7',
          f's_add_u32 s{S_T0}, s{S_T0}, s{S_T1}', f's_add_u32 s{S_T0}, s{S_T0}, {HP}')
        a('v_cmp_gt_u32 vcc, 32, v0', 's_and_saveexec_b64 s[34:35], vcc')
        for r in range(OPT['hr']):
            a(f'buffer_store_dword v{V_T+2}, v{V_T}, {WS}, s{S_T0} offen sc1')
            if r < OPT['hr']-1: a(f's_add_u32 s{S_T0}, s{S_T0}, {HPS}')
        a('s_mov_b64 exec, s[34:35]', f'{sk}:')
    def mclr():
        m_index(a)
        sk = a.label('mc')
        a(f's_cmp_ge_u32 s{S_WAVE}, 3', f's_cbranch_scc1 {sk}')
        a(f'v_lshrrev_b32 v{V_T}, 2, v0', f'v_mul_u32_u24 v{V_T}, 6144, v{V_T}', f'v_and_b32 v{V_T+1}, 3, v0', f'v_lshl_add_u32 v{V_T}, v{V_T+1}, 4, v{V_T}',
          f's_lshl_b32 s{S_T0}, s{S_M}, 6', f's_add_u32 s{S_T0}, s{S_T0}, {YP}')
        a('v_cmp_gt_u32 vcc, 160, v0', 's_and_saveexec_b64 s[34:35], vcc', f'buffer_store_dwordx4 v[{V_T+2}:{V_T+5}], v{V_T}, {WS}, s{S_T0} offen sc1', 's_mov_b64 exec, s[34:35]', f'{sk}:')
    role_branch(a, wclr, mclr)
    sk = a.label('cz')
    a(f's_lshl_b32 s{S_CNT}, s{S_HEAD}, 8', f's_add_u32 s{S_CNT}, s{S_CNT}, {CNT}')
    a(f's_or_b32 s{S_T0}, s{S_MEM}, s{S_WAVE}', f's_cmp_lg_u32 s{S_T0}, 0', f's_cbranch_scc1 {sk}', 's_mov_b64 exec, 1')
    a(f'buffer_store_dword v{V_ZERO}, v{V_ZERO}, {WS}, s{S_CNT} offen sc1', 's_mov_b64 exec, -1', f'{sk}:')
    a(f's_mul_i32 s{S_HB}, s{S_HEAD}, {HEAD_BYTES}', f"s_mul_i32 s{S_ROT}, s{S_HEAD}, {OPT['hrot']}")
    a(f's_lshl_b32 s{S_SU}, s{S_MEM}, 2', f's_add_u32 s{S_SU}, s{S_SU}, s{S_WAVE}', f's_mov_b32 s{S_K}, 0')
    nopf = a.label('nopf'); pfd = a.label('pfd')
    a(f's_cmp_ge_u32 s{S_WAVE}, 3', f's_cbranch_scc1 {nopf}')
    if NC: code_prefetch(a, 'L_code_start', 'L_code_end', NC, V_T)
    for k in range(P):
        static_next(a); setoff(a); issue(a, PF + 24*k)
    a(f's_waitcnt vmcnt({7+NC+6*P})', f's_branch {pfd}', f'{nopf}:', 's_waitcnt vmcnt(7)', f'{pfd}:')
    a(f'v_readfirstlane_b32 s{S_TAG}, v{V_E}')
    unpack5(a, X, XF)
    a(f's_add_u32 s{S_TAG}, s{S_TAG}, 1')
    for i in range(24): a(f'v_mov_b32 v{V_ACC+i}, 0')
    layernorm(a, XF, V_T+4)
    for j in range(5): a(f'v_cvt_pk_bf16_f32 v{X+j}, v{XF+2*j}, v{XF+2*j+1}')
    a(f's_mul_i32 s{S_T2}, s{S_WAVE}, 1280', f'v_lshlrev_b32 v{V_T}, 2, v{V_LANE}', f'v_add_u32 v{V_T}, s{S_T2}, v{V_T}')
    for j in range(5): a(f'ds_write_b32 v{V_T}, v{X+j} offset:{L_XN+256*j}')
    a(f's_lshl_b32 s{S_T0}, s70, 1', f's_add_u32 s{S_T0}, s{S_T0}, s{S_T2}', f'v_lshrrev_b32 v{V_T}, 3, v{V_LANE}', f'v_lshlrev_b32 v{V_T}, 1, v{V_T}', f'v_add_u32 v{V_T}, s{S_T0}, v{V_T}')
    a('s_waitcnt lgkmcnt(0)')
    for u in range(3): a(f'ds_read_u16 v{X+u}, v{V_T} offset:{L_XN+64*u}')
    w3 = a.label('w3'); w3d = a.label('w3d')
    a(f's_cmp_ge_u32 s{S_WAVE}, 3', f's_cbranch_scc1 {w3}', f's_waitcnt lgkmcnt(0) vmcnt({NC+6*P})', f's_branch {w3d}',
      f'{w3}:', 's_waitcnt lgkmcnt(0) vmcnt(0)', f'{w3d}:')
    NE = OPT['wsplit'] if OPT['wmode'] <= 1 else 0
    if NE:
        ske = a.label('ske')
        role_branch(a, lambda: w_setup(a), lambda: m_setup(a))
        a(f's_cmp_ge_u32 s{S_WAVE}, 3', f's_cbranch_scc1 {ske}')
        role_branch(a, lambda: [a(l) for l in w_loads()[:NE]], lambda: [a(l) for l in m_loads()[10:10+NE]])
        a(f'{ske}:')
    stamp(a, 12)
    skip = a.label('q3b')
    for u in range(3):
        if u == 2: a(f's_cmp_ge_u32 s{S_WAVE}, 2', f's_cbranch_scc1 {skip}')
        a(f'v_lshlrev_b32 v{X+4}, 16, v{X+u}')
        pv_unit(a, W+12*u, X+u, X+4)
    a(f'{skip}:')
    acc_reduce_write(a, L_A, V_T)
    a('s_waitcnt lgkmcnt(0)', 's_barrier')
    stamp(a, 1)
    gat = a.label('gat'); qrdy = a.label('qrdy')
    a(f's_cmp_ge_u32 s{S_WAVE}, 3', f's_cbranch_scc1 {gat}')
    a(f'v_lshlrev_b32 v{V_T}, 2, v0')
    for w in range(4): a(f'ds_read_b32 v{96+w}, v{V_T} offset:{L_A+768*w}')
    a(f's_lshl_b32 s{S_T0}, s{S_ROW}, 11', f's_add_u32 s{S_T0}, s{S_T0}, {QP2}', f'v_lshlrev_b32 v{V_T}, 3, v0', 's_waitcnt lgkmcnt(0)')
    a('v_add_f32 v96, v96, v97', 'v_add_f32 v98, v98, v99', f'v_mov_b32 v97, s{S_TAG}', 'v_add_f32 v96, v96, v98')
    a(f'buffer_store_dwordx2 v[96:97], v{V_T}, {WS}, s{S_T0} offen sc1')
    if OPT['wmode'] == 1: a('s_waitcnt vmcnt(0)')
    if OPT['wmode'] <= 1:
        if NE:
            role_branch(a, lambda: [a(l) for l in w_loads()[NE:]], lambda: [a(l) for l in m_loads()[:10] + m_loads()[10+NE:]])
        else:
            role_branch(a, lambda: w_weights(a), lambda: m_weights(a))
    a(f's_branch {qrdy}')
    a(f'{gat}:')
    a(f's_lshl_b32 s{S_T0}, s{S_HEAD}, 14', f's_add_u32 s{S_T0}, s{S_T0}, {QP2}')
    a(f's_add_u32 s{S_T1}, s{S_T0}, 4096', f's_add_u32 s{S_T2}, s{S_T0}, 8192', f's_add_u32 s{S_T3}, s{S_T0}, 12288', f'v_lshlrev_b32 v{V_T}, 3, v{V_LANE}')
    def qissue(base):
        for s in range(8):
            for j in range(3):
                r = base + 2*(3*s+j)
                a(f'buffer_load_dwordx2 v[{r}:{r+1}], v{V_T}, {WS}, s{S_T0 + s//2} offen offset:{2048*(s&1)+512*j} sc1')
    def qcheck(base):
        tags = [base + 2*i + 1 for i in range(24)]
        a(f'v_min3_u32 v{V_T+2}, v{tags[0]}, v{tags[1]}, v{tags[2]}', f'v_max3_u32 v{V_T+3}, v{tags[0]}, v{tags[1]}, v{tags[2]}')
        for i in range(3, 23, 2):
            a(f'v_min3_u32 v{V_T+2}, v{V_T+2}, v{tags[i]}, v{tags[i+1]}', f'v_max3_u32 v{V_T+3}, v{V_T+3}, v{tags[i]}, v{tags[i+1]}')
        a(f'v_min_u32 v{V_T+2}, v{V_T+2}, v{tags[23]}', f'v_max_u32 v{V_T+3}, v{V_T+3}, v{tags[23]}')
        a(f'v_xor_b32 v{V_T+2}, s{S_TAG}, v{V_T+2}', f'v_xor_b32 v{V_T+3}, s{S_TAG}, v{V_T+3}', f'v_or_b32 v{V_T+2}, v{V_T+2}, v{V_T+3}')
        a(f'v_cmp_ne_u32 vcc, 0, v{V_T+2}')
    def qpost(base):
        for j in range(3):
            for s in range(1, 8): a(f'v_add_f32 v{base+2*j}, v{base+2*j}, v{base+2*(3*s+j)}')
            a(f'v_cvt_pk_bf16_f32 v{base+2*j}, v{base+2*j}, v{base+2*j}')
            a(f'ds_write_b16 v{V_T+6+j}, v{base+2*j} offset:{L_SM+64}')
    for j in range(3):
        a(f'v_add_u32 v{V_T+1}, {64*j}, v{V_LANE}', f'v_mul_u32_u24 v{V_T+2}, 2731, v{V_T+1}', f'v_lshrrev_b32 v{V_T+2}, 16, v{V_T+2}',
          f'v_mul_u32_u24 v{V_T+3}, 24, v{V_T+2}', f'v_sub_u32 v{V_T+3}, v{V_T+1}, v{V_T+3}',
          f'v_lshrrev_b32 v{V_T+4}, 3, v{V_T+3}', f'v_and_b32 v{V_T+3}, 7, v{V_T+3}', f'v_lshlrev_b32 v{V_T+4}, 6, v{V_T+4}',
          f'v_lshl_add_u32 v{V_T+4}, v{V_T+2}, 3, v{V_T+4}', f'v_add_lshl_u32 v{V_T+6+j}, v{V_T+4}, v{V_T+3}, 1')
    lbl = a.label('qspin'); ok = a.label('qok'); qjoin = a.label('qjoin')
    if OPT['qov']:
        okb = a.label('qokb')
        a(f's_mov_b32 s{S_SPIN}, 0')
        qissue(64)
        a(f'{lbl}:')
        qissue(116)
        a('s_waitcnt vmcnt(24)'); qcheck(64); a(f's_cbranch_vccz {ok}')
        qissue(64)
        a('s_waitcnt vmcnt(24)'); qcheck(116); a(f's_cbranch_vccz {okb}')
        a(f's_add_u32 s{S_SPIN}, s{S_SPIN}, 1', f's_cmp_lt_u32 s{S_SPIN}, 100000', f's_cbranch_scc1 {lbl}', f's_branch {ok}')
        a(f'{okb}:')
        qpost(116)
        a(f's_branch {qjoin}', f'{ok}:')
    else:
        spin_begin(a, lbl)
        qissue(64)
        a('s_waitcnt vmcnt(0)'); qcheck(64)
        a(f's_cbranch_vccz {ok}', f's_add_u32 s{S_SPIN}, s{S_SPIN}, 1', f's_cmp_lt_u32 s{S_SPIN}, 200000', f's_cbranch_scc1 {lbl}', f'{ok}:')
    qpost(64)
    a(f'{qjoin}:')
    stamp(a, 13)
    srd(a, SRD_A, P_DBG, 256)
    a(f'v_mov_b32 v{V_T}, 1', 's_mov_b64 exec, 1', f'buffer_atomic_add v{V_T}, v{V_ZERO}, {R(SRD_A)}, 0 offen', 's_mov_b64 exec, -1')
    if OPT['wmode'] <= 1: role_branch(a, lambda: w_weights(a), lambda: m_weights(a))
    a(f'{qrdy}:')
    a('s_waitcnt lgkmcnt(0)', 's_barrier')
    a(f'v_and_b32 v{V_T}, 7, v{V_LANE}', f'v_lshlrev_b32 v{V_T}, 4, v{V_T}')
    for j in range(3): a(f'ds_read_b128 v[{V_Q+4*j}:{V_Q+4*j+3}], v{V_T} offset:{L_SM+64+128*j}')

def pair_perm(a):
    a(f's_mov_b32 s{S_T2}, 0x05040100', f's_mov_b32 s{S_T3}, 0x07060302')
    def do(pairs):
        for A_, B_ in pairs:
            a(f'v_perm_b32 v50, v{B_}, v{A_}, s{S_T3}', f'v_perm_b32 v{A_}, v{B_}, v{A_}, s{S_T2}', f'v_mov_b32 v{B_}, v50')
    role_branch(a, lambda: do([(WGT+8*q+i, WGT+8*q+4+i) for q in range(6) for i in range(4)]),
                   lambda: do([(WGT+8*q+i, WGT+8*q+4+i) for q in range(8) for i in range(4)]))
def late_loads(a):
    srd(a, SRD_E, P_DBG, 256)
    a(f'buffer_load_dword v{V_DBG}, v{V_ZERO}, {R(SRD_E)}, 0 offen sc1')
    sk = a.label('lx')
    a('s_cmp_lt_u32 s2, 160', f's_cbranch_scc1 {sk}')
    srd(a, SRD_D, P_X, 1280); srd(a, SRD_E, P_WR, 1280)
    a(f'v_lshlrev_b32 v50, 2, v{V_LANE}')
    for j in range(5): a(f'buffer_load_dword v{V_XW+j}, v50, {R(SRD_D)}, 0 offen offset:{256*j}')
    for j in range(5): a(f'buffer_load_dword v{V_XW+5+j}, v50, {R(SRD_E)}, 0 offen offset:{256*j}')
    a(f'{sk}:')
    if OPT['cpf2']: code_prefetch(a, 'L_tail_start', 'L_code_end', 1, 50)

def stream(a):
    P, NS = OPT['P'], OPT['NS']
    static_next(a); setoff(a); issue(a, V_RING)
    NWX = 0
    if OPT['wmode'] == 2:
        role_branch(a, lambda: w_weights(a), lambda: m_weights(a)); NWX = NW_W
    for i in range(24): a(f'v_mov_b32 v{V_ACC+i}, 0')
    a(f'v_mov_b32 v{V_M}, 0x{NEGBIG:08x}', f'v_mov_b32 v{V_L}, 0', 's_waitcnt lgkmcnt(0)')
    if P:
        sk = a.label('pfs')
        a(f's_cmp_ge_u32 s{S_WAVE}, 3', f's_cbranch_scc1 {sk}', f's_waitcnt vmcnt({6+NWX})')
        for k in range(P): compute_unit(a, PF + 24*k)
        a(f'{sk}:')
    stamp(a, 2); dstamp(a, 6)
    loop = a.label('loop'); done = a.label('sdone'); late = a.label('late')
    drains = []; backs = []; pres = []
    NPRE = OPT['npre'] if OPT['wmode'] == 3 else 0
    if NPRE:
        role_branch(a, lambda: w_setup(a), lambda: m_setup(a))
        a(f's_mov_b32 s{S_PRE}, 0')
    def prepare():
        a(f's_mov_b32 s{S_NX}, s{S_SU}', f's_add_u32 s{S_SU}, s{S_SU}, 32'); setoff(a)
        a(f's_cmp_ge_u32 s{S_K}, {NS}')
    if OPT['fast']:
        prepare()
    a(f'{loop}:')
    for t in range(2):
        a('s_waitcnt vmcnt(0)')
        dyn = a.label('dyn'); cont = a.label('cont'); dl = a.label('drain'); drains.append((dl, t)); sw = a.label('sw'); backs.append((sw, cont))
        if OPT['fast']:
            a(f's_cbranch_scc1 {dyn}')
            issue(a, V_RING + 24*((t+1) % 2))
            a(f's_add_u32 s{S_K}, s{S_K}, 1', f's_cmp_eq_u32 s{S_K}, {NS}', f's_cbranch_scc1 {sw}')
            a(f'{cont}:')
        else:
            a(f's_cmp_ge_u32 s{S_K}, {NS}', f's_cbranch_scc1 {dyn}')
            static_next(a)
            a(f's_cmp_lt_u32 s{S_K}, {NS}', f's_cbranch_scc0 {sw}')
            a(f'{cont}:')
            setoff(a)
            issue(a, V_RING + 24*((t+1) % 2))
        if NPRE:
            pl = a.label('pre'); pb = a.label('preb'); pres.append((pl, pb, t))
            a(f's_cmp_lt_u32 s{S_PRE}, {NPRE}', f's_cbranch_scc1 {pl}', f'{pb}:')
        compute_unit(a, V_RING + 24*t)
        if OPT['fast']: prepare()
        if t == 0:
            nxt = a.label('n1'); a(f's_branch {nxt}')
        else:
            a(f's_branch {loop}')
        a(f'{dyn}:')
        a(f'v_readfirstlane_b32 s{S_NX}, v{V_ATOM}', 's_nop 0', f's_add_u32 s{S_NX}, s{S_NX}, {32*NS}', f's_cmp_ge_u32 s{S_NX}, 4096', f's_cbranch_scc1 {dl}')
        if OPT['fast']:
            setoff(a); issue(a, V_RING + 24*((t+1) % 2)); atomic(a)
        else:
            atomic(a)
        a(f's_branch {cont}')
        if t == 0: a(f'{nxt}:')
    for pl, pb, t in pres:
        a(f'{pl}:')
        ks = [k for k in range(NPRE) if k % 2 == t]
        ents = [(k, a.label('pe')) for k in ks]
        for k, e in ents[:-1]: a(f's_cmp_eq_u32 s{S_PRE}, {k}', f's_cbranch_scc1 {e}')
        a(f's_branch {ents[-1][1]}')
        for k, e in ents:
            a(f'{e}:')
            wl, ml = w_loads(), m_loads()
            pw, pm = -(-len(wl) // NPRE), -(-len(ml) // NPRE)
            role_branch(a, lambda: [a(l) for l in wl[pw*k:pw*(k+1)]], lambda: [a(l) for l in ml[pm*k:pm*(k+1)]])
            a(f's_add_u32 s{S_PRE}, s{S_PRE}, 1', f's_branch {pb}')
    for sw, cont in backs:
        a(f'{sw}:')
        atomic(a)
        if OPT['pp']: pair_perm(a)
        late_loads(a)
        a(f's_branch {cont}')
    for dl, t in drains:
        a(f'{dl}:')
        if OPT['wmode'] == 4: role_branch(a, lambda: w_weights(a), lambda: m_weights(a))
        compute_unit(a, V_RING + 24*t); a(f's_branch {done}')
    a(f'{done}:')

def phase_t1(a):
    t = V_T
    a('s_nop 2', f'v_mov_b32 v{t+2}, v{V_M}')
    groups_red(a, t+2, t+3, 'v_max_f32')
    a(f'v_sub_f32 v{t+4}, v{V_M}, v{t+2}', f'v_mul_f32 v{t+4}, s{S_LOG2E}, v{t+4}', f'v_exp_f32 v{t+4}, v{t+4}', 's_nop 0', f'v_mul_f32 v{V_L}, v{V_L}, v{t+4}')
    for i in range(12): a(f'v_pk_mul_f32 v[{V_ACC+2*i}:{V_ACC+2*i+1}], v[{V_ACC+2*i}:{V_ACC+2*i+1}], v[{t+4}:{t+5}] op_sel_hi:[1,0]')
    groups_red(a, V_L, t+3, 'v_add_f32')
    a(f'v_mov_b32 v{t+3}, v{V_L}', f's_lshl_b32 s{S_T1}, s{S_WAVE}, 3', f'v_mov_b32 v{t+6}, s{S_T1}', f'ds_write_b64 v{t+6}, v[{t+2}:{t+3}] offset:{L_SM}')
    acc_reduce_write(a, L_A, t+6)
    a('s_waitcnt lgkmcnt(0)', 's_barrier')
    a(f'ds_read_b128 v[100:103], v{V_ZERO} offset:{L_SM}', f'ds_read_b128 v[104:107], v{V_ZERO} offset:{L_SM+16}', f'v_lshlrev_b32 v{t}, 2, v0')
    for w in range(4): a(f'ds_read_b32 v{96+w}, v{t} offset:{L_A+768*w}')
    a(f's_lshl_b32 s{S_T0}, s{S_ROW}, 10', f's_add_u32 s{S_T0}, s{S_T0}, {OP}', 's_waitcnt lgkmcnt(4)')
    a('v_max_f32 v108, v100, v102', 'v_max3_f32 v108, v108, v104, v106')
    for w in range(4): a(f'v_sub_f32 v{110+w}, v{100+2*w}, v108', f'v_mul_f32 v{110+w}, s{S_LOG2E}, v{110+w}')
    for w in range(4): a(f'v_exp_f32 v{110+w}, v{110+w}')
    a('s_waitcnt lgkmcnt(0)', 'v_mul_f32 v96, v96, v110', 'v_mul_f32 v109, v101, v110')
    for w in range(1, 4): a(f'v_fmac_f32 v96, v{96+w}, v{110+w}', f'v_fmac_f32 v109, v{101+2*w}, v{110+w}')
    a('v_cmp_eq_u32 vcc, 192, v0', 's_nop 1', 'v_cndmask_b32 v96, v96, v108, vcc', 'v_cmp_eq_u32 vcc, 193, v0', 's_nop 1', 'v_cndmask_b32 v96, v96, v109, vcc')
    a('v_cmp_lt_u32 vcc, 193, v0', 's_nop 1', f'v_cndmask_b32 v96, v96, v{V_ZERO}, vcc')
    a('v_cmp_gt_u32 vcc, 196, v0', 's_and_saveexec_b64 s[34:35], vcc')
    sk = a.label('t1s')
    a(f's_cbranch_execz {sk}', f'buffer_store_dword v96, v{t}, {WS}, s{S_T0} offen sc1', f'{sk}:', 's_mov_b64 exec, s[34:35]')

def dbg_check(a):
    ok = a.label('dok'); lp = a.label('dlp')
    a(f'v_readfirstlane_b32 s{S_T0}, v{V_DBG}', 's_nop 0', f's_cmp_ge_u32 s{S_T0}, 256', f's_cbranch_scc1 {ok}')
    srd(a, SRD_A, P_DBG, 256)
    a(f's_mov_b32 s{S_SPIN}, 0', f'{lp}:', f'buffer_load_dword v{V_DBG}, v{V_ZERO}, {R(SRD_A)}, 0 offen sc1', 's_waitcnt vmcnt(0)')
    a(f'v_readfirstlane_b32 s{S_T0}, v{V_DBG}', 's_nop 0', f's_cmp_ge_u32 s{S_T0}, 256', f's_cbranch_scc1 {ok}')
    a(f's_add_u32 s{S_SPIN}, s{S_SPIN}, 1', f's_cmp_lt_u32 s{S_SPIN}, 200000', f's_cbranch_scc1 {lp}', f'{ok}:')
    sk = a.label('ep')
    a(f's_or_b32 s{S_T0}, s2, s{S_WAVE}', f's_cmp_lg_u32 s{S_T0}, 0', f's_cbranch_scc1 {sk}')
    a(f'v_mov_b32 v{V_T}, s{S_TAG}', f's_mov_b32 s{S_T0}, {EPOCH}', 's_mov_b64 exec, 1', f'buffer_store_dword v{V_T}, v{V_ZERO}, {WS}, s{S_T0} offen sc1', 's_mov_b64 exec, -1', f'{sk}:')

def phase_w(a):
    a(f's_and_b32 s{S_T0}, s2, 7', f's_lshl_b32 s{S_T0}, s{S_T0}, 2', f's_add_u32 s{S_T0}, s{S_T0}, s{S_WAVE}',
      f's_lshl_b32 s{S_T0}, s{S_T0}, 13', f's_add_u32 s{S_T0}, s{S_T0}, {OP}', f's_add_u32 s{S_T1}, s{S_T0}, 4096', f'v_lshlrev_b32 v{V_T}, 4, v{V_LANE}')
    a(f's_mul_i32 s{S_T2}, s{S_WAVE}, 768', f'v_add_u32 v{V_T+2}, s{S_T2}, v{V_T}')
    a('s_bfm_b64 exec, 49, 0')
    O = 108
    def w_issue(Pr):
        for s in range(8): a(f'buffer_load_dwordx4 v[{Pr+4*s}:{Pr+4*s+3}], v{V_T}, {WS}, s{S_T0 if s < 4 else S_T1} offen offset:{1024*(s&3)} sc1')
    def w_post(Pr):
        Mx, Ls, Fs = 96, 97, 98
        a(f'v_max3_f32 v{Mx}, v{Pr}, v{Pr+4}, v{Pr+8}', f'v_max3_f32 v{Mx}, v{Mx}, v{Pr+12}, v{Pr+16}', f'v_max3_f32 v{Mx}, v{Mx}, v{Pr+20}, v{Pr+24}', f'v_max_f32 v{Mx}, v{Mx}, v{Pr+28}')
        for s in range(8): a(f'v_sub_f32 v{Fs+s}, v{Pr+4*s}, v{Mx}', f'v_mul_f32 v{Fs+s}, s{S_LOG2E}, v{Fs+s}')
        for s in range(8): a(f'v_exp_f32 v{Fs+s}, v{Fs+s}')
        a(f'v_mul_f32 v{Ls}, v{Pr+1}, v{Fs}')
        for s in range(1, 8): a(f'v_fmac_f32 v{Ls}, v{Pr+4*s+1}, v{Fs+s}')
        a(f'v_rcp_f32 v{Ls}, v{Ls}', 's_nop 0')
        for s in range(8): a(f'v_mul_f32 v{Fs+s}, v{Fs+s}, v{Ls}')
        for s in range(8): a(f'v_readlane_b32 s{S_G+s}, v{Fs+s}, 48')
        a('s_nop 1')
        for e in range(4): a(f'v_mul_f32 v{O+e}, s{S_G}, v{Pr+e}')
        for s in range(1, 8):
            for e in range(4): a(f'v_fmac_f32 v{O+e}, s{S_G+s}, v{Pr+4*s+e}')
    if OPT['ov']:
        poll2(a, w_issue, 32, 64, 128, 8, w_post, V_T+1)
    else:
        lbl = a.label('wspin'); spin_begin(a, lbl); w_issue(64); a('s_waitcnt vmcnt(0)'); spin_end(a, lbl, list(range(64, 96)), V_T+1); w_post(64)
    stamp(a, 5)
    for e in range(4): bf16r(a, O+e, O+e)
    a('s_bfm_b64 exec, 48, 0', f'ds_write_b128 v{V_T+2}, v[{O}:{O+3}] offset:{L_OV}', 's_mov_b64 exec, -1')
    a(f'v_lshrrev_b32 v{V_T}, 5, v{V_LANE}', f'v_mul_u32_u24 v{V_T}, 24, v{V_T}', f'v_bfe_u32 v{V_T+1}, v{V_LANE}, 2, 3', f'v_add_lshl_u32 v{V_T}, v{V_T}, v{V_T+1}, 2',
      f'v_add_u32 v{V_T}, s{S_T2}, v{V_T}', 's_waitcnt lgkmcnt(0)')
    U = 112
    for p in range(12): a(f'ds_read_b32 v{U+p}, v{V_T} offset:{L_OV+4*(48*(p&3)+8*(p>>2))}')
    A = 160
    if OPT['pp']:
        a(f's_mov_b32 s{S_T3}, 0x07060302')
        for q in range(6):
            a(f's_waitcnt lgkmcnt({10-2*q})', f'v_perm_b32 v{U+12+(q&1)}, v{U+2*q+1}, v{U+2*q}, s{S_T3}')
            for i in range(4):
                c0 = '0' if q == 0 else f'v{A+2*i}'; c1 = '0' if q == 0 else f'v{A+2*i+1}'
                a(f'v_dot2_f32_bf16 v{A+2*i}, v{WGT+8*q+i}, v{U+12+(q&1)}, {c0}', f'v_dot2_f32_bf16 v{A+2*i+1}, v{WGT+8*q+4+i}, v{U+12+(q&1)}, {c1}')
    else:
      for p in range(12):
        a(f's_waitcnt lgkmcnt({11-p})', f'v_lshrrev_b32 v{U+12+(p&1)}, 16, v{U+p}')
        for i in range(4):
            c0 = '0' if p == 0 else f'v{A+2*i}'; c1 = '0' if p == 0 else f'v{A+2*i+1}'
            a(f'v_dot2_f32_bf16 v{A+2*i}, v{WGT+4*p+i}, v{U+12+(p&1)}, {c0}', f'v_dot2_f32_bf16 v{A+2*i+1}, v{WGT+4*p+i}, v{U+p}, {c1}')
    a('s_nop 2')
    for d in ('row_ror:4', 'row_ror:8'):
        for i in range(8): dpp(a, 'v_add_f32', A+i, d)
    swap_reduce(a, A, 4, 'v_permlane16_swap_b32')
    a(f'v_and_b32 v{V_T}, 3, v{V_LANE}', f'v_lshlrev_b32 v{V_T}, 5, v{V_T}', f'v_bfe_u32 v{V_T+1}, v{V_LANE}, 4, 1', f'v_lshl_add_u32 v{V_T}, v{V_T+1}, 4, v{V_T}',
      f'v_lshrrev_b32 v{V_T+1}, 5, v{V_LANE}', f'v_lshl_add_u32 v{V_T}, v{V_T+1}, 3, v{V_T}', f's_lshl_b32 s{S_T0}, s{S_WAVE}, 7', f'v_add_u32 v{V_T}, s{S_T0}, v{V_T}')
    swap_reduce(a, A, 2, 'v_permlane32_swap_b32')
    a(f'ds_write_b64 v{V_T}, v[{A}:{A+1}] offset:{L_B}', 's_waitcnt lgkmcnt(0)', 's_barrier')
    done = a.label('wd')
    a(f's_cmp_ge_u32 s{S_WAVE}, 1', f's_cbranch_scc1 {done}')
    a(f'v_and_b32 v{V_T}, 31, v0', f'v_lshlrev_b32 v{V_T}, 2, v{V_T}')
    for w in range(4): a(f'ds_read_b32 v{U+w}, v{V_T} offset:{L_B+128*w}')
    a(f's_and_b32 s{S_T0}, s2, 7', f's_mul_i32 s{S_T0}, s{S_T0}, 2560', f's_lshr_b32 s{S_T1}, s2, 3', f's_lshl_b32 s{S_T1}, s{S_T1}, 7',
      f's_add_u32 s{S_T0}, s{S_T0}, s{S_T1}', f's_add_u32 s{S_T0}, s{S_T0}, {HP}', 's_bfm_b64 exec, 32, 0', 's_waitcnt lgkmcnt(0)')
    a(f'v_add_f32 v{U}, v{U}, v{U+1}', f'v_add_f32 v{U+2}, v{U+2}, v{U+3}', f'v_add_f32 v{U}, v{U}, v{U+2}')
    for r in range(OPT['hr']):
        a(f'buffer_store_dword v{U}, v{V_T}, {WS}, s{S_T0} offen sc1')
        if r < OPT['hr']-1: a(f's_add_u32 s{S_T0}, s{S_T0}, {HPS}')
    a('s_mov_b64 exec, -1', f'{done}:')

H_HN, H_X = 70, 64
def phase_h(a):
    a(f's_mul_i32 s{S_T0}, s{S_WAVE}, 5120', f's_add_u32 s{S_T0}, s{S_T0}, {HP}', f"s_and_b32 s{S_T1}, s2, {OPT['hr']-1}", f's_mul_i32 s{S_T1}, s{S_T1}, {HPS}',
      f's_add_u32 s{S_T0}, s{S_T0}, s{S_T1}', f's_add_u32 s{S_T1}, s{S_T0}, 2560', f'v_lshlrev_b32 v{V_T}, 3, v{V_LANE}')
    a(f's_mul_i32 s{S_T2}, s{S_WAVE}, 2560', f'v_add_u32 v{V_T+2}, s{S_T2}, v{V_T}')
    unpack5(a, V_XW, H_HN)
    Q = 160
    def h_issue(P):
        for b in range(2):
            for j in range(5): a(f'buffer_load_dwordx2 v[{P+10*b+2*j}:{P+10*b+2*j+1}], v{V_T}, {WS}, s{S_T0+b} offen offset:{512*j} sc1')
    def h_post(P):
        for i in range(10): a(f'v_add_f32 v{Q+i}, v{P+i}, v{P+10+i}')
    if OPT['ov']:
        poll2(a, h_issue, 20, 80, 140, 10, h_post, V_T+1)
    else:
        lbl = a.label('hspin'); spin_begin(a, lbl); h_issue(80); a('s_waitcnt vmcnt(0)'); spin_end(a, lbl, list(range(80, 100)), V_T+1); h_post(80)
    stamp(a, 7)
    for j in range(5): a(f'ds_write_b64 v{V_T+2}, v[{Q+2*j}:{Q+2*j+1}] offset:{L_C+512*j}')
    a('s_waitcnt lgkmcnt(0)', 's_barrier')
    Rr = 100
    for w in range(4):
        for j in range(5): a(f'ds_read_b64 v[{Rr+10*w+2*j}:{Rr+10*w+2*j+1}], v{V_T} offset:{L_C+2560*w+512*j}')
    a(f's_mul_i32 s{S_T0}, s{S_WAVE}, 1280', f'v_lshlrev_b32 v{V_T}, 2, v{V_LANE}', f'v_add_u32 v{V_T}, s{S_T0}, v{V_T}', 's_waitcnt lgkmcnt(0)')
    for i in range(10): a(f'v_add_f32 v{Rr+i}, v{Rr+i}, v{Rr+10+i}', f'v_add_f32 v{Rr+20+i}, v{Rr+20+i}, v{Rr+30+i}')
    for i in range(10): a(f'v_add_f32 v{Rr+i}, v{Rr+i}, v{Rr+20+i}')
    for j in range(5):
        i = 2*j
        a(f'v_cvt_pk_bf16_f32 v{V_T+1}, v{Rr+i}, v{Rr+i+1}', f'v_lshlrev_b32 v{Rr+i}, 16, v{V_T+1}', f'v_and_b32 v{Rr+i+1}, 0xffff0000, v{V_T+1}',
          f'v_add_f32 v{H_HN+i}, v{H_HN+i}, v{Rr+i}', f'v_add_f32 v{H_HN+i+1}, v{H_HN+i+1}, v{Rr+i+1}', f'v_cvt_pk_bf16_f32 v{H_X+j}, v{H_HN+i}, v{H_HN+i+1}',
          f'v_lshlrev_b32 v{H_HN+i}, 16, v{H_X+j}', f'v_and_b32 v{H_HN+i+1}, 0xffff0000, v{H_X+j}')
        a(f'ds_write_b32 v{V_T}, v{H_X+j} offset:{L_H+256*j}')
    layernorm(a, H_HN, V_T+4)
    for j in range(5):
        a(f'v_cvt_pk_bf16_f32 v{H_X+j}, v{H_HN+2*j}, v{H_HN+2*j+1}', f'ds_write_b32 v{V_T}, v{H_X+j} offset:{L_XN+256*j}')

def phase_m(a):
    U, A = 80, 96
    a(f'v_and_b32 v{V_T}, 127, v0', f'v_lshrrev_b32 v{V_T}, 1, v{V_T}', f'v_lshlrev_b32 v{V_T}, 1, v{V_T}', f's_mul_i32 s{S_T0}, s{S_WAVE}, 1280', f'v_add_u32 v{V_T}, s{S_T0}, v{V_T}', 's_waitcnt vmcnt(0) lgkmcnt(0)')
    for p in range(10): a(f'ds_read_u16 v{U+p}, v{V_T} offset:{L_XN+128*p}')
    if OPT['pp']:
        for q in range(5):
            a(f's_waitcnt lgkmcnt({8-2*q})', f'v_lshl_or_b32 v{U+10+(q&1)}, v{U+2*q+1}, 16, v{U+2*q}')
            for i in range(4):
                c0 = '0' if q == 0 else f'v{A+2*i}'; c1 = '0' if q == 0 else f'v{A+2*i+1}'
                a(f'v_dot2_f32_bf16 v{A+2*i}, v{WGT+8*q+i}, v{U+10+(q&1)}, {c0}', f'v_dot2_f32_bf16 v{A+2*i+1}, v{WGT+8*q+4+i}, v{U+10+(q&1)}, {c1}')
    else:
      for p in range(10):
        a(f's_waitcnt lgkmcnt({9-p})', f'v_lshlrev_b32 v{U+10+(p&1)}, 16, v{U+p}')
        for i in range(4):
            c0 = '0' if p == 0 else f'v{A+2*i}'; c1 = '0' if p == 0 else f'v{A+2*i+1}'
            a(f'v_dot2_f32_bf16 v{A+2*i}, v{WGT+4*p+i}, v{U+p}, {c0}', f'v_dot2_f32_bf16 v{A+2*i+1}, v{WGT+4*p+i}, v{U+10+(p&1)}, {c1}')
    a('s_nop 2')
    for d in ('quad_perm:[2,3,0,1]', 'row_ror:4', 'row_ror:8'):
        for i in range(8): dpp(a, 'v_add_f32', A+i, d)
    swap_reduce(a, A, 4, 'v_permlane16_swap_b32')
    a(f'v_and_b32 v{V_T}, 1, v{V_LANE}', f'v_lshlrev_b32 v{V_T}, 5, v{V_T}', f'v_bfe_u32 v{V_T+1}, v{V_LANE}, 4, 1', f'v_lshl_add_u32 v{V_T}, v{V_T+1}, 4, v{V_T}',
      f'v_lshrrev_b32 v{V_T+1}, 5, v{V_LANE}', f'v_lshl_add_u32 v{V_T}, v{V_T+1}, 3, v{V_T}', f's_lshl_b32 s{S_T0}, s{S_WAVE}, 6', f'v_add_u32 v{V_T}, s{S_T0}, v{V_T}')
    swap_reduce(a, A, 2, 'v_permlane32_swap_b32')
    a(f'ds_write_b64 v{V_T}, v[{A}:{A+1}] offset:{L_D}', 's_waitcnt lgkmcnt(0)', 's_barrier')
    a(f'v_and_b32 v{V_T}, 15, v{V_LANE}', f'v_lshlrev_b32 v{V_T}, 2, v{V_T}')
    for k in range(4): a(f'ds_read_b32 v{U+k}, v{V_T} offset:{L_D+64*k}')
    a(f's_lshl_b32 s{S_T0}, s{S_WAVE}, 7', f'v_lshlrev_b32 v{V_T+1}, 2, v{V_LANE}', f'v_add_u32 v{V_T+1}, s{S_T0}, v{V_T+1}', 's_waitcnt lgkmcnt(0)')
    a(f'v_add_f32 v{U}, v{U}, v{U+1}', f'v_add_f32 v{U+2}, v{U+2}, v{U+3}')
    bf16r(a, U, U); bf16r(a, U+2, U+2)
    a(f'v_mul_f32 v{U+1}, s{S_LOG2E}, v{U}', f'v_sub_f32 v{U+1}, 0, v{U+1}', f'v_exp_f32 v{U+1}, v{U+1}', 's_nop 0', f'v_add_f32 v{U+1}, 1.0, v{U+1}', f'v_rcp_f32 v{U+1}, v{U+1}', 's_nop 0', f'v_mul_f32 v{U}, v{U}, v{U+1}')
    bf16r(a, U, U)
    a(f'v_mul_f32 v{U}, v{U}, v{U+2}')
    bf16r(a, U, U)
    a(f'v_cmp_gt_u32 vcc, 16, v{V_LANE}', 's_nop 1', f'v_cndmask_b32 v{U}, v{V_ZERO}, v{U}, vcc')
    a('s_bfm_b64 exec, 18, 0', f'ds_write_b32 v{V_T+1}, v{U} offset:{L_E}', 's_mov_b64 exec, -1')
    a(f'v_mul_u32_u24 v{V_T}, 205, v0', f'v_lshrrev_b32 v{V_T}, 14, v{V_T}', f'v_lshl_add_u32 v{V_T+1}, v{V_T}, 2, s{S_T0}', 's_waitcnt lgkmcnt(0)')
    for i in range(6): a(f'ds_read_b32 v{U+i}, v{V_T+1} offset:{L_E+12*i}')
    a(f'v_mul_u32_u24 v{V_T+2}, 80, v{V_T}', f'v_sub_u32 v{V_T+2}, v0, v{V_T+2}', f'v_lshlrev_b32 v{V_T+2}, 5, v{V_T+2}', f'v_mul_u32_u24 v{V_T}, 2560, v{V_T}', f'v_add_u32 v{V_T+2}, v{V_T+2}, v{V_T}')
    if OPT['pp']:
        a(f's_mov_b32 s{S_T3}, 0x07060302')
        for q in range(3):
            a(f's_waitcnt lgkmcnt({4-2*q})', f'v_perm_b32 v{U+6+(q&1)}, v{U+2*q+1}, v{U+2*q}, s{S_T3}')
            for e in range(4):
                c0 = '0' if q == 0 else f'v{A+2*e}'; c1 = '0' if q == 0 else f'v{A+2*e+1}'
                a(f'v_dot2_f32_bf16 v{A+2*e}, v{WGT+40+8*q+e}, v{U+6+(q&1)}, {c0}', f'v_dot2_f32_bf16 v{A+2*e+1}, v{WGT+40+8*q+4+e}, v{U+6+(q&1)}, {c1}')
    else:
      for i in range(6):
        a(f's_waitcnt lgkmcnt({5-i})', f'v_lshrrev_b32 v{U+6+(i&1)}, 16, v{U+i}')
        for e in range(4):
            c0 = '0' if i == 0 else f'v{A+2*e}'; c1 = '0' if i == 0 else f'v{A+2*e+1}'
            a(f'v_dot2_f32_bf16 v{A+2*e}, v{WGT+40+4*i+e}, v{U+6+(i&1)}, {c0}', f'v_dot2_f32_bf16 v{A+2*e+1}, v{WGT+40+4*i+e}, v{U+i}, {c1}')
    a('v_cmp_gt_u32 vcc, 240, v0', 's_and_saveexec_b64 s[34:35], vcc', 's_nop 1')
    a(f'ds_write_b128 v{V_T+2}, v[{A}:{A+3}] offset:{L_F}', f'ds_write_b128 v{V_T+2}, v[{A+4}:{A+7}] offset:{L_F+16}')
    a('s_mov_b64 exec, s[34:35]', 's_waitcnt lgkmcnt(0)', 's_barrier')
    done = a.label('md')
    a('v_cmp_gt_u32 vcc, 160, v0', 's_and_saveexec_b64 s[34:35], vcc', f's_cbranch_execz {done}', f'v_lshlrev_b32 v{V_T}, 4, v0')
    for g in range(3): a(f'ds_read_b128 v[{U+4*g}:{U+4*g+3}], v{V_T} offset:{L_F+2560*g}')
    a(f'v_lshrrev_b32 v{V_T}, 2, v0', f'v_mul_u32_u24 v{V_T}, 6144, v{V_T}', f'v_and_b32 v{V_T+1}, 3, v0', f'v_lshl_add_u32 v{V_T}, v{V_T+1}, 4, v{V_T}',
      f's_lshl_b32 s{S_T0}, s{S_M}, 6', f's_add_u32 s{S_T0}, s{S_T0}, {YP}', 's_waitcnt lgkmcnt(0)')
    for e in range(4): a(f'v_add_f32 v{U+e}, v{U+e}, v{U+4+e}')
    for e in range(4): a(f'v_add_f32 v{U+e}, v{U+e}, v{U+8+e}')
    a(f'buffer_store_dwordx4 v[{U}:{U+3}], v{V_T}, {WS}, s{S_T0} offen sc1')
    a(f'{done}:', 's_mov_b64 exec, s[34:35]')

def phase_f(a):
    U = 80
    a(f'v_dot2_f32_bf16 v{V_SIG}, v{H_X}, v{V_XW+5}, 0')
    for j in range(1, 5): a(f'v_dot2_f32_bf16 v{V_SIG}, v{H_X+j}, v{V_XW+5+j}, v{V_SIG}')
    a(f's_mul_i32 s{S_T0}, s{S_M}, 6144', f's_add_u32 s{S_T0}, s{S_T0}, {YP}', f's_add_u32 s{S_T1}, s{S_T0}, 4096', f'v_lshlrev_b32 v{V_T}, 3, v0')
    wave_red(a, [V_SIG], [V_T+1])
    bf16r(a, V_SIG, V_SIG)
    a(f'v_mul_f32 v{V_SIG}, s{S_LOG2E}, v{V_SIG}', f'v_sub_f32 v{V_SIG}, 0, v{V_SIG}', f'v_exp_f32 v{V_SIG}, v{V_SIG}', 's_nop 0',
      f'v_add_f32 v{V_SIG}, 1.0, v{V_SIG}', f'v_rcp_f32 v{V_SIG}, v{V_SIG}', 's_nop 0')
    bf16r(a, V_SIG, V_SIG)
    a(f'v_and_b32 v{V_T+2}, 15, v0', f's_lshl_b32 s{S_T2}, s{S_M}, 4', f'v_add_u32 v{V_T+2}, s{S_T2}, v{V_T+2}', f'v_lshlrev_b32 v{V_T+2}, 1, v{V_T+2}')
    HH = 126
    a(f'ds_read_u16 v{HH}, v{V_T+2} offset:{L_H}', f'ds_read_u16 v{HH+1}, v{V_T+2} offset:{L_XN}')
    srd(a, SRD_A, P_OUT, 1280)
    Y = 100
    def f_issue(P):
        a(f'buffer_load_dwordx2 v[{P}:{P+1}], v{V_T}, {WS}, s{S_T0} offen sc1', f'buffer_load_dwordx2 v[{P+2}:{P+3}], v{V_T}, {WS}, s{S_T0} offen offset:2048 sc1',
          f'buffer_load_dwordx2 v[{P+4}:{P+5}], v{V_T}, {WS}, s{S_T1} offen sc1')
    def f_post(P):
        a(f'v_add_f32 v{Y}, v{P}, v{P+2}', f'v_add_f32 v{Y+1}, v{P+1}, v{P+3}', f'v_add_f32 v{Y}, v{Y}, v{P+4}', f'v_add_f32 v{Y+1}, v{Y+1}, v{P+5}')
    if OPT['ov']:
        poll2(a, f_issue, 6, 80, 88, 3, f_post, V_T+1)
    else:
        lbl = a.label('fspin'); spin_begin(a, lbl); f_issue(80); a('s_waitcnt vmcnt(0)'); spin_end(a, lbl, list(range(80, 86)), V_T+1); f_post(80)
    stamp(a, 10)
    a('s_nop 1'); dpp(a, 'v_add_f32', Y, 'row_ror:8'); dpp(a, 'v_add_f32', Y+1, 'row_ror:8')
    swap_reduce(a, Y, 1, 'v_permlane16_swap_b32')
    a(f'v_mov_b32 v{Y+1}, v{Y}', f'v_and_b32 v{V_T}, 7, v{V_LANE}', f'v_lshlrev_b32 v{V_T}, 3, v{V_T}', f'v_bfe_u32 v{V_T+1}, v{V_LANE}, 4, 1', f'v_lshl_add_u32 v{V_T}, v{V_T+1}, 2, v{V_T}',
      f's_lshl_b32 s{S_T0}, s{S_WAVE}, 6', f'v_add_u32 v{V_T}, s{S_T0}, v{V_T}')
    a(f'v_permlane32_swap_b32 v{Y}, v{Y+1}', 's_nop 0', f'v_add_f32 v{Y}, v{Y}, v{Y+1}')
    a(f'ds_write_b32 v{V_T}, v{Y} offset:{L_G}', 's_waitcnt lgkmcnt(0)', 's_barrier')
    done = a.label('fd')
    a(f's_cmp_ge_u32 s{S_WAVE}, 1', f's_cbranch_scc1 {done}')
    a(f'v_and_b32 v{V_T}, 15, v0', f'v_lshlrev_b32 v{V_T}, 2, v{V_T}')
    U = 104
    for w in range(4): a(f'ds_read_b32 v{U+w}, v{V_T} offset:{L_G+64*w}')
    a(f'v_lshlrev_b32 v{U+16}, 16, v{HH}', f'v_lshlrev_b32 v{U+17}, 16, v{HH+1}', 's_bfm_b64 exec, 16, 0', 's_waitcnt lgkmcnt(0)')
    a(f'v_add_f32 v{U}, v{U}, v{U+1}', f'v_add_f32 v{U+2}, v{U+2}, v{U+3}', f'v_add_f32 v{U}, v{U}, v{U+2}')
    bf16r(a, U, U)
    a(f'v_mul_f32 v{U}, v{U}, v{V_SIG}')
    bf16r(a, U, U)
    a(f'v_add_f32 v{U}, v{U+17}, v{U}')
    bf16r(a, U, U)
    a(f'v_add_f32 v{U}, v{U+16}, v{U}', f'v_cvt_pk_bf16_f32 v{U}, v{U}, v{U}')
    a(f'buffer_store_short v{U}, v{V_T+2}, {R(SRD_A)}, 0 offen', 's_mov_b64 exec, -1', f'{done}:')

def build():
    a = Asm()
    name = NAME_BASE + '_kernel'
    hdr = header([f'; @launch grid=(256,1,1) block=(256,1,1) lds={LDS_BYTES}'])
    a('.amdgcn_target "amdgcn-amd-amdhsa--gfx950"', '.text')
    end = a.label('end')
    a(f'.globl {name}', '.p2align 8', f'.type {name},@function', f'{name}:', 'L_code_start:')
    prologue(a, end)
    stamp(a, 0); dstamp(a, 4, True)
    startup(a)
    stream(a)
    stamp(a, 3); dstamp(a, 7)
    a('L_tail_start:')
    phase_t1(a)
    stamp(a, 4)
    dbg_check(a)
    rm = a.label('rolem'); fin = a.label('fin')
    a('s_cmp_ge_u32 s2, 160', f's_cbranch_scc1 {rm}')
    phase_w(a); stamp(a, 6)
    a(f's_branch {fin}', f'{rm}:')
    phase_h(a); stamp(a, 8)
    phase_m(a); stamp(a, 9)
    a(f's_cmp_ge_u32 s{S_M}, 40', f's_cbranch_scc1 {fin}')
    phase_f(a); stamp(a, 11)
    a(f'{fin}:', 's_waitcnt vmcnt(0) lgkmcnt(0)')
    stamp(a, 15); dstamp(a, 5)
    a('s_waitcnt vmcnt(0)')
    a(f'{end}:', 's_endpgm', 'L_code_end:')
    a('.section .rodata,"a"', '.p2align 6')
    a.lines.append(kernel_desc(name, 256, 102))
    return '\n'.join(hdr) + '\n' + a.text()

if __name__ == '__main__':
    for x in sys.argv[1:]:
        if x == 'stamp': OPT['stamp'] = 1
        elif '=' in x:
            k, v = x.split('='); assert k in OPT, k; OPT[k] = int(v)
    sys.stdout.write(build())
```

```python
import sys, struct
from asmlib import *

def f2u(x): return struct.unpack('<I', struct.pack('<f', x))[0]
SCALE = f2u(192 ** -0.5); LOG2E = f2u(1.4426950408889634); INV640 = f2u(1.0/640); EPS = f2u(1e-5); NEGBIG = f2u(-3.0e38)
KV_BYTES = 402653184; HEAD_BYTES = 12582912
CNT, OP, HP, YP, EPOCH, TS, QP2, WS_USED = 0x40000, 0x50000, 0x180000, 0xA0000, 0xE8000, 0xF0000, 0x100000, 0x240000
HPS = 20480 + 256
SC = 0x1B0000
L_RED = 0
L_A, L_B, L_C, L_D, L_E, L_F, L_G = 0, 3072, 4096, 14336, 14592, 15104, 3072
L_XN = 24576
L_H = 29696
L_SM = 34816
L_OV = 35840
L_SC = 38912
LDS_BYTES = 38912 + 16384
S_WAVE = 3
SRD_K, SRD_V, SRD_WS, SRD_A, SRD_B = 8, 12, 16, 20, 24
S_HEAD, S_MEM, S_SCALE, S_LOG2E = 28, 29, 30, 31
S_T0, S_T1, S_T2, S_T3 = 32, 33, 34, 35
P_X, P_K, P_V, P_WQ, P_WO, P_BX, P_WR, P_WG = 36, 38, 40, 42, 44, 46, 48, 50
P_WU, P_WD, P_OUT, P_DBG, P_WS = 52, 54, 56, 58, 60
S_OFF, S_HB, S_CNT, S_NX, S_SPIN, S_M = 62, 63, 64, 65, 66, 67
S_G = 68
S_ROT, S_TAG, S_K, S_SU = 76, 77, 78, 79
S_ROW = 86
S_SCB, S_SCB0 = 71, 69
S_DST = 72
S_MASK = 74
V_SC = 112
V_G8 = 164
V_SCA = 165
SRD_C, SRD_D, SRD_E = 88, 92, 96
V_LANE, V_OFFB, V_ZERO = 1, 2, 3
V_Q, V_ACC, V_M, V_L, V_T = 4, 16, 40, 41, 42
V_ATOM, V_SIG, V_E, V_DBG = 56, 57, 58, 59
V_CPF = 116
V_RING = 64
PF = 116
WGT = 192
V_XW = 176
WS = f's[{SRD_WS}:{SRD_WS+3}]'
OPT = dict(P=0, NS=60, hrot=19, cpf=1, cpf2=1, stamp=0, stampw=0, wmode=1, qov=1, npre=4, ov=0, fast=1, wsplit=6, dstamp=0, hr=1, pp=1)

def srd(a, reg, ptr, size):
    a(f's_mov_b32 s{reg}, s{ptr}', f's_and_b32 s{reg+1}, s{ptr+1}, 0xffff', f's_mov_b32 s{reg+2}, {size}', f's_mov_b32 s{reg+3}, 0x20000')
def R(a_): return f's[{a_}:{a_+3}]'
def stamp(a, slot):
    if not OPT['stamp']: return
    sk = a.label('ts')
    a(f"s_cmp_lg_u32 s{S_WAVE}, {OPT['stampw']}", f's_cbranch_scc1 {sk}')
    a('s_memrealtime s[80:81]', 's_waitcnt lgkmcnt(0)')
    a(f's_lshl_b32 s82, s2, 7', f's_add_u32 s82, s82, {TS + slot*8}')
    a('v_mov_b32 v62, s80', 'v_mov_b32 v63, s81', 's_mov_b64 s[84:85], exec', 's_mov_b64 exec, 1')
    a(f'buffer_store_dwordx2 v[62:63], v{V_ZERO}, {WS}, s82 offen')
    a('s_mov_b64 exec, s[84:85]', 's_nop 1')
    a(f'{sk}:')
def dstamp(a, word, neg=False):
    if not OPT['dstamp']: return
    sk = a.label('ds')
    a(f's_cmp_lg_u32 s{S_WAVE}, 0', f's_cbranch_scc1 {sk}')
    a('s_memrealtime s[80:81]', 's_waitcnt lgkmcnt(0)')
    if neg: a('s_not_b32 s80, s80')
    a(f's_mov_b32 s84, s{P_DBG}', f's_and_b32 s85, s{P_DBG+1}, 0xffff')
    a('v_mov_b32 v62, s80', f'v_mov_b32 v63, {4*word}', 's_mov_b64 s[82:83], exec', 's_mov_b64 exec, 1')
    a(f'global_atomic_umax v63, v62, s[84:85]')
    a('s_mov_b64 exec, s[82:83]', 's_nop 1')
    a(f'{sk}:')
def bf16r(a, dst, src):
    a(f'v_cvt_pk_bf16_f32 v{dst}, v{src}, v{src}', f'v_and_b32 v{dst}, 0xffff0000, v{dst}')
def dpp(a, ins, v, d): a(f'{ins}_dpp v{v}, v{v}, v{v} {d} row_mask:0xf bank_mask:0xf')
def wave_red(a, vs, ts, op='v_add_f32'):
    pad = max(0, 2 - (len(vs) - 1))
    for d in ('quad_perm:[1,0,3,2]', 'quad_perm:[2,3,0,1]', 'row_half_mirror', 'row_mirror'):
        a('s_nop 1')
        for v in vs: dpp(a, op, v, d)
    for p in ('v_permlane16_swap_b32', 'v_permlane32_swap_b32'):
        for v, t in zip(vs, ts): a(f'v_mov_b32 v{t}, v{v}')
        a('s_nop 1')
        for v, t in zip(vs, ts): a(f'{p} v{t}, v{v}')
        a('s_nop 0')
        for v, t in zip(vs, ts): a(f'{op} v{v}, v{v}, v{t}')
def groups_red(a, v, t, op):
    a('s_nop 1'); dpp(a, op, v, 'row_ror:8')
    for p in ('v_permlane16_swap_b32', 'v_permlane32_swap_b32'):
        a(f'v_mov_b32 v{t}, v{v}', 's_nop 1', f'{p} v{t}, v{v}', 's_nop 0', f'{op} v{v}, v{v}, v{t}')
def swap_reduce(a, base, n, p):
    a('s_nop 1')
    for i in range(n): a(f'{p} v{base+i}, v{base+n+i}')
    a('s_nop 0')
    for i in range(n): a(f'v_add_f32 v{base+i}, v{base+i}, v{base+n+i}')
def unpack5(a, src, dst):
    for j in range(5): a(f'v_lshlrev_b32 v{dst+2*j}, 16, v{src+j}', f'v_and_b32 v{dst+2*j+1}, 0xffff0000, v{src+j}')
def layernorm(a, x, t):
    s1, s2, u, w2, sd, mean = t, t+1, t+2, t+3, t+4, t+5
    a('s_nop 0', f'v_readfirstlane_b32 s{S_T0}, v{x}', 's_nop 1')
    a(f'v_subrev_f32 v{s1}, s{S_T0}, v{x}', f'v_mul_f32 v{s2}, v{s1}, v{s1}')
    for i in range(1, 10):
        a(f'v_subrev_f32 v{u}, s{S_T0}, v{x+i}', f'v_add_f32 v{s1}, v{s1}, v{u}', f'v_fmac_f32 v{s2}, v{u}, v{u}')
    wave_red(a, [s1, s2], [u, w2])
    a(f'v_mul_f32 v{s1}, 0x{INV640:08x}, v{s1}', f'v_mul_f32 v{s2}, 0x{INV640:08x}, v{s2}')
    a(f'v_fma_f32 v{s2}, -v{s1}, v{s1}, v{s2}', f'v_max_f32 v{s2}, 0, v{s2}')
    a(f'v_add_f32 v{mean}, s{S_T0}, v{s1}')
    bf16r(a, s2, s2)
    a(f'v_add_f32 v{s2}, 0x{EPS:08x}, v{s2}')
    bf16r(a, s2, s2)
    a(f'v_sqrt_f32 v{sd}, v{s2}')
    bf16r(a, mean, mean)
    bf16r(a, sd, sd)
    a(f'v_rcp_f32 v{sd}, v{sd}')
    for i in range(0, 10, 2):
        a(f'v_sub_f32 v{x+i}, v{x+i}, v{mean}', f'v_sub_f32 v{x+i+1}, v{x+i+1}, v{mean}', f'v_cvt_pk_bf16_f32 v{u}, v{x+i}, v{x+i+1}',
          f'v_lshlrev_b32 v{x+i}, 16, v{u}', f'v_and_b32 v{x+i+1}, 0xffff0000, v{u}', f'v_mul_f32 v{x+i}, v{x+i}, v{sd}', f'v_mul_f32 v{x+i+1}, v{x+i+1}, v{sd}')
def pv_unit(a, vreg, plo, phi):
    for j in range(3):
        for i in range(4):
            a(f'v_dot2_f32_bf16 v{V_ACC+8*j+2*i}, v{vreg+4*j+i}, v{plo}, v{V_ACC+8*j+2*i}')
            a(f'v_dot2_f32_bf16 v{V_ACC+8*j+2*i+1}, v{vreg+4*j+i}, v{phi}, v{V_ACC+8*j+2*i+1}')
def acc_reduce_write(a, lbase, t):
    a('s_nop 2')
    for i in range(24): dpp(a, 'v_add_f32', V_ACC+i, 'row_ror:8')
    swap_reduce(a, V_ACC, 12, 'v_permlane16_swap_b32')
    a(f'v_and_b32 v{t}, 7, v{V_LANE}', f'v_mul_u32_u24 v{t}, 96, v{t}', f'v_bfe_u32 v{t+1}, v{V_LANE}, 4, 1', f'v_mul_u32_u24 v{t+1}, 48, v{t+1}', f'v_add_u32 v{t}, v{t}, v{t+1}',
      f'v_lshrrev_b32 v{t+1}, 5, v{V_LANE}', f'v_mul_u32_u24 v{t+1}, 24, v{t+1}', f's_mul_i32 s{S_T0}, s{S_WAVE}, 768', f'v_add3_u32 v{t}, v{t}, v{t+1}, s{S_T0}')
    swap_reduce(a, V_ACC, 6, 'v_permlane32_swap_b32')
    for i in range(3): a(f'ds_write_b64 v{t}, v[{V_ACC+2*i}:{V_ACC+2*i+1}] offset:{lbase+8*i}')
def m_index(a):
    a(f's_sub_u32 s{S_T0}, s2, 160', f's_and_b32 s{S_T1}, s{S_T0}, 7', f's_mul_i32 s{S_T1}, s{S_T1}, 12', f's_lshr_b32 s{S_T0}, s{S_T0}, 3', f's_add_u32 s{S_M}, s{S_T0}, s{S_T1}')
def role_branch(a, wbody, mbody):
    lm = a.label('rm'); le = a.label('re')
    a('s_cmp_ge_u32 s2, 160', f's_cbranch_scc1 {lm}'); wbody(); a(f's_branch {le}', f'{lm}:'); mbody(); a(f'{le}:')
def spin_begin(a, lbl): a(f's_mov_b32 s{S_SPIN}, 0', f'{lbl}:')
def spin_end(a, lbl, regs, t):
    ok = a.label('ok')
    a(f'v_max3_u32 v{t}, v{regs[0]}, v{regs[1]}, v{regs[2]}'); rest = regs[3:]
    while len(rest) >= 2:
        a(f'v_max3_u32 v{t}, v{t}, v{rest[0]}, v{rest[1]}'); rest = rest[2:]
    if rest: a(f'v_max_u32 v{t}, v{t}, v{rest[0]}')
    a(f'v_cmp_eq_u32 vcc, -1, v{t}', f's_cbranch_vccz {ok}')
    a(f's_add_u32 s{S_SPIN}, s{S_SPIN}, 1', f's_cmp_lt_u32 s{S_SPIN}, 200000', f's_cbranch_scc1 {lbl}')
    a(f'{ok}:')
def sent_check(a, regs, t):
    a(f'v_max3_u32 v{t}, v{regs[0]}, v{regs[1]}, v{regs[2]}'); rest = regs[3:]
    while len(rest) >= 2:
        a(f'v_max3_u32 v{t}, v{t}, v{rest[0]}, v{rest[1]}'); rest = rest[2:]
    if rest: a(f'v_max_u32 v{t}, v{t}, v{rest[0]}')
    a(f'v_cmp_eq_u32 vcc, -1, v{t}')
def poll2(a, issue_fn, nregs, baseA, baseB, nloads, post, t):
    lbl = a.label('spin'); okA = a.label('okA'); okB = a.label('okB'); join = a.label('join')
    a(f's_mov_b32 s{S_SPIN}, 0')
    issue_fn(baseA)
    a(f'{lbl}:')
    issue_fn(baseB)
    a(f's_waitcnt vmcnt({nloads})'); sent_check(a, list(range(baseA, baseA+nregs)), t); a(f's_cbranch_vccz {okA}')
    issue_fn(baseA)
    a(f's_waitcnt vmcnt({nloads})'); sent_check(a, list(range(baseB, baseB+nregs)), t); a(f's_cbranch_vccz {okB}')
    a(f's_add_u32 s{S_SPIN}, s{S_SPIN}, 1', f's_cmp_lt_u32 s{S_SPIN}, 100000', f's_cbranch_scc1 {lbl}', f's_branch {okA}')
    a(f'{okB}:'); post(baseB); a(f's_branch {join}')
    a(f'{okA}:'); post(baseA)
    a(f'{join}:')
def code_prefetch(a, start, end, n, vtmp):
    pc = a.label('pc')
    a(f's_getpc_b64 s[{SRD_C}:{SRD_C+1}]', f'{pc}:')
    if start == 'L_code_start': a(f's_sub_u32 s{SRD_C}, s{SRD_C}, {pc}-{start}', f's_subb_u32 s{SRD_C+1}, s{SRD_C+1}, 0')
    else: a(f's_add_u32 s{SRD_C}, s{SRD_C}, {start}-{pc}', f's_addc_u32 s{SRD_C+1}, s{SRD_C+1}, 0')
    a(f's_and_b32 s{SRD_C+1}, s{SRD_C+1}, 0xffff', f's_mov_b32 s{SRD_C+2}, {end}-{start}', f's_mov_b32 s{SRD_C+3}, 0x20000')
    a(f's_lshr_b32 s{S_T0}, s2, 3', f's_mul_i32 s{S_T0}, s{S_T0}, ((({end}-{start})+31)/32+15)&0xfffffff0')
    a(f'v_lshlrev_b32 v{vtmp}, 4, v{V_LANE}')
    for i in range(n): a(f'buffer_load_dwordx4 v[{V_CPF}:{V_CPF+3}], v{vtmp}, {R(SRD_C)}, s{S_T0} offen offset:{1024*i}')

def prologue(a, endlabel):
    a('s_cmp_ge_u32 s2, 256', f's_cbranch_scc1 {endlabel}')
    a('s_load_dwordx16 s[36:51], s[0:1], 0', 's_load_dwordx8 s[52:59], s[0:1], 64', 's_load_dwordx2 s[60:61], s[0:1], 96')
    a(f'v_lshrrev_b32 v{V_LANE}, 6, v0', f'v_mov_b32 v{V_ZERO}, 0', f'v_readfirstlane_b32 s{S_WAVE}, v{V_LANE}', f'v_and_b32 v{V_LANE}, 63, v0')
    a(f'v_lshrrev_b32 v{V_T}, 3, v{V_LANE}', f'v_mul_u32_u24 v{V_T}, 384, v{V_T}', f'v_and_b32 v{V_T+1}, 7, v{V_LANE}', f'v_lshl_add_u32 v{V_OFFB}, v{V_T+1}, 4, v{V_T}')
    a(f's_mov_b32 s{S_SCALE}, 0x{SCALE:08x}', f's_mov_b32 s{S_LOG2E}, 0x{LOG2E:08x}')
    a(f's_lshr_b32 s{S_T0}, s2, 3', f's_and_b32 s{S_MEM}, s2, 7', f's_lshl_b32 s{S_T1}, s{S_MEM}, 2', f's_add_u32 s{S_T0}, s{S_T0}, s{S_T1}', f's_and_b32 s{S_HEAD}, s{S_T0}, 31')
    a(f's_lshl_b32 s{S_ROW}, s{S_HEAD}, 3', f's_add_u32 s{S_ROW}, s{S_ROW}, s{S_MEM}')
    a('s_waitcnt lgkmcnt(0)')
    srd(a, SRD_WS, P_WS, WS_USED)
    for r in (SRD_C, SRD_D, SRD_E): srd(a, r, P_WS, WS_USED)

V_PA, V_PB, S_PA, S_PB, S_PRE = 48, 49, 87, 100, 101
def w_setup(a):
    srd(a, SRD_C, P_WO, 7864320)
    a(f's_and_b32 s{S_T0}, s2, 7', f's_mul_i32 s{S_T0}, s{S_T0}, 768', f's_mul_i32 s{S_T1}, s{S_WAVE}, 192', f's_add_u32 s{S_T0}, s{S_T0}, s{S_T1}',
      f's_mul_i32 s{S_T0}, s{S_T0}, 1280', f's_lshr_b32 s{S_T1}, s2, 3', f's_lshl_b32 s{S_T1}, s{S_T1}, 6', f's_add_u32 s{S_PA}, s{S_T0}, s{S_T1}')
    a(f'v_lshrrev_b32 v{V_PA}, 2, v{V_LANE}', f'v_mul_u32_u24 v{V_PA}, 1280, v{V_PA}', f'v_and_b32 v{V_PB}, 3, v{V_LANE}', f'v_lshl_add_u32 v{V_PA}, v{V_PB}, 4, v{V_PA}')
def w_loads():
    return [f'buffer_load_dwordx4 v[{WGT+4*p}:{WGT+4*p+3}], v{V_PA}, {R(SRD_C)}, s{S_PA} offen nt\ns_add_u32 s{S_PA}, s{S_PA}, {16*1280}' for p in range(12)]
def m_setup(a):
    a(f's_cmp_ge_u32 s{S_WAVE}, 2', f's_cselect_b32 s{S_T0}, s{P_WU}, s{P_WG}', f's_cselect_b32 s{S_T1}, s{P_WU+1}, s{P_WG+1}')
    srd(a, SRD_C, S_T0, 1966080); srd(a, SRD_D, P_WD, 1966080)
    a(f'v_and_b32 v{V_PB}, 127, v0', f'v_lshrrev_b32 v{V_PA}, 1, v{V_PB}', f'v_mul_u32_u24 v{V_PA}, 3072, v{V_PA}', f'v_and_b32 v{V_PB}, 1, v{V_PB}', f'v_lshl_add_u32 v{V_PA}, v{V_PB}, 4, v{V_PA}')
    a(f's_lshl_b32 s{S_PA}, s{S_M}, 5')
    a(f'v_mul_u32_u24 v{V_PB}, 205, v0', f'v_lshrrev_b32 v{V_PB}, 14, v{V_PB}', f'v_mul_u32_u24 v50, 80, v{V_PB}', f'v_sub_u32 v50, v0, v50',
      f'v_mul_u32_u24 v{V_PB}, 1280, v{V_PB}', f'v_lshl_add_u32 v{V_PB}, v50, 4, v{V_PB}', f's_mul_i32 s{S_PB}, s{S_M}, {16*1280}')
def m_loads():
    l = [f'buffer_load_dwordx4 v[{WGT+4*p}:{WGT+4*p+3}], v{V_PA}, {R(SRD_C)}, s{S_PA} offen nt\ns_add_u32 s{S_PA}, s{S_PA}, {64*3072}' for p in range(10)]
    l += [f'buffer_load_dwordx4 v[{WGT+40+4*i}:{WGT+40+4*i+3}], v{V_PB}, {R(SRD_D)}, s{S_PB} offen nt\ns_add_u32 s{S_PB}, s{S_PB}, 3840' for i in range(6)]
    return l
def w_weights(a):
    w_setup(a)
    for l in w_loads(): a(l)
def m_weights(a):
    m_setup(a)
    for l in m_loads(): a(l)
NW_W, NW_M = 12, 16

def setoff(a):
    a(f's_add_u32 s{S_OFF}, s{S_NX}, s{S_ROT}', f's_and_b32 s{S_OFF}, s{S_OFF}, 2047', f's_mul_i32 s{S_OFF}, s{S_OFF}, 6144', f's_add_u32 s{S_OFF}, s{S_OFF}, s{S_HB}')
def issue(a, r, srd_=None):
    srd_ = SRD_K if srd_ is None else srd_
    for j in range(6): a(f'buffer_load_dwordx4 v[{r+4*j}:{r+4*j+3}], v{V_OFFB}, {R(srd_)}, s{S_OFF} offen offset:{128*(j%3)+3072*(j//3)} nt')
def atomic(a):
    a(f'v_mov_b32 v{V_ATOM}, 1', 's_mov_b64 exec, 1', f'buffer_atomic_add v{V_ATOM}, v{V_ZERO}, {WS}, s{S_CNT} offen sc0', 's_mov_b64 exec, -1')
def static_next(a):
    a(f's_mov_b32 s{S_NX}, s{S_SU}', f's_add_u32 s{S_SU}, s{S_SU}, 32', f's_add_u32 s{S_K}, s{S_K}, 1')
def scores(a, r):
    ta = (V_T, V_T+2, V_T+3); tb = (V_T+1, V_T+4, V_T+5)
    for i in range(4):
        for u, ts in ((0, ta), (1, tb)):
            for j, t in enumerate(ts):
                c = '0' if i == 0 else f'v{t}'
                a(f'v_dot2_f32_bf16 v{t}, v{r+12*u+4*j+i}, v{V_Q+4*j+i}, {c}')
    a('s_nop 1')
    a(f'v_add_f32 v{ta[0]}, v{ta[0]}, v{ta[1]}', f'v_add_f32 v{tb[0]}, v{tb[0]}, v{tb[1]}', f'v_add_f32 v{ta[0]}, v{ta[0]}, v{ta[2]}', f'v_add_f32 v{tb[0]}, v{tb[0]}, v{tb[2]}')
    for d in ('quad_perm:[1,0,3,2]', 'quad_perm:[2,3,0,1]', 'row_half_mirror'):
        a('s_nop 0'); dpp(a, 'v_add_f32', V_T, d); dpp(a, 'v_add_f32', V_T+1, d)
    a(f'v_cvt_pk_bf16_f32 v{V_T+2}, v{V_T}, v{V_T+1}', f'v_lshlrev_b32 v{V_T}, 16, v{V_T+2}', f'v_and_b32 v{V_T+1}, 0xffff0000, v{V_T+2}',
      f'v_mul_f32 v{V_T}, s{S_SCALE}, v{V_T}', f'v_mul_f32 v{V_T+1}, s{S_SCALE}, v{V_T+1}',
      f'v_cvt_pk_bf16_f32 v{V_T+2}, v{V_T}, v{V_T+1}', f'v_lshlrev_b32 v{V_T}, 16, v{V_T+2}', f'v_and_b32 v{V_T+1}, 0xffff0000, v{V_T+2}')
def k_step(a, slot):
    scores(a, V_RING + 24*slot)
    dy = a.label('kd'); jn = a.label('kj')
    a(f's_cmp_lt_i32 s{S_DST+slot}, 0', f's_mov_b64 exec, s[{S_MASK}:{S_MASK+1}]', f's_cbranch_scc1 {dy}')
    a(f'v_add_u32 v{V_T+2}, s{S_DST+slot}, v{V_SCA}', f'ds_write_b64 v{V_T+2}, v[{V_T}:{V_T+1}] offset:{L_SC}', f's_branch {jn}')
    a(f'{dy}:', f's_and_b32 s{S_T0}, s{S_DST+slot}, 0x7fffffff', f'buffer_store_dwordx2 v[{V_T}:{V_T+1}], v{V_G8}, {WS}, s{S_T0} offen sc1', f'{jn}:')
    a('s_mov_b64 exec, -1')
def v_step(a, slot):
    r = V_RING + 24*slot; sa, sb = V_SC+2*slot, V_SC+2*slot+1
    t1, t2, t3, t4 = V_T, V_T+2, V_T+3, V_T+4
    a(f'v_max3_f32 v{t1}, v{V_M}, v{sa}, v{sb}', f'v_sub_f32 v{t2}, v{V_M}, v{t1}', f'v_sub_f32 v{t3}, v{sa}, v{t1}', f'v_sub_f32 v{t4}, v{sb}, v{t1}',
      f'v_mul_f32 v{t2}, s{S_LOG2E}, v{t2}', f'v_mul_f32 v{t3}, s{S_LOG2E}, v{t3}', f'v_mul_f32 v{t4}, s{S_LOG2E}, v{t4}',
      f'v_exp_f32 v{t2}, v{t2}', f'v_exp_f32 v{t3}, v{t3}', f'v_exp_f32 v{t4}, v{t4}', f'v_mov_b32 v{V_M}, v{t1}',
      f'v_fma_f32 v{V_L}, v{V_L}, v{t2}, v{t3}', f'v_cvt_pk_bf16_f32 v{t1}, v{t3}, 0', f'v_cvt_pk_bf16_f32 v{t1+1}, 0, v{t3}',
      f'v_add_f32 v{V_L}, v{V_L}, v{t4}', f'v_cvt_pk_bf16_f32 v{t4+1}, v{t4}, 0', f'v_cvt_pk_bf16_f32 v{t4}, 0, v{t4}')
    for i in range(12):
        a(f'v_pk_mul_f32 v[{V_ACC+2*i}:{V_ACC+2*i+1}], v[{V_ACC+2*i}:{V_ACC+2*i+1}], v[{t2}:{t2+1}] op_sel_hi:[1,0]')
    pv_unit(a, r, t1, t1+1)
    pv_unit(a, r+12, t4+1, t4)

def startup(a):
    P = OPT['P']; NC = 2 if OPT['cpf'] else 0
    X, XF, W = 64, 70, 80
    srd(a, SRD_A, P_X, 1280); srd(a, SRD_B, P_WQ, 7864320)
    a(f'v_lshlrev_b32 v{V_T}, 2, v{V_LANE}', f's_mov_b32 s{S_T0}, {EPOCH}')
    a(f'buffer_load_dword v{V_E}, v{V_ZERO}, {WS}, s{S_T0} offen sc1')
    for j in range(5): a(f'buffer_load_dword v{X+j}, v{V_T}, {R(SRD_A)}, 0 offen offset:{256*j}')
    a(f'v_lshrrev_b32 v{V_T+1}, 3, v{V_LANE}', f'v_mul_u32_u24 v{V_T+1}, 12288, v{V_T+1}', f'v_and_b32 v{V_T+2}, 7, v{V_LANE}', f'v_lshl_add_u32 v{V_T+1}, v{V_T+2}, 4, v{V_T+1}')
    a(f's_mul_i32 s70, s{S_MEM}, 80', f's_lshl_b32 s{S_T1}, s{S_WAVE}, 3', f's_add_u32 s70, s70, s{S_T1}',
      f's_mul_i32 s{S_T1}, s70, 12288', f's_mul_i32 s{S_T2}, s{S_HEAD}, 384', f's_add_u32 s{S_T1}, s{S_T1}, s{S_T2}')
    third = a.label('q3')
    for u in range(3):
        if u == 2: a(f's_cmp_ge_u32 s{S_WAVE}, 2', f's_cbranch_scc1 {third}')
        for j in range(3): a(f'buffer_load_dwordx4 v[{W+12*u+4*j}:{W+12*u+4*j+3}], v{V_T+1}, {R(SRD_B)}, s{S_T1} offen offset:{128*j} nt')
        a(f's_add_u32 s{S_T1}, s{S_T1}, {32*12288}')
    a(f'{third}:')
    srd(a, SRD_K, P_K, KV_BYTES); srd(a, SRD_V, P_V, KV_BYTES)
    for i in range(4): a(f'v_mov_b32 v{V_T+2+i}, -1')
    a(f's_lshl_b32 s{S_T0}, s{S_ROW}, 10', f's_add_u32 s{S_T0}, s{S_T0}, {OP}', f'v_lshlrev_b32 v{V_T}, 2, v0')
    a(f'buffer_store_dword v{V_T+2}, v{V_T}, {WS}, s{S_T0} offen sc1')
    a(f's_lshl_b32 s{S_T0}, s{S_ROW}, 11', f's_add_u32 s{S_T0}, s{S_T0}, {SC}', f'v_lshlrev_b32 v{V_T+1}, 3, v0')
    a(f'buffer_store_dwordx2 v[{V_T+2}:{V_T+3}], v{V_T+1}, {WS}, s{S_T0} offen sc1')
    def wclr():
        sk = a.label('wc')
        a(f's_cmp_lg_u32 s{S_WAVE}, 0', f's_cbranch_scc1 {sk}')
        a(f's_and_b32 s{S_T0}, s2, 7', f's_mul_i32 s{S_T0}, s{S_T0}, 2560', f's_lshr_b32 s{S_T1}, s2, 3', f's_lshl_b32 s{S_T1}, s{S_T1}, 7',
          f's_add_u32 s{S_T0}, s{S_T0}, s{S_T1}', f's_add_u32 s{S_T0}, s{S_T0}, {HP}')
        a('v_cmp_gt_u32 vcc, 32, v0', 's_and_saveexec_b64 s[34:35], vcc')
        for r in range(OPT['hr']):
            a(f'buffer_store_dword v{V_T+2}, v{V_T}, {WS}, s{S_T0} offen sc1')
            if r < OPT['hr']-1: a(f's_add_u32 s{S_T0}, s{S_T0}, {HPS}')
        a('s_mov_b64 exec, s[34:35]', f'{sk}:')
    def mclr():
        m_index(a)
        sk = a.label('mc')
        a(f's_cmp_ge_u32 s{S_WAVE}, 3', f's_cbranch_scc1 {sk}')
        a(f'v_lshrrev_b32 v{V_T}, 2, v0', f'v_mul_u32_u24 v{V_T}, 6144, v{V_T}', f'v_and_b32 v{V_T+1}, 3, v0', f'v_lshl_add_u32 v{V_T}, v{V_T+1}, 4, v{V_T}',
          f's_lshl_b32 s{S_T0}, s{S_M}, 6', f's_add_u32 s{S_T0}, s{S_T0}, {YP}')
        a('v_cmp_gt_u32 vcc, 160, v0', 's_and_saveexec_b64 s[34:35], vcc', f'buffer_store_dwordx4 v[{V_T+2}:{V_T+5}], v{V_T}, {WS}, s{S_T0} offen sc1', 's_mov_b64 exec, s[34:35]', f'{sk}:')
    role_branch(a, wclr, mclr)
    sk = a.label('cz')
    a(f's_lshl_b32 s{S_CNT}, s{S_HEAD}, 8', f's_add_u32 s{S_CNT}, s{S_CNT}, {CNT}')
    a(f's_or_b32 s{S_T0}, s{S_MEM}, s{S_WAVE}', f's_cmp_lg_u32 s{S_T0}, 0', f's_cbranch_scc1 {sk}', 's_mov_b64 exec, 1')
    a(f'buffer_store_dword v{V_ZERO}, v{V_ZERO}, {WS}, s{S_CNT} offen sc1', f'buffer_store_dword v{V_ZERO}, v{V_ZERO}, {WS}, s{S_CNT} offen offset:128 sc1', 's_mov_b64 exec, -1', f'{sk}:')
    a(f's_mul_i32 s{S_HB}, s{S_HEAD}, {HEAD_BYTES}', f"s_mul_i32 s{S_ROT}, s{S_HEAD}, {OPT['hrot']}")
    a(f's_lshl_b32 s{S_SU}, s{S_MEM}, 2', f's_add_u32 s{S_SU}, s{S_SU}, s{S_WAVE}', f's_mov_b32 s{S_K}, 0')
    a(f's_lshl_b32 s{S_SCB0}, s{S_HEAD}, 14', f's_add_u32 s{S_SCB0}, s{S_SCB0}, {SC}', f's_or_b32 s{S_SCB}, s{S_SCB0}, 0x80000000')
    nopf = a.label('nopf'); pfd = a.label('pfd')
    a(f's_cmp_ge_u32 s{S_WAVE}, 3', f's_cbranch_scc1 {nopf}')
    if NC: code_prefetch(a, 'L_code_start', 'L_code_end', NC, V_T)
    for k in range(P):
        static_next(a); setoff(a); issue(a, PF + 24*k)
    a(f's_waitcnt vmcnt({7+NC+6*P})', f's_branch {pfd}', f'{nopf}:', 's_waitcnt vmcnt(7)', f'{pfd}:')
    a(f'v_readfirstlane_b32 s{S_TAG}, v{V_E}')
    unpack5(a, X, XF)
    a(f's_add_u32 s{S_TAG}, s{S_TAG}, 1')
    for i in range(24): a(f'v_mov_b32 v{V_ACC+i}, 0')
    layernorm(a, XF, V_T+4)
    for j in range(5): a(f'v_cvt_pk_bf16_f32 v{X+j}, v{XF+2*j}, v{XF+2*j+1}')
    a(f's_mul_i32 s{S_T2}, s{S_WAVE}, 1280', f'v_lshlrev_b32 v{V_T}, 2, v{V_LANE}', f'v_add_u32 v{V_T}, s{S_T2}, v{V_T}')
    for j in range(5): a(f'ds_write_b32 v{V_T}, v{X+j} offset:{L_XN+256*j}')
    a(f's_lshl_b32 s{S_T0}, s70, 1', f's_add_u32 s{S_T0}, s{S_T0}, s{S_T2}', f'v_lshrrev_b32 v{V_T}, 3, v{V_LANE}', f'v_lshlrev_b32 v{V_T}, 1, v{V_T}', f'v_add_u32 v{V_T}, s{S_T0}, v{V_T}')
    a('s_waitcnt lgkmcnt(0)')
    for u in range(3): a(f'ds_read_u16 v{X+u}, v{V_T} offset:{L_XN+64*u}')
    w3 = a.label('w3'); w3d = a.label('w3d')
    a(f's_cmp_ge_u32 s{S_WAVE}, 3', f's_cbranch_scc1 {w3}', f's_waitcnt lgkmcnt(0) vmcnt({NC+6*P})', f's_branch {w3d}',
      f'{w3}:', 's_waitcnt lgkmcnt(0) vmcnt(0)', f'{w3d}:')
    NE = OPT['wsplit'] if OPT['wmode'] <= 1 else 0
    if NE:
        ske = a.label('ske')
        role_branch(a, lambda: w_setup(a), lambda: m_setup(a))
        a(f's_cmp_ge_u32 s{S_WAVE}, 3', f's_cbranch_scc1 {ske}')
        role_branch(a, lambda: [a(l) for l in w_loads()[:NE]], lambda: [a(l) for l in m_loads()[10:10+NE]])
        a(f'{ske}:')
    stamp(a, 12)
    skip = a.label('q3b')
    for u in range(3):
        if u == 2: a(f's_cmp_ge_u32 s{S_WAVE}, 2', f's_cbranch_scc1 {skip}')
        a(f'v_lshlrev_b32 v{X+4}, 16, v{X+u}')
        pv_unit(a, W+12*u, X+u, X+4)
    a(f'{skip}:')
    acc_reduce_write(a, L_A, V_T)
    a('s_waitcnt lgkmcnt(0)', 's_barrier')
    stamp(a, 1)
    gat = a.label('gat'); qrdy = a.label('qrdy')
    a(f's_cmp_ge_u32 s{S_WAVE}, 3', f's_cbranch_scc1 {gat}')
    a(f'v_lshlrev_b32 v{V_T}, 2, v0')
    for w in range(4): a(f'ds_read_b32 v{96+w}, v{V_T} offset:{L_A+768*w}')
    a(f's_lshl_b32 s{S_T0}, s{S_ROW}, 11', f's_add_u32 s{S_T0}, s{S_T0}, {QP2}', f'v_lshlrev_b32 v{V_T}, 3, v0', 's_waitcnt lgkmcnt(0)')
    a('v_add_f32 v96, v96, v97', 'v_add_f32 v98, v98, v99', f'v_mov_b32 v97, s{S_TAG}', 'v_add_f32 v96, v96, v98')
    a(f'buffer_store_dwordx2 v[96:97], v{V_T}, {WS}, s{S_T0} offen sc1')
    if OPT['wmode'] == 1: a('s_waitcnt vmcnt(0)')
    if OPT['wmode'] <= 1:
        if NE:
            role_branch(a, lambda: [a(l) for l in w_loads()[NE:]], lambda: [a(l) for l in m_loads()[:10] + m_loads()[10+NE:]])
        else:
            role_branch(a, lambda: w_weights(a), lambda: m_weights(a))
    a(f's_branch {qrdy}')
    a(f'{gat}:')
    a(f's_lshl_b32 s{S_T0}, s{S_HEAD}, 14', f's_add_u32 s{S_T0}, s{S_T0}, {QP2}')
    a(f's_add_u32 s{S_T1}, s{S_T0}, 4096', f's_add_u32 s{S_T2}, s{S_T0}, 8192', f's_add_u32 s{S_T3}, s{S_T0}, 12288', f'v_lshlrev_b32 v{V_T}, 3, v{V_LANE}')
    def qissue(base):
        for s in range(8):
            for j in range(3):
                r = base + 2*(3*s+j)
                a(f'buffer_load_dwordx2 v[{r}:{r+1}], v{V_T}, {WS}, s{S_T0 + s//2} offen offset:{2048*(s&1)+512*j} sc1')
    def qcheck(base):
        tags = [base + 2*i + 1 for i in range(24)]
        a(f'v_min3_u32 v{V_T+2}, v{tags[0]}, v{tags[1]}, v{tags[2]}', f'v_max3_u32 v{V_T+3}, v{tags[0]}, v{tags[1]}, v{tags[2]}')
        for i in range(3, 23, 2):
            a(f'v_min3_u32 v{V_T+2}, v{V_T+2}, v{tags[i]}, v{tags[i+1]}', f'v_max3_u32 v{V_T+3}, v{V_T+3}, v{tags[i]}, v{tags[i+1]}')
        a(f'v_min_u32 v{V_T+2}, v{V_T+2}, v{tags[23]}', f'v_max_u32 v{V_T+3}, v{V_T+3}, v{tags[23]}')
        a(f'v_xor_b32 v{V_T+2}, s{S_TAG}, v{V_T+2}', f'v_xor_b32 v{V_T+3}, s{S_TAG}, v{V_T+3}', f'v_or_b32 v{V_T+2}, v{V_T+2}, v{V_T+3}')
        a(f'v_cmp_ne_u32 vcc, 0, v{V_T+2}')
    def qpost(base):
        for j in range(3):
            for s in range(1, 8): a(f'v_add_f32 v{base+2*j}, v{base+2*j}, v{base+2*(3*s+j)}')
            a(f'v_cvt_pk_bf16_f32 v{base+2*j}, v{base+2*j}, v{base+2*j}')
            a(f'ds_write_b16 v{V_T+6+j}, v{base+2*j} offset:{L_SM+64}')
    for j in range(3):
        a(f'v_add_u32 v{V_T+1}, {64*j}, v{V_LANE}', f'v_mul_u32_u24 v{V_T+2}, 2731, v{V_T+1}', f'v_lshrrev_b32 v{V_T+2}, 16, v{V_T+2}',
          f'v_mul_u32_u24 v{V_T+3}, 24, v{V_T+2}', f'v_sub_u32 v{V_T+3}, v{V_T+1}, v{V_T+3}',
          f'v_lshrrev_b32 v{V_T+4}, 3, v{V_T+3}', f'v_and_b32 v{V_T+3}, 7, v{V_T+3}', f'v_lshlrev_b32 v{V_T+4}, 6, v{V_T+4}',
          f'v_lshl_add_u32 v{V_T+4}, v{V_T+2}, 3, v{V_T+4}', f'v_add_lshl_u32 v{V_T+6+j}, v{V_T+4}, v{V_T+3}, 1')
    lbl = a.label('qspin'); ok = a.label('qok'); qjoin = a.label('qjoin')
    if OPT['qov']:
        okb = a.label('qokb')
        a(f's_mov_b32 s{S_SPIN}, 0')
        qissue(64)
        a(f'{lbl}:')
        qissue(116)
        a('s_waitcnt vmcnt(24)'); qcheck(64); a(f's_cbranch_vccz {ok}')
        qissue(64)
        a('s_waitcnt vmcnt(24)'); qcheck(116); a(f's_cbranch_vccz {okb}')
        a(f's_add_u32 s{S_SPIN}, s{S_SPIN}, 1', f's_cmp_lt_u32 s{S_SPIN}, 100000', f's_cbranch_scc1 {lbl}', f's_branch {ok}')
        a(f'{okb}:')
        qpost(116)
        a(f's_branch {qjoin}', f'{ok}:')
    else:
        spin_begin(a, lbl)
        qissue(64)
        a('s_waitcnt vmcnt(0)'); qcheck(64)
        a(f's_cbranch_vccz {ok}', f's_add_u32 s{S_SPIN}, s{S_SPIN}, 1', f's_cmp_lt_u32 s{S_SPIN}, 200000', f's_cbranch_scc1 {lbl}', f'{ok}:')
    qpost(64)
    a(f'{qjoin}:')
    stamp(a, 13)
    srd(a, SRD_A, P_DBG, 256)
    a(f'v_mov_b32 v{V_T}, 1', 's_mov_b64 exec, 1', f'buffer_atomic_add v{V_T}, v{V_ZERO}, {R(SRD_A)}, 0 offen', 's_mov_b64 exec, -1')
    if OPT['wmode'] <= 1: role_branch(a, lambda: w_weights(a), lambda: m_weights(a))
    a(f'{qrdy}:')
    a('s_waitcnt lgkmcnt(0)', 's_barrier')
    a(f'v_and_b32 v{V_T}, 7, v{V_LANE}', f'v_lshlrev_b32 v{V_T}, 4, v{V_T}')
    for j in range(3): a(f'ds_read_b128 v[{V_Q+4*j}:{V_Q+4*j+3}], v{V_T} offset:{L_SM+64+128*j}')

def pair_perm(a):
    a(f's_mov_b32 s{S_T2}, 0x05040100', f's_mov_b32 s{S_T3}, 0x07060302')
    def do(pairs):
        for A_, B_ in pairs:
            a(f'v_perm_b32 v50, v{B_}, v{A_}, s{S_T3}', f'v_perm_b32 v{A_}, v{B_}, v{A_}, s{S_T2}', f'v_mov_b32 v{B_}, v50')
    role_branch(a, lambda: do([(WGT+8*q+i, WGT+8*q+4+i) for q in range(6) for i in range(4)]),
                   lambda: do([(WGT+8*q+i, WGT+8*q+4+i) for q in range(8) for i in range(4)]))
def late_loads(a):
    sk = a.label('lx')
    a('s_cmp_lt_u32 s2, 160', f's_cbranch_scc1 {sk}')
    srd(a, SRD_D, P_X, 1280); srd(a, SRD_E, P_WR, 1280)
    a(f'v_lshlrev_b32 v50, 2, v{V_LANE}')
    for j in range(5): a(f'buffer_load_dword v{V_XW+j}, v50, {R(SRD_D)}, 0 offen offset:{256*j}')
    for j in range(5): a(f'buffer_load_dword v{V_XW+5+j}, v50, {R(SRD_E)}, 0 offen offset:{256*j}')
    a(f'{sk}:')
    if OPT['cpf2']: code_prefetch(a, 'L_tail_start', 'L_code_end', 1, 50)

def stream(a):
    NS = OPT['NS']; NDYN = 2048 - 32*NS
    assert OPT['P'] == 0 and NS <= 64 and NDYN <= 256
    def prepare():
        a(f's_mov_b32 s{S_NX}, s{S_SU}', f's_add_u32 s{S_SU}, s{S_SU}, 32'); setoff(a)
        a(f's_cmp_ge_u32 s{S_K}, {NS}')
    a(f'v_lshrrev_b32 v{V_G8}, 3, v{V_LANE}', f'v_lshlrev_b32 v{V_G8}, 3, v{V_G8}', f's_lshl_b32 s{S_T0}, s{S_WAVE}, 12', f'v_add_u32 v{V_SCA}, s{S_T0}, v{V_G8}')
    a(f's_mov_b32 s{S_MASK}, 0x01010101', f's_mov_b32 s{S_MASK+1}, 0x01010101')
    static_next(a); setoff(a); issue(a, V_RING, SRD_K)
    a(f's_mov_b32 s{S_DST}, 0', 's_waitcnt lgkmcnt(0)')
    stamp(a, 2); dstamp(a, 6)
    prepare()
    loop = a.label('kloop'); drains = []; sws = []
    a(f'{loop}:')
    for t in range(2):
        o = 1 - t
        a('s_waitcnt vmcnt(0)')
        dyn = a.label('kdyn'); cont = a.label('kcont'); dl = a.label('kdrain'); sw = a.label('ksw'); drains.append((dl, t)); sws.append((sw, cont))
        a(f's_cbranch_scc1 {dyn}')
        issue(a, V_RING + 24*o, SRD_K)
        a(f's_lshl_b32 s{S_DST+o}, s{S_K}, 6', f's_add_u32 s{S_K}, s{S_K}, 1', f's_cmp_eq_u32 s{S_K}, {NS}', f's_cbranch_scc1 {sw}')
        a(f'{cont}:')
        k_step(a, t)
        prepare()
        nxt = a.label('kn') if t == 0 else loop
        a(f's_branch {nxt}')
        a(f'{dyn}:')
        a(f'v_readfirstlane_b32 s{S_NX}, v{V_ATOM}', 's_nop 0', f's_cmp_ge_u32 s{S_NX}, {NDYN}', f's_cbranch_scc1 {dl}')
        a(f's_lshl_b32 s{S_DST+o}, s{S_NX}, 6', f's_add_u32 s{S_DST+o}, s{S_DST+o}, s{S_SCB}', f's_add_u32 s{S_NX}, s{S_NX}, {32*NS}')
        setoff(a); issue(a, V_RING + 24*o, SRD_K); atomic(a)
        a(f's_branch {cont}')
        if t == 0: a(f'{nxt}:')
    for sw, cont in sws:
        a(f'{sw}:')
        atomic(a)
        srd(a, SRD_E, P_DBG, 256)
        a(f'buffer_load_dword v{V_DBG}, v{V_ZERO}, {R(SRD_E)}, 0 offen sc1')
        a(f's_branch {cont}')
    ventry = [a.label('vent0'), a.label('vent1')]
    for dl, t in drains:
        o = 1 - t
        a(f'{dl}:')
        a(f's_lshl_b32 s{S_SU}, s{S_MEM}, 2', f's_add_u32 s{S_SU}, s{S_SU}, s{S_WAVE}', f's_mov_b32 s{S_K}, 0', f's_add_u32 s{S_CNT}, s{S_CNT}, 128')
        static_next(a); setoff(a); issue(a, V_RING + 24*o, SRD_V)
        k_step(a, t)
        stamp(a, 14)
        dbg_check(a)
        for i in range(24): a(f'v_mov_b32 v{V_ACC+i}, 0')
        a(f'v_mov_b32 v{V_M}, 0x{NEGBIG:08x}', f'v_mov_b32 v{V_L}, 0')
        a('s_waitcnt lgkmcnt(0)', f'ds_read_b64 v[{V_SC+2*o}:{V_SC+2*o+1}], v{V_SCA} offset:{L_SC}')
        prepare()
        a(f's_branch {ventry[o]}')
    done = a.label('sdone'); vdr = []; vsw = []; rep = []
    for t in range(2):
        o = 1 - t
        a(f'{ventry[t]}:')
        a('s_waitcnt vmcnt(0) lgkmcnt(0)')
        dyn = a.label('vdyn'); cont = a.label('vcont'); dl = a.label('vdrain'); sw = a.label('vsw'); rp = a.label('vrp'); rb = a.label('vrb')
        vdr.append((dl, t)); vsw.append((sw, cont)); rep.append((rp, rb, t))
        a(f's_cbranch_scc1 {dyn}')
        issue(a, V_RING + 24*o, SRD_V)
        a(f's_lshl_b32 s{S_T0}, s{S_K}, 6', f'v_add_u32 v{V_T}, s{S_T0}, v{V_SCA}', f'ds_read_b64 v[{V_SC+2*o}:{V_SC+2*o+1}], v{V_T} offset:{L_SC}')
        a(f's_add_u32 s{S_K}, s{S_K}, 1', f's_cmp_eq_u32 s{S_K}, {NS}', f's_cbranch_scc1 {sw}')
        a(f'{cont}:')
        a(f'v_max_u32 v{V_T}, v{V_SC+2*t}, v{V_SC+2*t+1}', f'v_cmp_eq_u32 vcc, -1, v{V_T}', f's_cbranch_vccnz {rp}', f'{rb}:')
        v_step(a, t)
        prepare()
        a(f's_branch {ventry[o]}')
        a(f'{dyn}:')
        a(f'v_readfirstlane_b32 s{S_NX}, v{V_ATOM}', 's_nop 0', f's_cmp_ge_u32 s{S_NX}, {NDYN}', f's_cbranch_scc1 {dl}')
        a(f's_lshl_b32 s{S_DST+o}, s{S_NX}, 6', f's_add_u32 s{S_DST+o}, s{S_DST+o}, s{S_SCB0}', f's_add_u32 s{S_NX}, s{S_NX}, {32*NS}')
        setoff(a); issue(a, V_RING + 24*o, SRD_V)
        a(f'buffer_load_dwordx2 v[{V_SC+2*o}:{V_SC+2*o+1}], v{V_G8}, {WS}, s{S_DST+o} offen sc1')
        atomic(a)
        a(f's_branch {cont}')
    for sw, cont in vsw:
        a(f'{sw}:')
        atomic(a)
        if OPT['pp']: pair_perm(a)
        late_loads(a)
        a(f's_branch {cont}')
    for rp, rb, t in rep:
        lp = a.label('rpl')
        a(f'{rp}:', f's_mov_b32 s{S_SPIN}, 0', f'{lp}:')
        a(f'buffer_load_dwordx2 v[{V_SC+2*t}:{V_SC+2*t+1}], v{V_G8}, {WS}, s{S_DST+t} offen sc1', 's_waitcnt vmcnt(0)')
        a(f'v_max_u32 v{V_T}, v{V_SC+2*t}, v{V_SC+2*t+1}', f'v_cmp_eq_u32 vcc, -1, v{V_T}', f's_cbranch_vccz {rb}')
        a(f's_add_u32 s{S_SPIN}, s{S_SPIN}, 1', f's_cmp_lt_u32 s{S_SPIN}, 200000', f's_cbranch_scc1 {lp}', f's_branch {rb}')
    for dl, t in vdr:
        a(f'{dl}:')
        rp = a.label('drp'); rb = a.label('drb'); lp = a.label('drl')
        a(f'v_max_u32 v{V_T}, v{V_SC+2*t}, v{V_SC+2*t+1}', f'v_cmp_eq_u32 vcc, -1, v{V_T}', f's_cbranch_vccz {rb}', f's_mov_b32 s{S_SPIN}, 0', f'{lp}:')
        a(f'buffer_load_dwordx2 v[{V_SC+2*t}:{V_SC+2*t+1}], v{V_G8}, {WS}, s{S_DST+t} offen sc1', 's_waitcnt vmcnt(0)')
        a(f'v_max_u32 v{V_T}, v{V_SC+2*t}, v{V_SC+2*t+1}', f'v_cmp_eq_u32 vcc, -1, v{V_T}', f's_cbranch_vccz {rb}')
        a(f's_add_u32 s{S_SPIN}, s{S_SPIN}, 1', f's_cmp_lt_u32 s{S_SPIN}, 200000', f's_cbranch_scc1 {lp}', f'{rb}:')
        v_step(a, t)
        a(f's_branch {done}')
    a(f'{done}:')

def phase_t1(a):
    t = V_T
    a('s_nop 2', f'v_mov_b32 v{t+2}, v{V_M}')
    groups_red(a, t+2, t+3, 'v_max_f32')
    a(f'v_sub_f32 v{t+4}, v{V_M}, v{t+2}', f'v_mul_f32 v{t+4}, s{S_LOG2E}, v{t+4}', f'v_exp_f32 v{t+4}, v{t+4}', 's_nop 0', f'v_mul_f32 v{V_L}, v{V_L}, v{t+4}')
    for i in range(12): a(f'v_pk_mul_f32 v[{V_ACC+2*i}:{V_ACC+2*i+1}], v[{V_ACC+2*i}:{V_ACC+2*i+1}], v[{t+4}:{t+5}] op_sel_hi:[1,0]')
    groups_red(a, V_L, t+3, 'v_add_f32')
    a(f'v_mov_b32 v{t+3}, v{V_L}', f's_lshl_b32 s{S_T1}, s{S_WAVE}, 3', f'v_mov_b32 v{t+6}, s{S_T1}', f'ds_write_b64 v{t+6}, v[{t+2}:{t+3}] offset:{L_SM}')
    acc_reduce_write(a, L_A, t+6)
    a('s_waitcnt lgkmcnt(0)', 's_barrier')
    a(f'ds_read_b128 v[100:103], v{V_ZERO} offset:{L_SM}', f'ds_read_b128 v[104:107], v{V_ZERO} offset:{L_SM+16}', f'v_lshlrev_b32 v{t}, 2, v0')
    for w in range(4): a(f'ds_read_b32 v{96+w}, v{t} offset:{L_A+768*w}')
    a(f's_lshl_b32 s{S_T0}, s{S_ROW}, 10', f's_add_u32 s{S_T0}, s{S_T0}, {OP}', 's_waitcnt lgkmcnt(4)')
    a('v_max_f32 v108, v100, v102', 'v_max3_f32 v108, v108, v104, v106')
    for w in range(4): a(f'v_sub_f32 v{110+w}, v{100+2*w}, v108', f'v_mul_f32 v{110+w}, s{S_LOG2E}, v{110+w}')
    for w in range(4): a(f'v_exp_f32 v{110+w}, v{110+w}')
    a('s_waitcnt lgkmcnt(0)', 'v_mul_f32 v96, v96, v110', 'v_mul_f32 v109, v101, v110')
    for w in range(1, 4): a(f'v_fmac_f32 v96, v{96+w}, v{110+w}', f'v_fmac_f32 v109, v{101+2*w}, v{110+w}')
    a('v_cmp_eq_u32 vcc, 192, v0', 's_nop 1', 'v_cndmask_b32 v96, v96, v108, vcc', 'v_cmp_eq_u32 vcc, 193, v0', 's_nop 1', 'v_cndmask_b32 v96, v96, v109, vcc')
    a('v_cmp_lt_u32 vcc, 193, v0', 's_nop 1', f'v_cndmask_b32 v96, v96, v{V_ZERO}, vcc')
    a('v_cmp_gt_u32 vcc, 196, v0', 's_and_saveexec_b64 s[34:35], vcc')
    sk = a.label('t1s')
    a(f's_cbranch_execz {sk}', f'buffer_store_dword v96, v{t}, {WS}, s{S_T0} offen sc1', f'{sk}:', 's_mov_b64 exec, s[34:35]')

def dbg_check(a):
    ok = a.label('dok'); lp = a.label('dlp')
    a(f'v_readfirstlane_b32 s{S_T0}, v{V_DBG}', 's_nop 0', f's_cmp_ge_u32 s{S_T0}, 256', f's_cbranch_scc1 {ok}')
    srd(a, SRD_A, P_DBG, 256)
    a(f's_mov_b32 s{S_SPIN}, 0', f'{lp}:', f'buffer_load_dword v{V_DBG}, v{V_ZERO}, {R(SRD_A)}, 0 offen sc1', 's_waitcnt vmcnt(0)')
    a(f'v_readfirstlane_b32 s{S_T0}, v{V_DBG}', 's_nop 0', f's_cmp_ge_u32 s{S_T0}, 256', f's_cbranch_scc1 {ok}')
    a(f's_add_u32 s{S_SPIN}, s{S_SPIN}, 1', f's_cmp_lt_u32 s{S_SPIN}, 200000', f's_cbranch_scc1 {lp}', f'{ok}:')
    sk = a.label('ep')
    a(f's_or_b32 s{S_T0}, s2, s{S_WAVE}', f's_cmp_lg_u32 s{S_T0}, 0', f's_cbranch_scc1 {sk}')
    a(f'v_mov_b32 v{V_T}, s{S_TAG}', f's_mov_b32 s{S_T0}, {EPOCH}', 's_mov_b64 exec, 1', f'buffer_store_dword v{V_T}, v{V_ZERO}, {WS}, s{S_T0} offen sc1', 's_mov_b64 exec, -1', f'{sk}:')

def phase_w(a):
    a(f's_and_b32 s{S_T0}, s2, 7', f's_lshl_b32 s{S_T0}, s{S_T0}, 2', f's_add_u32 s{S_T0}, s{S_T0}, s{S_WAVE}',
      f's_lshl_b32 s{S_T0}, s{S_T0}, 13', f's_add_u32 s{S_T0}, s{S_T0}, {OP}', f's_add_u32 s{S_T1}, s{S_T0}, 4096', f'v_lshlrev_b32 v{V_T}, 4, v{V_LANE}')
    a(f's_mul_i32 s{S_T2}, s{S_WAVE}, 768', f'v_add_u32 v{V_T+2}, s{S_T2}, v{V_T}')
    a('s_bfm_b64 exec, 49, 0')
    O = 108
    def w_issue(Pr):
        for s in range(8): a(f'buffer_load_dwordx4 v[{Pr+4*s}:{Pr+4*s+3}], v{V_T}, {WS}, s{S_T0 if s < 4 else S_T1} offen offset:{1024*(s&3)} sc1')
    def w_post(Pr):
        Mx, Ls, Fs = 96, 97, 98
        a(f'v_max3_f32 v{Mx}, v{Pr}, v{Pr+4}, v{Pr+8}', f'v_max3_f32 v{Mx}, v{Mx}, v{Pr+12}, v{Pr+16}', f'v_max3_f32 v{Mx}, v{Mx}, v{Pr+20}, v{Pr+24}', f'v_max_f32 v{Mx}, v{Mx}, v{Pr+28}')
        for s in range(8): a(f'v_sub_f32 v{Fs+s}, v{Pr+4*s}, v{Mx}', f'v_mul_f32 v{Fs+s}, s{S_LOG2E}, v{Fs+s}')
        for s in range(8): a(f'v_exp_f32 v{Fs+s}, v{Fs+s}')
        a(f'v_mul_f32 v{Ls}, v{Pr+1}, v{Fs}')
        for s in range(1, 8): a(f'v_fmac_f32 v{Ls}, v{Pr+4*s+1}, v{Fs+s}')
        a(f'v_rcp_f32 v{Ls}, v{Ls}', 's_nop 0')
        for s in range(8): a(f'v_mul_f32 v{Fs+s}, v{Fs+s}, v{Ls}')
        for s in range(8): a(f'v_readlane_b32 s{S_G+s}, v{Fs+s}, 48')
        a('s_nop 1')
        for e in range(4): a(f'v_mul_f32 v{O+e}, s{S_G}, v{Pr+e}')
        for s in range(1, 8):
            for e in range(4): a(f'v_fmac_f32 v{O+e}, s{S_G+s}, v{Pr+4*s+e}')
    if OPT['ov']:
        poll2(a, w_issue, 32, 64, 128, 8, w_post, V_T+1)
    else:
        lbl = a.label('wspin'); spin_begin(a, lbl); w_issue(64); a('s_waitcnt vmcnt(0)'); spin_end(a, lbl, list(range(64, 96)), V_T+1); w_post(64)
    stamp(a, 5)
    for e in range(4): bf16r(a, O+e, O+e)
    a('s_bfm_b64 exec, 48, 0', f'ds_write_b128 v{V_T+2}, v[{O}:{O+3}] offset:{L_OV}', 's_mov_b64 exec, -1')
    a(f'v_lshrrev_b32 v{V_T}, 5, v{V_LANE}', f'v_mul_u32_u24 v{V_T}, 24, v{V_T}', f'v_bfe_u32 v{V_T+1}, v{V_LANE}, 2, 3', f'v_add_lshl_u32 v{V_T}, v{V_T}, v{V_T+1}, 2',
      f'v_add_u32 v{V_T}, s{S_T2}, v{V_T}', 's_waitcnt lgkmcnt(0)')
    U = 112
    for p in range(12): a(f'ds_read_b32 v{U+p}, v{V_T} offset:{L_OV+4*(48*(p&3)+8*(p>>2))}')
    A = 160
    if OPT['pp']:
        a(f's_mov_b32 s{S_T3}, 0x07060302')
        for q in range(6):
            a(f's_waitcnt lgkmcnt({10-2*q})', f'v_perm_b32 v{U+12+(q&1)}, v{U+2*q+1}, v{U+2*q}, s{S_T3}')
            for i in range(4):
                c0 = '0' if q == 0 else f'v{A+2*i}'; c1 = '0' if q == 0 else f'v{A+2*i+1}'
                a(f'v_dot2_f32_bf16 v{A+2*i}, v{WGT+8*q+i}, v{U+12+(q&1)}, {c0}', f'v_dot2_f32_bf16 v{A+2*i+1}, v{WGT+8*q+4+i}, v{U+12+(q&1)}, {c1}')
    else:
      for p in range(12):
        a(f's_waitcnt lgkmcnt({11-p})', f'v_lshrrev_b32 v{U+12+(p&1)}, 16, v{U+p}')
        for i in range(4):
            c0 = '0' if p == 0 else f'v{A+2*i}'; c1 = '0' if p == 0 else f'v{A+2*i+1}'
            a(f'v_dot2_f32_bf16 v{A+2*i}, v{WGT+4*p+i}, v{U+12+(p&1)}, {c0}', f'v_dot2_f32_bf16 v{A+2*i+1}, v{WGT+4*p+i}, v{U+p}, {c1}')
    a('s_nop 2')
    for d in ('row_ror:4', 'row_ror:8'):
        for i in range(8): dpp(a, 'v_add_f32', A+i, d)
    swap_reduce(a, A, 4, 'v_permlane16_swap_b32')
    a(f'v_and_b32 v{V_T}, 3, v{V_LANE}', f'v_lshlrev_b32 v{V_T}, 5, v{V_T}', f'v_bfe_u32 v{V_T+1}, v{V_LANE}, 4, 1', f'v_lshl_add_u32 v{V_T}, v{V_T+1}, 4, v{V_T}',
      f'v_lshrrev_b32 v{V_T+1}, 5, v{V_LANE}', f'v_lshl_add_u32 v{V_T}, v{V_T+1}, 3, v{V_T}', f's_lshl_b32 s{S_T0}, s{S_WAVE}, 7', f'v_add_u32 v{V_T}, s{S_T0}, v{V_T}')
    swap_reduce(a, A, 2, 'v_permlane32_swap_b32')
    a(f'ds_write_b64 v{V_T}, v[{A}:{A+1}] offset:{L_B}', 's_waitcnt lgkmcnt(0)', 's_barrier')
    done = a.label('wd')
    a(f's_cmp_ge_u32 s{S_WAVE}, 1', f's_cbranch_scc1 {done}')
    a(f'v_and_b32 v{V_T}, 31, v0', f'v_lshlrev_b32 v{V_T}, 2, v{V_T}')
    for w in range(4): a(f'ds_read_b32 v{U+w}, v{V_T} offset:{L_B+128*w}')
    a(f's_and_b32 s{S_T0}, s2, 7', f's_mul_i32 s{S_T0}, s{S_T0}, 2560', f's_lshr_b32 s{S_T1}, s2, 3', f's_lshl_b32 s{S_T1}, s{S_T1}, 7',
      f's_add_u32 s{S_T0}, s{S_T0}, s{S_T1}', f's_add_u32 s{S_T0}, s{S_T0}, {HP}', 's_bfm_b64 exec, 32, 0', 's_waitcnt lgkmcnt(0)')
    a(f'v_add_f32 v{U}, v{U}, v{U+1}', f'v_add_f32 v{U+2}, v{U+2}, v{U+3}', f'v_add_f32 v{U}, v{U}, v{U+2}')
    for r in range(OPT['hr']):
        a(f'buffer_store_dword v{U}, v{V_T}, {WS}, s{S_T0} offen sc1')
        if r < OPT['hr']-1: a(f's_add_u32 s{S_T0}, s{S_T0}, {HPS}')
    a('s_mov_b64 exec, -1', f'{done}:')

H_HN, H_X = 70, 64
def phase_h(a):
    a(f's_mul_i32 s{S_T0}, s{S_WAVE}, 5120', f's_add_u32 s{S_T0}, s{S_T0}, {HP}', f"s_and_b32 s{S_T1}, s2, {OPT['hr']-1}", f's_mul_i32 s{S_T1}, s{S_T1}, {HPS}',
      f's_add_u32 s{S_T0}, s{S_T0}, s{S_T1}', f's_add_u32 s{S_T1}, s{S_T0}, 2560', f'v_lshlrev_b32 v{V_T}, 3, v{V_LANE}')
    a(f's_mul_i32 s{S_T2}, s{S_WAVE}, 2560', f'v_add_u32 v{V_T+2}, s{S_T2}, v{V_T}')
    unpack5(a, V_XW, H_HN)
    Q = 160
    def h_issue(P):
        for b in range(2):
            for j in range(5): a(f'buffer_load_dwordx2 v[{P+10*b+2*j}:{P+10*b+2*j+1}], v{V_T}, {WS}, s{S_T0+b} offen offset:{512*j} sc1')
    def h_post(P):
        for i in range(10): a(f'v_add_f32 v{Q+i}, v{P+i}, v{P+10+i}')
    if OPT['ov']:
        poll2(a, h_issue, 20, 80, 140, 10, h_post, V_T+1)
    else:
        lbl = a.label('hspin'); spin_begin(a, lbl); h_issue(80); a('s_waitcnt vmcnt(0)'); spin_end(a, lbl, list(range(80, 100)), V_T+1); h_post(80)
    stamp(a, 7)
    for j in range(5): a(f'ds_write_b64 v{V_T+2}, v[{Q+2*j}:{Q+2*j+1}] offset:{L_C+512*j}')
    a('s_waitcnt lgkmcnt(0)', 's_barrier')
    Rr = 100
    for w in range(4):
        for j in range(5): a(f'ds_read_b64 v[{Rr+10*w+2*j}:{Rr+10*w+2*j+1}], v{V_T} offset:{L_C+2560*w+512*j}')
    a(f's_mul_i32 s{S_T0}, s{S_WAVE}, 1280', f'v_lshlrev_b32 v{V_T}, 2, v{V_LANE}', f'v_add_u32 v{V_T}, s{S_T0}, v{V_T}', 's_waitcnt lgkmcnt(0)')
    for i in range(10): a(f'v_add_f32 v{Rr+i}, v{Rr+i}, v{Rr+10+i}', f'v_add_f32 v{Rr+20+i}, v{Rr+20+i}, v{Rr+30+i}')
    for i in range(10): a(f'v_add_f32 v{Rr+i}, v{Rr+i}, v{Rr+20+i}')
    for j in range(5):
        i = 2*j
        a(f'v_cvt_pk_bf16_f32 v{V_T+1}, v{Rr+i}, v{Rr+i+1}', f'v_lshlrev_b32 v{Rr+i}, 16, v{V_T+1}', f'v_and_b32 v{Rr+i+1}, 0xffff0000, v{V_T+1}',
          f'v_add_f32 v{H_HN+i}, v{H_HN+i}, v{Rr+i}', f'v_add_f32 v{H_HN+i+1}, v{H_HN+i+1}, v{Rr+i+1}', f'v_cvt_pk_bf16_f32 v{H_X+j}, v{H_HN+i}, v{H_HN+i+1}',
          f'v_lshlrev_b32 v{H_HN+i}, 16, v{H_X+j}', f'v_and_b32 v{H_HN+i+1}, 0xffff0000, v{H_X+j}')
        a(f'ds_write_b32 v{V_T}, v{H_X+j} offset:{L_H+256*j}')
    layernorm(a, H_HN, V_T+4)
    for j in range(5):
        a(f'v_cvt_pk_bf16_f32 v{H_X+j}, v{H_HN+2*j}, v{H_HN+2*j+1}', f'ds_write_b32 v{V_T}, v{H_X+j} offset:{L_XN+256*j}')

def phase_m(a):
    U, A = 80, 96
    a(f'v_and_b32 v{V_T}, 127, v0', f'v_lshrrev_b32 v{V_T}, 1, v{V_T}', f'v_lshlrev_b32 v{V_T}, 1, v{V_T}', f's_mul_i32 s{S_T0}, s{S_WAVE}, 1280', f'v_add_u32 v{V_T}, s{S_T0}, v{V_T}', 's_waitcnt vmcnt(0) lgkmcnt(0)')
    for p in range(10): a(f'ds_read_u16 v{U+p}, v{V_T} offset:{L_XN+128*p}')
    if OPT['pp']:
        for q in range(5):
            a(f's_waitcnt lgkmcnt({8-2*q})', f'v_lshl_or_b32 v{U+10+(q&1)}, v{U+2*q+1}, 16, v{U+2*q}')
            for i in range(4):
                c0 = '0' if q == 0 else f'v{A+2*i}'; c1 = '0' if q == 0 else f'v{A+2*i+1}'
                a(f'v_dot2_f32_bf16 v{A+2*i}, v{WGT+8*q+i}, v{U+10+(q&1)}, {c0}', f'v_dot2_f32_bf16 v{A+2*i+1}, v{WGT+8*q+4+i}, v{U+10+(q&1)}, {c1}')
    else:
      for p in range(10):
        a(f's_waitcnt lgkmcnt({9-p})', f'v_lshlrev_b32 v{U+10+(p&1)}, 16, v{U+p}')
        for i in range(4):
            c0 = '0' if p == 0 else f'v{A+2*i}'; c1 = '0' if p == 0 else f'v{A+2*i+1}'
            a(f'v_dot2_f32_bf16 v{A+2*i}, v{WGT+4*p+i}, v{U+p}, {c0}', f'v_dot2_f32_bf16 v{A+2*i+1}, v{WGT+4*p+i}, v{U+10+(p&1)}, {c1}')
    a('s_nop 2')
    for d in ('quad_perm:[2,3,0,1]', 'row_ror:4', 'row_ror:8'):
        for i in range(8): dpp(a, 'v_add_f32', A+i, d)
    swap_reduce(a, A, 4, 'v_permlane16_swap_b32')
    a(f'v_and_b32 v{V_T}, 1, v{V_LANE}', f'v_lshlrev_b32 v{V_T}, 5, v{V_T}', f'v_bfe_u32 v{V_T+1}, v{V_LANE}, 4, 1', f'v_lshl_add_u32 v{V_T}, v{V_T+1}, 4, v{V_T}',
      f'v_lshrrev_b32 v{V_T+1}, 5, v{V_LANE}', f'v_lshl_add_u32 v{V_T}, v{V_T+1}, 3, v{V_T}', f's_lshl_b32 s{S_T0}, s{S_WAVE}, 6', f'v_add_u32 v{V_T}, s{S_T0}, v{V_T}')
    swap_reduce(a, A, 2, 'v_permlane32_swap_b32')
    a(f'ds_write_b64 v{V_T}, v[{A}:{A+1}] offset:{L_D}', 's_waitcnt lgkmcnt(0)', 's_barrier')
    a(f'v_and_b32 v{V_T}, 15, v{V_LANE}', f'v_lshlrev_b32 v{V_T}, 2, v{V_T}')
    for k in range(4): a(f'ds_read_b32 v{U+k}, v{V_T} offset:{L_D+64*k}')
    a(f's_lshl_b32 s{S_T0}, s{S_WAVE}, 7', f'v_lshlrev_b32 v{V_T+1}, 2, v{V_LANE}', f'v_add_u32 v{V_T+1}, s{S_T0}, v{V_T+1}', 's_waitcnt lgkmcnt(0)')
    a(f'v_add_f32 v{U}, v{U}, v{U+1}', f'v_add_f32 v{U+2}, v{U+2}, v{U+3}')
    bf16r(a, U, U); bf16r(a, U+2, U+2)
    a(f'v_mul_f32 v{U+1}, s{S_LOG2E}, v{U}', f'v_sub_f32 v{U+1}, 0, v{U+1}', f'v_exp_f32 v{U+1}, v{U+1}', 's_nop 0', f'v_add_f32 v{U+1}, 1.0, v{U+1}', f'v_rcp_f32 v{U+1}, v{U+1}', 's_nop 0', f'v_mul_f32 v{U}, v{U}, v{U+1}')
    bf16r(a, U, U)
    a(f'v_mul_f32 v{U}, v{U}, v{U+2}')
    bf16r(a, U, U)
    a(f'v_cmp_gt_u32 vcc, 16, v{V_LANE}', 's_nop 1', f'v_cndmask_b32 v{U}, v{V_ZERO}, v{U}, vcc')
    a('s_bfm_b64 exec, 18, 0', f'ds_write_b32 v{V_T+1}, v{U} offset:{L_E}', 's_mov_b64 exec, -1')
    a(f'v_mul_u32_u24 v{V_T}, 205, v0', f'v_lshrrev_b32 v{V_T}, 14, v{V_T}', f'v_lshl_add_u32 v{V_T+1}, v{V_T}, 2, s{S_T0}', 's_waitcnt lgkmcnt(0)')
    for i in range(6): a(f'ds_read_b32 v{U+i}, v{V_T+1} offset:{L_E+12*i}')
    a(f'v_mul_u32_u24 v{V_T+2}, 80, v{V_T}', f'v_sub_u32 v{V_T+2}, v0, v{V_T+2}', f'v_lshlrev_b32 v{V_T+2}, 5, v{V_T+2}', f'v_mul_u32_u24 v{V_T}, 2560, v{V_T}', f'v_add_u32 v{V_T+2}, v{V_T+2}, v{V_T}')
    if OPT['pp']:
        a(f's_mov_b32 s{S_T3}, 0x07060302')
        for q in range(3):
            a(f's_waitcnt lgkmcnt({4-2*q})', f'v_perm_b32 v{U+6+(q&1)}, v{U+2*q+1}, v{U+2*q}, s{S_T3}')
            for e in range(4):
                c0 = '0' if q == 0 else f'v{A+2*e}'; c1 = '0' if q == 0 else f'v{A+2*e+1}'
                a(f'v_dot2_f32_bf16 v{A+2*e}, v{WGT+40+8*q+e}, v{U+6+(q&1)}, {c0}', f'v_dot2_f32_bf16 v{A+2*e+1}, v{WGT+40+8*q+4+e}, v{U+6+(q&1)}, {c1}')
    else:
      for i in range(6):
        a(f's_waitcnt lgkmcnt({5-i})', f'v_lshrrev_b32 v{U+6+(i&1)}, 16, v{U+i}')
        for e in range(4):
            c0 = '0' if i == 0 else f'v{A+2*e}'; c1 = '0' if i == 0 else f'v{A+2*e+1}'
            a(f'v_dot2_f32_bf16 v{A+2*e}, v{WGT+40+4*i+e}, v{U+6+(i&1)}, {c0}', f'v_dot2_f32_bf16 v{A+2*e+1}, v{WGT+40+4*i+e}, v{U+i}, {c1}')
    a('v_cmp_gt_u32 vcc, 240, v0', 's_and_saveexec_b64 s[34:35], vcc', 's_nop 1')
    a(f'ds_write_b128 v{V_T+2}, v[{A}:{A+3}] offset:{L_F}', f'ds_write_b128 v{V_T+2}, v[{A+4}:{A+7}] offset:{L_F+16}')
    a('s_mov_b64 exec, s[34:35]', 's_waitcnt lgkmcnt(0)', 's_barrier')
    done = a.label('md')
    a('v_cmp_gt_u32 vcc, 160, v0', 's_and_saveexec_b64 s[34:35], vcc', f's_cbranch_execz {done}', f'v_lshlrev_b32 v{V_T}, 4, v0')
    for g in range(3): a(f'ds_read_b128 v[{U+4*g}:{U+4*g+3}], v{V_T} offset:{L_F+2560*g}')
    a(f'v_lshrrev_b32 v{V_T}, 2, v0', f'v_mul_u32_u24 v{V_T}, 6144, v{V_T}', f'v_and_b32 v{V_T+1}, 3, v0', f'v_lshl_add_u32 v{V_T}, v{V_T+1}, 4, v{V_T}',
      f's_lshl_b32 s{S_T0}, s{S_M}, 6', f's_add_u32 s{S_T0}, s{S_T0}, {YP}', 's_waitcnt lgkmcnt(0)')
    for e in range(4): a(f'v_add_f32 v{U+e}, v{U+e}, v{U+4+e}')
    for e in range(4): a(f'v_add_f32 v{U+e}, v{U+e}, v{U+8+e}')
    a(f'buffer_store_dwordx4 v[{U}:{U+3}], v{V_T}, {WS}, s{S_T0} offen sc1')
    a(f'{done}:', 's_mov_b64 exec, s[34:35]')

def phase_f(a):
    U = 80
    a(f'v_dot2_f32_bf16 v{V_SIG}, v{H_X}, v{V_XW+5}, 0')
    for j in range(1, 5): a(f'v_dot2_f32_bf16 v{V_SIG}, v{H_X+j}, v{V_XW+5+j}, v{V_SIG}')
    a(f's_mul_i32 s{S_T0}, s{S_M}, 6144', f's_add_u32 s{S_T0}, s{S_T0}, {YP}', f's_add_u32 s{S_T1}, s{S_T0}, 4096', f'v_lshlrev_b32 v{V_T}, 3, v0')
    wave_red(a, [V_SIG], [V_T+1])
    bf16r(a, V_SIG, V_SIG)
    a(f'v_mul_f32 v{V_SIG}, s{S_LOG2E}, v{V_SIG}', f'v_sub_f32 v{V_SIG}, 0, v{V_SIG}', f'v_exp_f32 v{V_SIG}, v{V_SIG}', 's_nop 0',
      f'v_add_f32 v{V_SIG}, 1.0, v{V_SIG}', f'v_rcp_f32 v{V_SIG}, v{V_SIG}', 's_nop 0')
    bf16r(a, V_SIG, V_SIG)
    a(f'v_and_b32 v{V_T+2}, 15, v0', f's_lshl_b32 s{S_T2}, s{S_M}, 4', f'v_add_u32 v{V_T+2}, s{S_T2}, v{V_T+2}', f'v_lshlrev_b32 v{V_T+2}, 1, v{V_T+2}')
    HH = 126
    a(f'ds_read_u16 v{HH}, v{V_T+2} offset:{L_H}', f'ds_read_u16 v{HH+1}, v{V_T+2} offset:{L_XN}')
    srd(a, SRD_A, P_OUT, 1280)
    Y = 100
    def f_issue(P):
        a(f'buffer_load_dwordx2 v[{P}:{P+1}], v{V_T}, {WS}, s{S_T0} offen sc1', f'buffer_load_dwordx2 v[{P+2}:{P+3}], v{V_T}, {WS}, s{S_T0} offen offset:2048 sc1',
          f'buffer_load_dwordx2 v[{P+4}:{P+5}], v{V_T}, {WS}, s{S_T1} offen sc1')
    def f_post(P):
        a(f'v_add_f32 v{Y}, v{P}, v{P+2}', f'v_add_f32 v{Y+1}, v{P+1}, v{P+3}', f'v_add_f32 v{Y}, v{Y}, v{P+4}', f'v_add_f32 v{Y+1}, v{Y+1}, v{P+5}')
    if OPT['ov']:
        poll2(a, f_issue, 6, 80, 88, 3, f_post, V_T+1)
    else:
        lbl = a.label('fspin'); spin_begin(a, lbl); f_issue(80); a('s_waitcnt vmcnt(0)'); spin_end(a, lbl, list(range(80, 86)), V_T+1); f_post(80)
    stamp(a, 10)
    a('s_nop 1'); dpp(a, 'v_add_f32', Y, 'row_ror:8'); dpp(a, 'v_add_f32', Y+1, 'row_ror:8')
    swap_reduce(a, Y, 1, 'v_permlane16_swap_b32')
    a(f'v_mov_b32 v{Y+1}, v{Y}', f'v_and_b32 v{V_T}, 7, v{V_LANE}', f'v_lshlrev_b32 v{V_T}, 3, v{V_T}', f'v_bfe_u32 v{V_T+1}, v{V_LANE}, 4, 1', f'v_lshl_add_u32 v{V_T}, v{V_T+1}, 2, v{V_T}',
      f's_lshl_b32 s{S_T0}, s{S_WAVE}, 6', f'v_add_u32 v{V_T}, s{S_T0}, v{V_T}')
    a(f'v_permlane32_swap_b32 v{Y}, v{Y+1}', 's_nop 0', f'v_add_f32 v{Y}, v{Y}, v{Y+1}')
    a(f'ds_write_b32 v{V_T}, v{Y} offset:{L_G}', 's_waitcnt lgkmcnt(0)', 's_barrier')
    done = a.label('fd')
    a(f's_cmp_ge_u32 s{S_WAVE}, 1', f's_cbranch_scc1 {done}')
    a(f'v_and_b32 v{V_T}, 15, v0', f'v_lshlrev_b32 v{V_T}, 2, v{V_T}')
    U = 104
    for w in range(4): a(f'ds_read_b32 v{U+w}, v{V_T} offset:{L_G+64*w}')
    a(f'v_lshlrev_b32 v{U+16}, 16, v{HH}', f'v_lshlrev_b32 v{U+17}, 16, v{HH+1}', 's_bfm_b64 exec, 16, 0', 's_waitcnt lgkmcnt(0)')
    a(f'v_add_f32 v{U}, v{U}, v{U+1}', f'v_add_f32 v{U+2}, v{U+2}, v{U+3}', f'v_add_f32 v{U}, v{U}, v{U+2}')
    bf16r(a, U, U)
    a(f'v_mul_f32 v{U}, v{U}, v{V_SIG}')
    bf16r(a, U, U)
    a(f'v_add_f32 v{U}, v{U+17}, v{U}')
    bf16r(a, U, U)
    a(f'v_add_f32 v{U}, v{U+16}, v{U}', f'v_cvt_pk_bf16_f32 v{U}, v{U}, v{U}')
    a(f'buffer_store_short v{U}, v{V_T+2}, {R(SRD_A)}, 0 offen', 's_mov_b64 exec, -1', f'{done}:')

def build():
    a = Asm()
    name = NAME_BASE + '_kernel'
    hdr = header([f'; @launch grid=(256,1,1) block=(256,1,1) lds={LDS_BYTES}'])
    a('.amdgcn_target "amdgcn-amd-amdhsa--gfx950"', '.text')
    end = a.label('end')
    a(f'.globl {name}', '.p2align 8', f'.type {name},@function', f'{name}:', 'L_code_start:')
    prologue(a, end)
    stamp(a, 0); dstamp(a, 4, True)
    startup(a)
    stream(a)
    stamp(a, 3); dstamp(a, 7)
    a('L_tail_start:')
    phase_t1(a)
    stamp(a, 4)
    rm = a.label('rolem'); fin = a.label('fin')
    a('s_cmp_ge_u32 s2, 160', f's_cbranch_scc1 {rm}')
    phase_w(a); stamp(a, 6)
    a(f's_branch {fin}', f'{rm}:')
    phase_h(a); stamp(a, 8)
    phase_m(a); stamp(a, 9)
    a(f's_cmp_ge_u32 s{S_M}, 40', f's_cbranch_scc1 {fin}')
    phase_f(a); stamp(a, 11)
    a(f'{fin}:', 's_waitcnt vmcnt(0) lgkmcnt(0)')
    stamp(a, 15); dstamp(a, 5)
    a('s_waitcnt vmcnt(0)')
    a(f'{end}:', 's_endpgm', 'L_code_end:')
    a('.section .rodata,"a"', '.p2align 6')
    a.lines.append(kernel_desc(name, 256, 102))
    return '\n'.join(hdr) + '\n' + a.text()

if __name__ == '__main__':
    for x in sys.argv[1:]:
        if x == 'stamp': OPT['stamp'] = 1
        elif '=' in x:
            k, v = x.split('='); assert k in OPT, k; OPT[k] = int(v)
    sys.stdout.write(build())
```

```python
import sys, struct
from asmlib import *

def f2u(x): return struct.unpack('<I', struct.pack('<f', x))[0]
SCALE = f2u(192 ** -0.5); LOG2E = f2u(1.4426950408889634); INV640 = f2u(1.0/640); EPS = f2u(1e-5); NEGBIG = f2u(-3.0e38)
KV_BYTES = 402653184; HEAD_BYTES = 12582912
CNT, OP, HP, YP, EPOCH, TS, QP2, WS_USED = 0x40000, 0x50000, 0x180000, 0xA0000, 0xE8000, 0xF0000, 0x100000, 0x240000
HPS = 20480 + 256
SC = 0x1B0000
L_RED = 0
L_A, L_B, L_C, L_D, L_E, L_F, L_G = 0, 3072, 4096, 14336, 14592, 15104, 3072
L_XN = 24576
L_H = 29696
L_SM = 34816
L_OV = 35840
L_SC = 38912
LDS_BYTES = 38912 + 16384
S_WAVE = 3
SRD_K, SRD_V, SRD_WS, SRD_A, SRD_B = 8, 12, 16, 20, 24
S_HEAD, S_MEM, S_SCALE, S_LOG2E = 28, 29, 30, 31
S_T0, S_T1, S_T2, S_T3 = 32, 33, 34, 35
P_X, P_K, P_V, P_WQ, P_WO, P_BX, P_WR, P_WG = 36, 38, 40, 42, 44, 46, 48, 50
P_WU, P_WD, P_OUT, P_DBG, P_WS = 52, 54, 56, 58, 60
S_OFF, S_HB, S_CNT, S_NX, S_SPIN, S_M = 62, 63, 64, 65, 66, 67
S_G = 68
S_ROT, S_TAG, S_K, S_SU = 76, 77, 78, 79
S_ROW = 86
S_SCB, S_SCB0 = 71, 69
S_DST = 72
S_MASK = 74
V_SC = 112
V_G8 = 164
V_SCA = 165
SRD_C, SRD_D, SRD_E = 88, 92, 96
V_LANE, V_OFFB, V_ZERO = 1, 2, 3
V_Q, V_ACC, V_M, V_L, V_T = 4, 16, 40, 41, 42
V_ATOM, V_SIG, V_E, V_DBG = 56, 57, 58, 59
V_CPF = 168
V_RING = 64
PF = 116
WGT = 192
V_XW = 176
WS = f's[{SRD_WS}:{SRD_WS+3}]'
OPT = dict(P=0, NS1=60, NS=60, hrot=27, cpf=1, cpf2=1, stamp=0, stampw=0, wmode=1, qov=1, npre=4, ov=0, fast=1, wsplit=6, dstamp=0, hr=1, pp=1)

def srd(a, reg, ptr, size):
    a(f's_mov_b32 s{reg}, s{ptr}', f's_and_b32 s{reg+1}, s{ptr+1}, 0xffff', f's_mov_b32 s{reg+2}, {size}', f's_mov_b32 s{reg+3}, 0x20000')
def R(a_): return f's[{a_}:{a_+3}]'
def stamp(a, slot):
    if not OPT['stamp']: return
    sk = a.label('ts')
    a(f"s_cmp_lg_u32 s{S_WAVE}, {OPT['stampw']}", f's_cbranch_scc1 {sk}')
    a('s_memrealtime s[80:81]', 's_waitcnt lgkmcnt(0)')
    a(f's_lshl_b32 s82, s2, 7', f's_add_u32 s82, s82, {TS + slot*8}')
    a('v_mov_b32 v62, s80', 'v_mov_b32 v63, s81', 's_mov_b64 s[84:85], exec', 's_mov_b64 exec, 1')
    a(f'buffer_store_dwordx2 v[62:63], v{V_ZERO}, {WS}, s82 offen')
    a('s_mov_b64 exec, s[84:85]', 's_nop 1')
    a(f'{sk}:')
def dstamp(a, word, neg=False):
    if not OPT['dstamp']: return
    sk = a.label('ds')
    a(f's_cmp_lg_u32 s{S_WAVE}, 0', f's_cbranch_scc1 {sk}')
    a('s_memrealtime s[80:81]', 's_waitcnt lgkmcnt(0)')
    if neg: a('s_not_b32 s80, s80')
    a(f's_mov_b32 s84, s{P_DBG}', f's_and_b32 s85, s{P_DBG+1}, 0xffff')
    a('v_mov_b32 v62, s80', f'v_mov_b32 v63, {4*word}', 's_mov_b64 s[82:83], exec', 's_mov_b64 exec, 1')
    a(f'global_atomic_umax v63, v62, s[84:85]')
    a('s_mov_b64 exec, s[82:83]', 's_nop 1')
    a(f'{sk}:')
def bf16r(a, dst, src):
    a(f'v_cvt_pk_bf16_f32 v{dst}, v{src}, v{src}', f'v_and_b32 v{dst}, 0xffff0000, v{dst}')
def dpp(a, ins, v, d): a(f'{ins}_dpp v{v}, v{v}, v{v} {d} row_mask:0xf bank_mask:0xf')
def wave_red(a, vs, ts, op='v_add_f32'):
    pad = max(0, 2 - (len(vs) - 1))
    for d in ('quad_perm:[1,0,3,2]', 'quad_perm:[2,3,0,1]', 'row_half_mirror', 'row_mirror'):
        a('s_nop 1')
        for v in vs: dpp(a, op, v, d)
    for p in ('v_permlane16_swap_b32', 'v_permlane32_swap_b32'):
        for v, t in zip(vs, ts): a(f'v_mov_b32 v{t}, v{v}')
        a('s_nop 1')
        for v, t in zip(vs, ts): a(f'{p} v{t}, v{v}')
        a('s_nop 0')
        for v, t in zip(vs, ts): a(f'{op} v{v}, v{v}, v{t}')
def groups_red(a, v, t, op):
    a('s_nop 1'); dpp(a, op, v, 'row_ror:8')
    for p in ('v_permlane16_swap_b32', 'v_permlane32_swap_b32'):
        a(f'v_mov_b32 v{t}, v{v}', 's_nop 1', f'{p} v{t}, v{v}', 's_nop 0', f'{op} v{v}, v{v}, v{t}')
def swap_reduce(a, base, n, p):
    a('s_nop 1')
    for i in range(n): a(f'{p} v{base+i}, v{base+n+i}')
    a('s_nop 0')
    for i in range(n): a(f'v_add_f32 v{base+i}, v{base+i}, v{base+n+i}')
def unpack5(a, src, dst):
    for j in range(5): a(f'v_lshlrev_b32 v{dst+2*j}, 16, v{src+j}', f'v_and_b32 v{dst+2*j+1}, 0xffff0000, v{src+j}')
def layernorm(a, x, t):
    s1, s2, u, w2, sd, mean = t, t+1, t+2, t+3, t+4, t+5
    a('s_nop 0', f'v_readfirstlane_b32 s{S_T0}, v{x}', 's_nop 1')
    a(f'v_subrev_f32 v{s1}, s{S_T0}, v{x}', f'v_mul_f32 v{s2}, v{s1}, v{s1}')
    for i in range(1, 10):
        a(f'v_subrev_f32 v{u}, s{S_T0}, v{x+i}', f'v_add_f32 v{s1}, v{s1}, v{u}', f'v_fmac_f32 v{s2}, v{u}, v{u}')
    wave_red(a, [s1, s2], [u, w2])
    a(f'v_mul_f32 v{s1}, 0x{INV640:08x}, v{s1}', f'v_mul_f32 v{s2}, 0x{INV640:08x}, v{s2}')
    a(f'v_fma_f32 v{s2}, -v{s1}, v{s1}, v{s2}', f'v_max_f32 v{s2}, 0, v{s2}')
    a(f'v_add_f32 v{mean}, s{S_T0}, v{s1}')
    bf16r(a, s2, s2)
    a(f'v_add_f32 v{s2}, 0x{EPS:08x}, v{s2}')
    bf16r(a, s2, s2)
    a(f'v_sqrt_f32 v{sd}, v{s2}')
    bf16r(a, mean, mean)
    bf16r(a, sd, sd)
    a(f'v_rcp_f32 v{sd}, v{sd}')
    for i in range(0, 10, 2):
        a(f'v_sub_f32 v{x+i}, v{x+i}, v{mean}', f'v_sub_f32 v{x+i+1}, v{x+i+1}, v{mean}', f'v_cvt_pk_bf16_f32 v{u}, v{x+i}, v{x+i+1}',
          f'v_lshlrev_b32 v{x+i}, 16, v{u}', f'v_and_b32 v{x+i+1}, 0xffff0000, v{u}', f'v_mul_f32 v{x+i}, v{x+i}, v{sd}', f'v_mul_f32 v{x+i+1}, v{x+i+1}, v{sd}')
def pv_unit(a, vreg, plo, phi):
    for j in range(3):
        for i in range(4):
            a(f'v_dot2_f32_bf16 v{V_ACC+8*j+2*i}, v{vreg+4*j+i}, v{plo}, v{V_ACC+8*j+2*i}')
            a(f'v_dot2_f32_bf16 v{V_ACC+8*j+2*i+1}, v{vreg+4*j+i}, v{phi}, v{V_ACC+8*j+2*i+1}')
def acc_reduce_write(a, lbase, t):
    a('s_nop 2')
    for i in range(24): dpp(a, 'v_add_f32', V_ACC+i, 'row_ror:8')
    swap_reduce(a, V_ACC, 12, 'v_permlane16_swap_b32')
    a(f'v_and_b32 v{t}, 7, v{V_LANE}', f'v_mul_u32_u24 v{t}, 96, v{t}', f'v_bfe_u32 v{t+1}, v{V_LANE}, 4, 1', f'v_mul_u32_u24 v{t+1}, 48, v{t+1}', f'v_add_u32 v{t}, v{t}, v{t+1}',
      f'v_lshrrev_b32 v{t+1}, 5, v{V_LANE}', f'v_mul_u32_u24 v{t+1}, 24, v{t+1}', f's_mul_i32 s{S_T0}, s{S_WAVE}, 768', f'v_add3_u32 v{t}, v{t}, v{t+1}, s{S_T0}')
    swap_reduce(a, V_ACC, 6, 'v_permlane32_swap_b32')
    for i in range(3): a(f'ds_write_b64 v{t}, v[{V_ACC+2*i}:{V_ACC+2*i+1}] offset:{lbase+8*i}')
def m_index(a):
    a(f's_sub_u32 s{S_T0}, s2, 160', f's_and_b32 s{S_T1}, s{S_T0}, 7', f's_mul_i32 s{S_T1}, s{S_T1}, 12', f's_lshr_b32 s{S_T0}, s{S_T0}, 3', f's_add_u32 s{S_M}, s{S_T0}, s{S_T1}')
def role_branch(a, wbody, mbody):
    lm = a.label('rm'); le = a.label('re')
    a('s_cmp_ge_u32 s2, 160', f's_cbranch_scc1 {lm}'); wbody(); a(f's_branch {le}', f'{lm}:'); mbody(); a(f'{le}:')
def spin_begin(a, lbl): a(f's_mov_b32 s{S_SPIN}, 0', f'{lbl}:')
def spin_end(a, lbl, regs, t):
    ok = a.label('ok')
    a(f'v_max3_u32 v{t}, v{regs[0]}, v{regs[1]}, v{regs[2]}'); rest = regs[3:]
    while len(rest) >= 2:
        a(f'v_max3_u32 v{t}, v{t}, v{rest[0]}, v{rest[1]}'); rest = rest[2:]
    if rest: a(f'v_max_u32 v{t}, v{t}, v{rest[0]}')
    a(f'v_cmp_eq_u32 vcc, -1, v{t}', f's_cbranch_vccz {ok}')
    a(f's_add_u32 s{S_SPIN}, s{S_SPIN}, 1', f's_cmp_lt_u32 s{S_SPIN}, 200000', f's_cbranch_scc1 {lbl}')
    a(f'{ok}:')
def sent_check(a, regs, t):
    a(f'v_max3_u32 v{t}, v{regs[0]}, v{regs[1]}, v{regs[2]}'); rest = regs[3:]
    while len(rest) >= 2:
        a(f'v_max3_u32 v{t}, v{t}, v{rest[0]}, v{rest[1]}'); rest = rest[2:]
    if rest: a(f'v_max_u32 v{t}, v{t}, v{rest[0]}')
    a(f'v_cmp_eq_u32 vcc, -1, v{t}')
def poll2(a, issue_fn, nregs, baseA, baseB, nloads, post, t):
    lbl = a.label('spin'); okA = a.label('okA'); okB = a.label('okB'); join = a.label('join')
    a(f's_mov_b32 s{S_SPIN}, 0')
    issue_fn(baseA)
    a(f'{lbl}:')
    issue_fn(baseB)
    a(f's_waitcnt vmcnt({nloads})'); sent_check(a, list(range(baseA, baseA+nregs)), t); a(f's_cbranch_vccz {okA}')
    issue_fn(baseA)
    a(f's_waitcnt vmcnt({nloads})'); sent_check(a, list(range(baseB, baseB+nregs)), t); a(f's_cbranch_vccz {okB}')
    a(f's_add_u32 s{S_SPIN}, s{S_SPIN}, 1', f's_cmp_lt_u32 s{S_SPIN}, 100000', f's_cbranch_scc1 {lbl}', f's_branch {okA}')
    a(f'{okB}:'); post(baseB); a(f's_branch {join}')
    a(f'{okA}:'); post(baseA)
    a(f'{join}:')
def code_prefetch(a, start, end, n, vtmp):
    pc = a.label('pc')
    a(f's_getpc_b64 s[{SRD_C}:{SRD_C+1}]', f'{pc}:')
    if start == 'L_code_start': a(f's_sub_u32 s{SRD_C}, s{SRD_C}, {pc}-{start}', f's_subb_u32 s{SRD_C+1}, s{SRD_C+1}, 0')
    else: a(f's_add_u32 s{SRD_C}, s{SRD_C}, {start}-{pc}', f's_addc_u32 s{SRD_C+1}, s{SRD_C+1}, 0')
    a(f's_and_b32 s{SRD_C+1}, s{SRD_C+1}, 0xffff', f's_mov_b32 s{SRD_C+2}, {end}-{start}', f's_mov_b32 s{SRD_C+3}, 0x20000')
    a(f's_lshr_b32 s{S_T0}, s2, 3', f's_mul_i32 s{S_T0}, s{S_T0}, ((({end}-{start})+31)/32+15)&0xfffffff0')
    a(f'v_lshlrev_b32 v{vtmp}, 4, v{V_LANE}')
    for i in range(n): a(f'buffer_load_dwordx4 v[{V_CPF}:{V_CPF+3}], v{vtmp}, {R(SRD_C)}, s{S_T0} offen offset:{1024*i}')

def prologue(a, endlabel):
    a('s_cmp_ge_u32 s2, 256', f's_cbranch_scc1 {endlabel}')
    a('s_load_dwordx16 s[36:51], s[0:1], 0', 's_load_dwordx8 s[52:59], s[0:1], 64', 's_load_dwordx2 s[60:61], s[0:1], 96')
    a(f'v_lshrrev_b32 v{V_LANE}, 6, v0', f'v_mov_b32 v{V_ZERO}, 0', f'v_readfirstlane_b32 s{S_WAVE}, v{V_LANE}', f'v_and_b32 v{V_LANE}, 63, v0')
    a(f'v_lshrrev_b32 v{V_T}, 3, v{V_LANE}', f'v_mul_u32_u24 v{V_T}, 384, v{V_T}', f'v_and_b32 v{V_T+1}, 7, v{V_LANE}', f'v_lshl_add_u32 v{V_OFFB}, v{V_T+1}, 4, v{V_T}')
    a(f's_mov_b32 s{S_SCALE}, 0x{SCALE:08x}', f's_mov_b32 s{S_LOG2E}, 0x{LOG2E:08x}')
    a(f's_lshr_b32 s{S_T0}, s2, 3', f's_and_b32 s{S_MEM}, s2, 7', f's_lshl_b32 s{S_T1}, s{S_MEM}, 2', f's_add_u32 s{S_T0}, s{S_T0}, s{S_T1}', f's_and_b32 s{S_HEAD}, s{S_T0}, 31')
    a(f's_lshl_b32 s{S_ROW}, s{S_HEAD}, 3', f's_add_u32 s{S_ROW}, s{S_ROW}, s{S_MEM}')
    a('s_waitcnt lgkmcnt(0)')
    srd(a, SRD_WS, P_WS, WS_USED)
    for r in (SRD_C, SRD_D, SRD_E): srd(a, r, P_WS, WS_USED)

V_PA, V_PB, S_PA, S_PB, S_PRE = 48, 49, 87, 100, 101
def w_setup(a):
    srd(a, SRD_C, P_WO, 7864320)
    a(f's_and_b32 s{S_T0}, s2, 7', f's_mul_i32 s{S_T0}, s{S_T0}, 768', f's_mul_i32 s{S_T1}, s{S_WAVE}, 192', f's_add_u32 s{S_T0}, s{S_T0}, s{S_T1}',
      f's_mul_i32 s{S_T0}, s{S_T0}, 1280', f's_lshr_b32 s{S_T1}, s2, 3', f's_lshl_b32 s{S_T1}, s{S_T1}, 6', f's_add_u32 s{S_PA}, s{S_T0}, s{S_T1}')
    a(f'v_lshrrev_b32 v{V_PA}, 2, v{V_LANE}', f'v_mul_u32_u24 v{V_PA}, 1280, v{V_PA}', f'v_and_b32 v{V_PB}, 3, v{V_LANE}', f'v_lshl_add_u32 v{V_PA}, v{V_PB}, 4, v{V_PA}')
def w_loads():
    return [f'buffer_load_dwordx4 v[{WGT+4*p}:{WGT+4*p+3}], v{V_PA}, {R(SRD_C)}, s{S_PA} offen nt\ns_add_u32 s{S_PA}, s{S_PA}, {16*1280}' for p in range(12)]
def m_setup(a):
    a(f's_cmp_ge_u32 s{S_WAVE}, 2', f's_cselect_b32 s{S_T0}, s{P_WU}, s{P_WG}', f's_cselect_b32 s{S_T1}, s{P_WU+1}, s{P_WG+1}')
    srd(a, SRD_C, S_T0, 1966080); srd(a, SRD_D, P_WD, 1966080)
    a(f'v_and_b32 v{V_PB}, 127, v0', f'v_lshrrev_b32 v{V_PA}, 1, v{V_PB}', f'v_mul_u32_u24 v{V_PA}, 3072, v{V_PA}', f'v_and_b32 v{V_PB}, 1, v{V_PB}', f'v_lshl_add_u32 v{V_PA}, v{V_PB}, 4, v{V_PA}')
    a(f's_lshl_b32 s{S_PA}, s{S_M}, 5')
    a(f'v_mul_u32_u24 v{V_PB}, 205, v0', f'v_lshrrev_b32 v{V_PB}, 14, v{V_PB}', f'v_mul_u32_u24 v50, 80, v{V_PB}', f'v_sub_u32 v50, v0, v50',
      f'v_mul_u32_u24 v{V_PB}, 1280, v{V_PB}', f'v_lshl_add_u32 v{V_PB}, v50, 4, v{V_PB}', f's_mul_i32 s{S_PB}, s{S_M}, {16*1280}')
def m_loads():
    l = [f'buffer_load_dwordx4 v[{WGT+4*p}:{WGT+4*p+3}], v{V_PA}, {R(SRD_C)}, s{S_PA} offen nt\ns_add_u32 s{S_PA}, s{S_PA}, {64*3072}' for p in range(10)]
    l += [f'buffer_load_dwordx4 v[{WGT+40+4*i}:{WGT+40+4*i+3}], v{V_PB}, {R(SRD_D)}, s{S_PB} offen nt\ns_add_u32 s{S_PB}, s{S_PB}, 3840' for i in range(6)]
    return l
def w_weights(a):
    w_setup(a)
    for l in w_loads(): a(l)
def m_weights(a):
    m_setup(a)
    for l in m_loads(): a(l)
NW_W, NW_M = 12, 16

def setoff(a):
    a(f's_add_u32 s{S_OFF}, s{S_NX}, s{S_ROT}', f's_and_b32 s{S_OFF}, s{S_OFF}, 2047', f's_mul_i32 s{S_OFF}, s{S_OFF}, 6144', f's_add_u32 s{S_OFF}, s{S_OFF}, s{S_HB}')
def issue(a, r, srd_=None):
    srd_ = SRD_K if srd_ is None else srd_
    for j in range(6): a(f'buffer_load_dwordx4 v[{r+4*j}:{r+4*j+3}], v{V_OFFB}, {R(srd_)}, s{S_OFF} offen offset:{128*(j%3)+3072*(j//3)} nt')
def atomic(a):
    a(f'v_mov_b32 v{V_ATOM}, 1', 's_mov_b64 exec, 1', f'buffer_atomic_add v{V_ATOM}, v{V_ZERO}, {WS}, s{S_CNT} offen sc0', 's_mov_b64 exec, -1')
def static_next(a):
    a(f's_mov_b32 s{S_NX}, s{S_SU}', f's_add_u32 s{S_SU}, s{S_SU}, 32', f's_add_u32 s{S_K}, s{S_K}, 1')
def scores(a, r):
    ta = (V_T, V_T+2, V_T+3); tb = (V_T+1, V_T+4, V_T+5)
    for i in range(4):
        for u, ts in ((0, ta), (1, tb)):
            for j, t in enumerate(ts):
                c = '0' if i == 0 else f'v{t}'
                a(f'v_dot2_f32_bf16 v{t}, v{r+12*u+4*j+i}, v{V_Q+4*j+i}, {c}')
    a('s_nop 1')
    a(f'v_add_f32 v{ta[0]}, v{ta[0]}, v{ta[1]}', f'v_add_f32 v{tb[0]}, v{tb[0]}, v{tb[1]}', f'v_add_f32 v{ta[0]}, v{ta[0]}, v{ta[2]}', f'v_add_f32 v{tb[0]}, v{tb[0]}, v{tb[2]}')
    for d in ('quad_perm:[1,0,3,2]', 'quad_perm:[2,3,0,1]', 'row_half_mirror'):
        a('s_nop 0'); dpp(a, 'v_add_f32', V_T, d); dpp(a, 'v_add_f32', V_T+1, d)
    a(f'v_cvt_pk_bf16_f32 v{V_T+2}, v{V_T}, v{V_T+1}', f'v_lshlrev_b32 v{V_T}, 16, v{V_T+2}', f'v_and_b32 v{V_T+1}, 0xffff0000, v{V_T+2}',
      f'v_mul_f32 v{V_T}, s{S_SCALE}, v{V_T}', f'v_mul_f32 v{V_T+1}, s{S_SCALE}, v{V_T+1}',
      f'v_cvt_pk_bf16_f32 v{V_T+2}, v{V_T}, v{V_T+1}', f'v_lshlrev_b32 v{V_T}, 16, v{V_T+2}', f'v_and_b32 v{V_T+1}, 0xffff0000, v{V_T+2}')
def k_step(a, slot, base=None):
    scores(a, V_RING + 24*slot if base is None else base)
    dy = a.label('kd'); jn = a.label('kj')
    a(f's_cmp_lt_i32 s{S_DST+slot}, 0', f's_mov_b64 exec, s[{S_MASK}:{S_MASK+1}]', f's_cbranch_scc1 {dy}')
    a(f'v_add_u32 v{V_T+2}, s{S_DST+slot}, v{V_SCA}', f'ds_write_b64 v{V_T+2}, v[{V_T}:{V_T+1}] offset:{L_SC}', f's_branch {jn}')
    a(f'{dy}:', f's_and_b32 s{S_T0}, s{S_DST+slot}, 0x7fffffff', f'buffer_store_dwordx2 v[{V_T}:{V_T+1}], v{V_G8}, {WS}, s{S_T0} offen sc1', f'{jn}:')
    a('s_mov_b64 exec, -1')
def v_step(a, slot):
    r = V_RING + 24*slot; sa, sb = V_SC+2*slot, V_SC+2*slot+1
    t1, t2, t3, t4 = V_T, V_T+2, V_T+3, V_T+4
    a(f'v_max3_f32 v{t1}, v{V_M}, v{sa}, v{sb}', f'v_sub_f32 v{t2}, v{V_M}, v{t1}', f'v_sub_f32 v{t3}, v{sa}, v{t1}', f'v_sub_f32 v{t4}, v{sb}, v{t1}',
      f'v_mul_f32 v{t2}, s{S_LOG2E}, v{t2}', f'v_mul_f32 v{t3}, s{S_LOG2E}, v{t3}', f'v_mul_f32 v{t4}, s{S_LOG2E}, v{t4}',
      f'v_exp_f32 v{t2}, v{t2}', f'v_exp_f32 v{t3}, v{t3}', f'v_exp_f32 v{t4}, v{t4}', f'v_mov_b32 v{V_M}, v{t1}',
      f'v_fma_f32 v{V_L}, v{V_L}, v{t2}, v{t3}', f'v_cvt_pk_bf16_f32 v{t1}, v{t3}, 0', f'v_cvt_pk_bf16_f32 v{t1+1}, 0, v{t3}',
      f'v_add_f32 v{V_L}, v{V_L}, v{t4}', f'v_cvt_pk_bf16_f32 v{t4+1}, v{t4}, 0', f'v_cvt_pk_bf16_f32 v{t4}, 0, v{t4}')
    for i in range(12):
        a(f'v_pk_mul_f32 v[{V_ACC+2*i}:{V_ACC+2*i+1}], v[{V_ACC+2*i}:{V_ACC+2*i+1}], v[{t2}:{t2+1}] op_sel_hi:[1,0]')
    pv_unit(a, r, t1, t1+1)
    pv_unit(a, r+12, t4+1, t4)

def startup(a):
    P = OPT['P']; NC = 2 if OPT['cpf'] else 0
    X, XF, W = 64, 70, 80
    srd(a, SRD_A, P_X, 1280); srd(a, SRD_B, P_WQ, 7864320)
    a(f'v_lshlrev_b32 v{V_T}, 2, v{V_LANE}', f's_mov_b32 s{S_T0}, {EPOCH}')
    a(f'buffer_load_dword v{V_E}, v{V_ZERO}, {WS}, s{S_T0} offen sc1')
    for j in range(5): a(f'buffer_load_dword v{X+j}, v{V_T}, {R(SRD_A)}, 0 offen offset:{256*j}')
    a(f'v_lshrrev_b32 v{V_T+1}, 3, v{V_LANE}', f'v_mul_u32_u24 v{V_T+1}, 12288, v{V_T+1}', f'v_and_b32 v{V_T+2}, 7, v{V_LANE}', f'v_lshl_add_u32 v{V_T+1}, v{V_T+2}, 4, v{V_T+1}')
    a(f's_mul_i32 s70, s{S_MEM}, 80', f's_lshl_b32 s{S_T1}, s{S_WAVE}, 3', f's_add_u32 s70, s70, s{S_T1}',
      f's_mul_i32 s{S_T1}, s70, 12288', f's_mul_i32 s{S_T2}, s{S_HEAD}, 384', f's_add_u32 s{S_T1}, s{S_T1}, s{S_T2}')
    third = a.label('q3')
    for u in range(3):
        if u == 2: a(f's_cmp_ge_u32 s{S_WAVE}, 2', f's_cbranch_scc1 {third}')
        for j in range(3): a(f'buffer_load_dwordx4 v[{W+12*u+4*j}:{W+12*u+4*j+3}], v{V_T+1}, {R(SRD_B)}, s{S_T1} offen offset:{128*j} nt')
        a(f's_add_u32 s{S_T1}, s{S_T1}, {32*12288}')
    a(f'{third}:')
    srd(a, SRD_K, P_K, KV_BYTES); srd(a, SRD_V, P_V, KV_BYTES)
    for i in range(4): a(f'v_mov_b32 v{V_T+2+i}, -1')
    a(f's_lshl_b32 s{S_T0}, s{S_ROW}, 10', f's_add_u32 s{S_T0}, s{S_T0}, {OP}', f'v_lshlrev_b32 v{V_T}, 2, v0')
    a(f'buffer_store_dword v{V_T+2}, v{V_T}, {WS}, s{S_T0} offen sc1')
    a(f's_lshl_b32 s{S_T0}, s{S_ROW}, 11', f's_add_u32 s{S_T0}, s{S_T0}, {SC}', f'v_lshlrev_b32 v{V_T+1}, 3, v0')
    a(f'buffer_store_dwordx2 v[{V_T+2}:{V_T+3}], v{V_T+1}, {WS}, s{S_T0} offen sc1')
    def wclr():
        sk = a.label('wc')
        a(f's_cmp_lg_u32 s{S_WAVE}, 0', f's_cbranch_scc1 {sk}')
        a(f's_and_b32 s{S_T0}, s2, 7', f's_mul_i32 s{S_T0}, s{S_T0}, 2560', f's_lshr_b32 s{S_T1}, s2, 3', f's_lshl_b32 s{S_T1}, s{S_T1}, 7',
          f's_add_u32 s{S_T0}, s{S_T0}, s{S_T1}', f's_add_u32 s{S_T0}, s{S_T0}, {HP}')
        a('v_cmp_gt_u32 vcc, 32, v0', 's_and_saveexec_b64 s[34:35], vcc')
        for r in range(OPT['hr']):
            a(f'buffer_store_dword v{V_T+2}, v{V_T}, {WS}, s{S_T0} offen sc1')
            if r < OPT['hr']-1: a(f's_add_u32 s{S_T0}, s{S_T0}, {HPS}')
        a('s_mov_b64 exec, s[34:35]', f'{sk}:')
    def mclr():
        m_index(a)
        sk = a.label('mc')
        a(f's_cmp_ge_u32 s{S_WAVE}, 3', f's_cbranch_scc1 {sk}')
        a(f'v_lshrrev_b32 v{V_T}, 2, v0', f'v_mul_u32_u24 v{V_T}, 6144, v{V_T}', f'v_and_b32 v{V_T+1}, 3, v0', f'v_lshl_add_u32 v{V_T}, v{V_T+1}, 4, v{V_T}',
          f's_lshl_b32 s{S_T0}, s{S_M}, 6', f's_add_u32 s{S_T0}, s{S_T0}, {YP}')
        a('v_cmp_gt_u32 vcc, 160, v0', 's_and_saveexec_b64 s[34:35], vcc', f'buffer_store_dwordx4 v[{V_T+2}:{V_T+5}], v{V_T}, {WS}, s{S_T0} offen sc1', 's_mov_b64 exec, s[34:35]', f'{sk}:')
    role_branch(a, wclr, mclr)
    sk = a.label('cz')
    a(f's_lshl_b32 s{S_CNT}, s{S_HEAD}, 8', f's_add_u32 s{S_CNT}, s{S_CNT}, {CNT}')
    a(f's_or_b32 s{S_T0}, s{S_MEM}, s{S_WAVE}', f's_cmp_lg_u32 s{S_T0}, 0', f's_cbranch_scc1 {sk}', 's_mov_b64 exec, 1')
    a(f'buffer_store_dword v{V_ZERO}, v{V_ZERO}, {WS}, s{S_CNT} offen sc1', f'buffer_store_dword v{V_ZERO}, v{V_ZERO}, {WS}, s{S_CNT} offen offset:128 sc1', 's_mov_b64 exec, -1', f'{sk}:')
    a(f's_mul_i32 s{S_HB}, s{S_HEAD}, {HEAD_BYTES}', f"s_mul_i32 s{S_ROT}, s{S_HEAD}, {OPT['hrot']}")
    a(f's_lshl_b32 s{S_SU}, s{S_MEM}, 2', f's_add_u32 s{S_SU}, s{S_SU}, s{S_WAVE}', f's_mov_b32 s{S_K}, 0')
    a(f's_lshl_b32 s{S_SCB0}, s{S_HEAD}, 14', f's_add_u32 s{S_SCB0}, s{S_SCB0}, {SC}', f's_or_b32 s{S_SCB}, s{S_SCB0}, 0x80000000')
    nopf = a.label('nopf'); pfd = a.label('pfd')
    a(f's_cmp_ge_u32 s{S_WAVE}, 3', f's_cbranch_scc1 {nopf}')
    if NC: code_prefetch(a, 'L_code_start', 'L_code_end', NC, V_T)
    for k in range(P):
        static_next(a); setoff(a); issue(a, PF + 24*k)
    a(f's_waitcnt vmcnt({7+NC+6*P})', f's_branch {pfd}', f'{nopf}:', 's_waitcnt vmcnt(7)', f'{pfd}:')
    a(f'v_readfirstlane_b32 s{S_TAG}, v{V_E}')
    unpack5(a, X, XF)
    a(f's_add_u32 s{S_TAG}, s{S_TAG}, 1')
    for i in range(24): a(f'v_mov_b32 v{V_ACC+i}, 0')
    layernorm(a, XF, V_T+4)
    for j in range(5): a(f'v_cvt_pk_bf16_f32 v{X+j}, v{XF+2*j}, v{XF+2*j+1}')
    a(f's_mul_i32 s{S_T2}, s{S_WAVE}, 1280', f'v_lshlrev_b32 v{V_T}, 2, v{V_LANE}', f'v_add_u32 v{V_T}, s{S_T2}, v{V_T}')
    for j in range(5): a(f'ds_write_b32 v{V_T}, v{X+j} offset:{L_XN+256*j}')
    a(f's_lshl_b32 s{S_T0}, s70, 1', f's_add_u32 s{S_T0}, s{S_T0}, s{S_T2}', f'v_lshrrev_b32 v{V_T}, 3, v{V_LANE}', f'v_lshlrev_b32 v{V_T}, 1, v{V_T}', f'v_add_u32 v{V_T}, s{S_T0}, v{V_T}')
    a('s_waitcnt lgkmcnt(0)')
    for u in range(3): a(f'ds_read_u16 v{X+u}, v{V_T} offset:{L_XN+64*u}')
    w3 = a.label('w3'); w3d = a.label('w3d')
    a(f's_cmp_ge_u32 s{S_WAVE}, 3', f's_cbranch_scc1 {w3}', f's_waitcnt lgkmcnt(0) vmcnt({NC+6*P})', f's_branch {w3d}',
      f'{w3}:', 's_waitcnt lgkmcnt(0) vmcnt(0)', f'{w3d}:')
    NE = OPT['wsplit'] if OPT['wmode'] <= 1 else 0
    if NE:
        ske = a.label('ske')
        role_branch(a, lambda: w_setup(a), lambda: m_setup(a))
        a(f's_cmp_ge_u32 s{S_WAVE}, 3', f's_cbranch_scc1 {ske}')
        role_branch(a, lambda: [a(l) for l in w_loads()[:NE]], lambda: [a(l) for l in m_loads()[10:10+NE]])
        a(f'{ske}:')
    stamp(a, 12)
    skip = a.label('q3b')
    for u in range(3):
        if u == 2: a(f's_cmp_ge_u32 s{S_WAVE}, 2', f's_cbranch_scc1 {skip}')
        a(f'v_lshlrev_b32 v{X+4}, 16, v{X+u}')
        pv_unit(a, W+12*u, X+u, X+4)
    a(f'{skip}:')
    acc_reduce_write(a, L_A, V_T)
    a('s_waitcnt lgkmcnt(0)', 's_barrier')
    stamp(a, 1)
    gat = a.label('gat'); qrdy = a.label('qrdy')
    a(f's_cmp_ge_u32 s{S_WAVE}, 3', f's_cbranch_scc1 {gat}')
    a(f'v_lshlrev_b32 v{V_T}, 2, v0')
    for w in range(4): a(f'ds_read_b32 v{96+w}, v{V_T} offset:{L_A+768*w}')
    a(f's_lshl_b32 s{S_T0}, s{S_ROW}, 11', f's_add_u32 s{S_T0}, s{S_T0}, {QP2}', f'v_lshlrev_b32 v{V_T}, 3, v0', 's_waitcnt lgkmcnt(0)')
    a('v_add_f32 v96, v96, v97', 'v_add_f32 v98, v98, v99', f'v_mov_b32 v97, s{S_TAG}', 'v_add_f32 v96, v96, v98')
    a(f'buffer_store_dwordx2 v[96:97], v{V_T}, {WS}, s{S_T0} offen sc1')
    if OPT['wmode'] == 1: a('s_waitcnt vmcnt(0)')
    if OPT['wmode'] <= 1:
        if NE:
            role_branch(a, lambda: [a(l) for l in w_loads()[NE:]], lambda: [a(l) for l in m_loads()[:10] + m_loads()[10+NE:]])
        else:
            role_branch(a, lambda: w_weights(a), lambda: m_weights(a))
    a(f's_branch {qrdy}')
    a(f'{gat}:')
    a(f's_lshl_b32 s{S_T0}, s{S_HEAD}, 14', f's_add_u32 s{S_T0}, s{S_T0}, {QP2}')
    a(f's_add_u32 s{S_T1}, s{S_T0}, 4096', f's_add_u32 s{S_T2}, s{S_T0}, 8192', f's_add_u32 s{S_T3}, s{S_T0}, 12288', f'v_lshlrev_b32 v{V_T}, 3, v{V_LANE}')
    def qissue(base):
        for s in range(8):
            for j in range(3):
                r = base + 2*(3*s+j)
                a(f'buffer_load_dwordx2 v[{r}:{r+1}], v{V_T}, {WS}, s{S_T0 + s//2} offen offset:{2048*(s&1)+512*j} sc1')
    def qcheck(base):
        tags = [base + 2*i + 1 for i in range(24)]
        a(f'v_min3_u32 v{V_T+2}, v{tags[0]}, v{tags[1]}, v{tags[2]}', f'v_max3_u32 v{V_T+3}, v{tags[0]}, v{tags[1]}, v{tags[2]}')
        for i in range(3, 23, 2):
            a(f'v_min3_u32 v{V_T+2}, v{V_T+2}, v{tags[i]}, v{tags[i+1]}', f'v_max3_u32 v{V_T+3}, v{V_T+3}, v{tags[i]}, v{tags[i+1]}')
        a(f'v_min_u32 v{V_T+2}, v{V_T+2}, v{tags[23]}', f'v_max_u32 v{V_T+3}, v{V_T+3}, v{tags[23]}')
        a(f'v_xor_b32 v{V_T+2}, s{S_TAG}, v{V_T+2}', f'v_xor_b32 v{V_T+3}, s{S_TAG}, v{V_T+3}', f'v_or_b32 v{V_T+2}, v{V_T+2}, v{V_T+3}')
        a(f'v_cmp_ne_u32 vcc, 0, v{V_T+2}')
    def qpost(base):
        for j in range(3):
            for s in range(1, 8): a(f'v_add_f32 v{base+2*j}, v{base+2*j}, v{base+2*(3*s+j)}')
            a(f'v_cvt_pk_bf16_f32 v{base+2*j}, v{base+2*j}, v{base+2*j}')
            a(f'ds_write_b16 v{V_T+6+j}, v{base+2*j} offset:{L_SM+64}')
    for j in range(3):
        a(f'v_add_u32 v{V_T+1}, {64*j}, v{V_LANE}', f'v_mul_u32_u24 v{V_T+2}, 2731, v{V_T+1}', f'v_lshrrev_b32 v{V_T+2}, 16, v{V_T+2}',
          f'v_mul_u32_u24 v{V_T+3}, 24, v{V_T+2}', f'v_sub_u32 v{V_T+3}, v{V_T+1}, v{V_T+3}',
          f'v_lshrrev_b32 v{V_T+4}, 3, v{V_T+3}', f'v_and_b32 v{V_T+3}, 7, v{V_T+3}', f'v_lshlrev_b32 v{V_T+4}, 6, v{V_T+4}',
          f'v_lshl_add_u32 v{V_T+4}, v{V_T+2}, 3, v{V_T+4}', f'v_add_lshl_u32 v{V_T+6+j}, v{V_T+4}, v{V_T+3}, 1')
    lbl = a.label('qspin'); ok = a.label('qok'); qjoin = a.label('qjoin')
    if OPT['qov']:
        okb = a.label('qokb')
        a(f's_mov_b32 s{S_SPIN}, 0')
        qissue(64)
        a(f'{lbl}:')
        qissue(116)
        a('s_waitcnt vmcnt(24)'); qcheck(64); a(f's_cbranch_vccz {ok}')
        qissue(64)
        a('s_waitcnt vmcnt(24)'); qcheck(116); a(f's_cbranch_vccz {okb}')
        a(f's_add_u32 s{S_SPIN}, s{S_SPIN}, 1', f's_cmp_lt_u32 s{S_SPIN}, 100000', f's_cbranch_scc1 {lbl}', f's_branch {ok}')
        a(f'{okb}:')
        qpost(116)
        a(f's_branch {qjoin}', f'{ok}:')
    else:
        spin_begin(a, lbl)
        qissue(64)
        a('s_waitcnt vmcnt(0)'); qcheck(64)
        a(f's_cbranch_vccz {ok}', f's_add_u32 s{S_SPIN}, s{S_SPIN}, 1', f's_cmp_lt_u32 s{S_SPIN}, 200000', f's_cbranch_scc1 {lbl}', f'{ok}:')
    qpost(64)
    a(f'{qjoin}:')
    stamp(a, 13)
    srd(a, SRD_A, P_DBG, 256)
    a(f'v_mov_b32 v{V_T}, 1', 's_mov_b64 exec, 1', f'buffer_atomic_add v{V_T}, v{V_ZERO}, {R(SRD_A)}, 0 offen', 's_mov_b64 exec, -1')
    if OPT['wmode'] <= 1: role_branch(a, lambda: w_weights(a), lambda: m_weights(a))
    a(f'{qrdy}:')
    a('s_waitcnt lgkmcnt(0)', 's_barrier')
    a(f'v_and_b32 v{V_T}, 7, v{V_LANE}', f'v_lshlrev_b32 v{V_T}, 4, v{V_T}')
    for j in range(3): a(f'ds_read_b128 v[{V_Q+4*j}:{V_Q+4*j+3}], v{V_T} offset:{L_SM+64+128*j}')

def pair_perm(a):
    a(f's_mov_b32 s{S_T2}, 0x05040100', f's_mov_b32 s{S_T3}, 0x07060302')
    def do(pairs):
        for A_, B_ in pairs:
            a(f'v_perm_b32 v50, v{B_}, v{A_}, s{S_T3}', f'v_perm_b32 v{A_}, v{B_}, v{A_}, s{S_T2}', f'v_mov_b32 v{B_}, v50')
    role_branch(a, lambda: do([(WGT+8*q+i, WGT+8*q+4+i) for q in range(6) for i in range(4)]),
                   lambda: do([(WGT+8*q+i, WGT+8*q+4+i) for q in range(8) for i in range(4)]))
def late_loads(a):
    sk = a.label('lx')
    a('s_cmp_lt_u32 s2, 160', f's_cbranch_scc1 {sk}')
    srd(a, SRD_D, P_X, 1280); srd(a, SRD_E, P_WR, 1280)
    a(f'v_lshlrev_b32 v50, 2, v{V_LANE}')
    for j in range(5): a(f'buffer_load_dword v{V_XW+j}, v50, {R(SRD_D)}, 0 offen offset:{256*j}')
    for j in range(5): a(f'buffer_load_dword v{V_XW+5+j}, v50, {R(SRD_E)}, 0 offen offset:{256*j}')
    a(f'{sk}:')
    if OPT['cpf2']: code_prefetch(a, 'L_tail_start', 'L_code_end', 1, 50)

def stream(a):
    NS1, NS = OPT['NS1'], OPT['NS']
    NDYN1 = 2048 - 32*NS1; NDYN = 2048 - 32*NS
    P = OPT['P']
    assert NS <= NS1 <= 64 and NDYN <= 256 and P <= 2 and P < NS
    def prepare(n):
        a(f's_mov_b32 s{S_NX}, s{S_SU}', f's_add_u32 s{S_SU}, s{S_SU}, 32'); setoff(a)
        a(f's_cmp_ge_u32 s{S_K}, {n}')
    a(f'v_lshrrev_b32 v{V_G8}, 3, v{V_LANE}', f'v_lshlrev_b32 v{V_G8}, 3, v{V_G8}', f's_lshl_b32 s{S_T0}, s{S_WAVE}, 12', f'v_add_u32 v{V_SCA}, s{S_T0}, v{V_G8}')
    a(f's_mov_b32 s{S_MASK}, 0x01010101', f's_mov_b32 s{S_MASK+1}, 0x01010101')
    a(f's_lshl_b32 s{S_DST}, s{S_K}, 6')
    static_next(a); setoff(a); issue(a, V_RING, SRD_K)
    a('s_waitcnt lgkmcnt(0)')
    if P:
        sk = a.label('pfs')
        a(f's_cmp_ge_u32 s{S_WAVE}, 3', f's_cbranch_scc1 {sk}', 's_waitcnt vmcnt(6)')
        for k in range(P):
            a(f's_mov_b32 s{S_DST+1}, {64*k}')
            k_step(a, 1, PF + 24*k)
        a(f'{sk}:')
    stamp(a, 2); dstamp(a, 6)
    prepare(NS1)
    loop = a.label('kloop'); drains = []; sws = []
    a(f'{loop}:')
    for t in range(2):
        o = 1 - t
        a('s_waitcnt vmcnt(0)')
        dyn = a.label('kdyn'); cont = a.label('kcont'); dl = a.label('kdrain'); sw = a.label('ksw'); drains.append((dl, t)); sws.append((sw, cont))
        a(f's_cbranch_scc1 {dyn if NDYN1 else dl}')
        issue(a, V_RING + 24*o, SRD_K)
        a(f's_lshl_b32 s{S_DST+o}, s{S_K}, 6')
        if NS1 > NS:
            a(f's_sub_u32 s{S_T0}, s{S_NX}, {32*NS}', f's_lshl_b32 s{S_T0}, s{S_T0}, 6', f's_add_u32 s{S_T0}, s{S_T0}, s{S_SCB}',
              f's_cmp_ge_u32 s{S_K}, {NS}', f's_cselect_b32 s{S_DST+o}, s{S_T0}, s{S_DST+o}')
        a(f's_add_u32 s{S_K}, s{S_K}, 1', f's_cmp_eq_u32 s{S_K}, {NS1}', f's_cbranch_scc1 {sw}')
        a(f'{cont}:')
        k_step(a, t)
        prepare(NS1)
        nxt = a.label('kn') if t == 0 else loop
        a(f's_branch {nxt}')
        if NDYN1:
            a(f'{dyn}:')
            a(f'v_readfirstlane_b32 s{S_NX}, v{V_ATOM}', 's_nop 0', f's_cmp_ge_u32 s{S_NX}, {NDYN1}', f's_cbranch_scc1 {dl}')
            a(f's_add_u32 s{S_NX}, s{S_NX}, {32*NS1}', f's_sub_u32 s{S_T0}, s{S_NX}, {32*NS}', f's_lshl_b32 s{S_T0}, s{S_T0}, 6', f's_add_u32 s{S_DST+o}, s{S_T0}, s{S_SCB}')
            setoff(a); issue(a, V_RING + 24*o, SRD_K); atomic(a)
            a(f's_branch {cont}')
        if t == 0: a(f'{nxt}:')
    for sw, cont in sws:
        a(f'{sw}:')
        if NDYN1: atomic(a)
        srd(a, SRD_E, P_DBG, 256)
        a(f'buffer_load_dword v{V_DBG}, v{V_ZERO}, {R(SRD_E)}, 0 offen sc1')
        a(f's_branch {cont}')
    ventry = [a.label('vent0'), a.label('vent1')]
    for dl, t in drains:
        o = 1 - t
        a(f'{dl}:')
        a(f's_lshl_b32 s{S_SU}, s{S_MEM}, 2', f's_add_u32 s{S_SU}, s{S_SU}, s{S_WAVE}', f's_mov_b32 s{S_K}, 0', f's_add_u32 s{S_CNT}, s{S_CNT}, 128')
        static_next(a); setoff(a); issue(a, V_RING + 24*o, SRD_V)
        k_step(a, t)
        stamp(a, 14)
        dbg_check(a)
        for i in range(24): a(f'v_mov_b32 v{V_ACC+i}, 0')
        a(f'v_mov_b32 v{V_M}, 0x{NEGBIG:08x}', f'v_mov_b32 v{V_L}, 0')
        a('s_waitcnt lgkmcnt(0)', f'ds_read_b64 v[{V_SC+2*o}:{V_SC+2*o+1}], v{V_SCA} offset:{L_SC}')
        prepare(NS)
        a(f's_branch {ventry[o]}')
    done = a.label('sdone'); vdr = []; vsw = []; rep = []
    for t in range(2):
        o = 1 - t
        a(f'{ventry[t]}:')
        a('s_waitcnt vmcnt(0) lgkmcnt(0)')
        dyn = a.label('vdyn'); cont = a.label('vcont'); dl = a.label('vdrain'); sw = a.label('vsw'); rp = a.label('vrp'); rb = a.label('vrb')
        vdr.append((dl, t)); vsw.append((sw, cont)); rep.append((rp, rb, t))
        a(f's_cbranch_scc1 {dyn}')
        issue(a, V_RING + 24*o, SRD_V)
        a(f's_lshl_b32 s{S_T0}, s{S_K}, 6', f'v_add_u32 v{V_T}, s{S_T0}, v{V_SCA}', f'ds_read_b64 v[{V_SC+2*o}:{V_SC+2*o+1}], v{V_T} offset:{L_SC}')
        a(f's_add_u32 s{S_K}, s{S_K}, 1', f's_cmp_eq_u32 s{S_K}, {NS}', f's_cbranch_scc1 {sw}')
        a(f'{cont}:')
        a(f'v_max_u32 v{V_T}, v{V_SC+2*t}, v{V_SC+2*t+1}', f'v_cmp_eq_u32 vcc, -1, v{V_T}', f's_cbranch_vccnz {rp}', f'{rb}:')
        v_step(a, t)
        prepare(NS)
        a(f's_branch {ventry[o]}')
        a(f'{dyn}:')
        a(f'v_readfirstlane_b32 s{S_NX}, v{V_ATOM}', 's_nop 0', f's_cmp_ge_u32 s{S_NX}, {NDYN}', f's_cbranch_scc1 {dl}')
        a(f's_lshl_b32 s{S_DST+o}, s{S_NX}, 6', f's_add_u32 s{S_DST+o}, s{S_DST+o}, s{S_SCB0}', f's_add_u32 s{S_NX}, s{S_NX}, {32*NS}')
        setoff(a); issue(a, V_RING + 24*o, SRD_V)
        a(f'buffer_load_dwordx2 v[{V_SC+2*o}:{V_SC+2*o+1}], v{V_G8}, {WS}, s{S_DST+o} offen sc1')
        atomic(a)
        a(f's_branch {cont}')
    for sw, cont in vsw:
        a(f'{sw}:')
        atomic(a)
        if OPT['pp']: pair_perm(a)
        late_loads(a)
        a(f's_branch {cont}')
    for rp, rb, t in rep:
        lp = a.label('rpl')
        a(f'{rp}:', f's_mov_b32 s{S_SPIN}, 0', f'{lp}:')
        a(f'buffer_load_dwordx2 v[{V_SC+2*t}:{V_SC+2*t+1}], v{V_G8}, {WS}, s{S_DST+t} offen sc1', 's_waitcnt vmcnt(0)')
        a(f'v_max_u32 v{V_T}, v{V_SC+2*t}, v{V_SC+2*t+1}', f'v_cmp_eq_u32 vcc, -1, v{V_T}', f's_cbranch_vccz {rb}')
        a(f's_add_u32 s{S_SPIN}, s{S_SPIN}, 1', f's_cmp_lt_u32 s{S_SPIN}, 200000', f's_cbranch_scc1 {lp}', f's_branch {rb}')
    for dl, t in vdr:
        a(f'{dl}:')
        rp = a.label('drp'); rb = a.label('drb'); lp = a.label('drl')
        a(f'v_max_u32 v{V_T}, v{V_SC+2*t}, v{V_SC+2*t+1}', f'v_cmp_eq_u32 vcc, -1, v{V_T}', f's_cbranch_vccz {rb}', f's_mov_b32 s{S_SPIN}, 0', f'{lp}:')
        a(f'buffer_load_dwordx2 v[{V_SC+2*t}:{V_SC+2*t+1}], v{V_G8}, {WS}, s{S_DST+t} offen sc1', 's_waitcnt vmcnt(0)')
        a(f'v_max_u32 v{V_T}, v{V_SC+2*t}, v{V_SC+2*t+1}', f'v_cmp_eq_u32 vcc, -1, v{V_T}', f's_cbranch_vccz {rb}')
        a(f's_add_u32 s{S_SPIN}, s{S_SPIN}, 1', f's_cmp_lt_u32 s{S_SPIN}, 200000', f's_cbranch_scc1 {lp}', f'{rb}:')
        v_step(a, t)
        a(f's_branch {done}')
    a(f'{done}:')

def phase_t1(a):
    t = V_T
    a('s_nop 2', f'v_mov_b32 v{t+2}, v{V_M}')
    groups_red(a, t+2, t+3, 'v_max_f32')
    a(f'v_sub_f32 v{t+4}, v{V_M}, v{t+2}', f'v_mul_f32 v{t+4}, s{S_LOG2E}, v{t+4}', f'v_exp_f32 v{t+4}, v{t+4}', 's_nop 0', f'v_mul_f32 v{V_L}, v{V_L}, v{t+4}')
    for i in range(12): a(f'v_pk_mul_f32 v[{V_ACC+2*i}:{V_ACC+2*i+1}], v[{V_ACC+2*i}:{V_ACC+2*i+1}], v[{t+4}:{t+5}] op_sel_hi:[1,0]')
    groups_red(a, V_L, t+3, 'v_add_f32')
    a(f'v_mov_b32 v{t+3}, v{V_L}', f's_lshl_b32 s{S_T1}, s{S_WAVE}, 3', f'v_mov_b32 v{t+6}, s{S_T1}', f'ds_write_b64 v{t+6}, v[{t+2}:{t+3}] offset:{L_SM}')
    acc_reduce_write(a, L_A, t+6)
    a('s_waitcnt lgkmcnt(0)', 's_barrier')
    a(f'ds_read_b128 v[100:103], v{V_ZERO} offset:{L_SM}', f'ds_read_b128 v[104:107], v{V_ZERO} offset:{L_SM+16}', f'v_lshlrev_b32 v{t}, 2, v0')
    for w in range(4): a(f'ds_read_b32 v{96+w}, v{t} offset:{L_A+768*w}')
    a(f's_lshl_b32 s{S_T0}, s{S_ROW}, 10', f's_add_u32 s{S_T0}, s{S_T0}, {OP}', 's_waitcnt lgkmcnt(4)')
    a('v_max_f32 v108, v100, v102', 'v_max3_f32 v108, v108, v104, v106')
    for w in range(4): a(f'v_sub_f32 v{110+w}, v{100+2*w}, v108', f'v_mul_f32 v{110+w}, s{S_LOG2E}, v{110+w}')
    for w in range(4): a(f'v_exp_f32 v{110+w}, v{110+w}')
    a('s_waitcnt lgkmcnt(0)', 'v_mul_f32 v96, v96, v110', 'v_mul_f32 v109, v101, v110')
    for w in range(1, 4): a(f'v_fmac_f32 v96, v{96+w}, v{110+w}', f'v_fmac_f32 v109, v{101+2*w}, v{110+w}')
    a('v_cmp_eq_u32 vcc, 192, v0', 's_nop 1', 'v_cndmask_b32 v96, v96, v108, vcc', 'v_cmp_eq_u32 vcc, 193, v0', 's_nop 1', 'v_cndmask_b32 v96, v96, v109, vcc')
    a('v_cmp_lt_u32 vcc, 193, v0', 's_nop 1', f'v_cndmask_b32 v96, v96, v{V_ZERO}, vcc')
    a('v_cmp_gt_u32 vcc, 196, v0', 's_and_saveexec_b64 s[34:35], vcc')
    sk = a.label('t1s')
    a(f's_cbranch_execz {sk}', f'buffer_store_dword v96, v{t}, {WS}, s{S_T0} offen sc1', f'{sk}:', 's_mov_b64 exec, s[34:35]')

def dbg_check(a):
    ok = a.label('dok'); lp = a.label('dlp')
    a(f'v_readfirstlane_b32 s{S_T0}, v{V_DBG}', 's_nop 0', f's_cmp_ge_u32 s{S_T0}, 256', f's_cbranch_scc1 {ok}')
    srd(a, SRD_A, P_DBG, 256)
    a(f's_mov_b32 s{S_SPIN}, 0', f'{lp}:', f'buffer_load_dword v{V_DBG}, v{V_ZERO}, {R(SRD_A)}, 0 offen sc1', 's_waitcnt vmcnt(0)')
    a(f'v_readfirstlane_b32 s{S_T0}, v{V_DBG}', 's_nop 0', f's_cmp_ge_u32 s{S_T0}, 256', f's_cbranch_scc1 {ok}')
    a(f's_add_u32 s{S_SPIN}, s{S_SPIN}, 1', f's_cmp_lt_u32 s{S_SPIN}, 200000', f's_cbranch_scc1 {lp}', f'{ok}:')
    sk = a.label('ep')
    a(f's_or_b32 s{S_T0}, s2, s{S_WAVE}', f's_cmp_lg_u32 s{S_T0}, 0', f's_cbranch_scc1 {sk}')
    a(f'v_mov_b32 v{V_T}, s{S_TAG}', f's_mov_b32 s{S_T0}, {EPOCH}', 's_mov_b64 exec, 1', f'buffer_store_dword v{V_T}, v{V_ZERO}, {WS}, s{S_T0} offen sc1', 's_mov_b64 exec, -1', f'{sk}:')

def phase_w(a):
    a(f's_and_b32 s{S_T0}, s2, 7', f's_lshl_b32 s{S_T0}, s{S_T0}, 2', f's_add_u32 s{S_T0}, s{S_T0}, s{S_WAVE}',
      f's_lshl_b32 s{S_T0}, s{S_T0}, 13', f's_add_u32 s{S_T0}, s{S_T0}, {OP}', f's_add_u32 s{S_T1}, s{S_T0}, 4096', f'v_lshlrev_b32 v{V_T}, 4, v{V_LANE}')
    a(f's_mul_i32 s{S_T2}, s{S_WAVE}, 768', f'v_add_u32 v{V_T+2}, s{S_T2}, v{V_T}')
    a('s_bfm_b64 exec, 49, 0')
    O = 108
    def w_issue(Pr):
        for s in range(8): a(f'buffer_load_dwordx4 v[{Pr+4*s}:{Pr+4*s+3}], v{V_T}, {WS}, s{S_T0 if s < 4 else S_T1} offen offset:{1024*(s&3)} sc1')
    def w_post(Pr):
        Mx, Ls, Fs = 96, 97, 98
        a(f'v_max3_f32 v{Mx}, v{Pr}, v{Pr+4}, v{Pr+8}', f'v_max3_f32 v{Mx}, v{Mx}, v{Pr+12}, v{Pr+16}', f'v_max3_f32 v{Mx}, v{Mx}, v{Pr+20}, v{Pr+24}', f'v_max_f32 v{Mx}, v{Mx}, v{Pr+28}')
        for s in range(8): a(f'v_sub_f32 v{Fs+s}, v{Pr+4*s}, v{Mx}', f'v_mul_f32 v{Fs+s}, s{S_LOG2E}, v{Fs+s}')
        for s in range(8): a(f'v_exp_f32 v{Fs+s}, v{Fs+s}')
        a(f'v_mul_f32 v{Ls}, v{Pr+1}, v{Fs}')
        for s in range(1, 8): a(f'v_fmac_f32 v{Ls}, v{Pr+4*s+1}, v{Fs+s}')
        a(f'v_rcp_f32 v{Ls}, v{Ls}', 's_nop 0')
        for s in range(8): a(f'v_mul_f32 v{Fs+s}, v{Fs+s}, v{Ls}')
        for s in range(8): a(f'v_readlane_b32 s{S_G+s}, v{Fs+s}, 48')
        a('s_nop 1')
        for e in range(4): a(f'v_mul_f32 v{O+e}, s{S_G}, v{Pr+e}')
        for s in range(1, 8):
            for e in range(4): a(f'v_fmac_f32 v{O+e}, s{S_G+s}, v{Pr+4*s+e}')
    if OPT['ov']:
        poll2(a, w_issue, 32, 64, 128, 8, w_post, V_T+1)
    else:
        lbl = a.label('wspin'); spin_begin(a, lbl); w_issue(64); a('s_waitcnt vmcnt(0)'); spin_end(a, lbl, list(range(64, 96)), V_T+1); w_post(64)
    stamp(a, 5)
    for e in range(4): bf16r(a, O+e, O+e)
    a('s_bfm_b64 exec, 48, 0', f'ds_write_b128 v{V_T+2}, v[{O}:{O+3}] offset:{L_OV}', 's_mov_b64 exec, -1')
    a(f'v_lshrrev_b32 v{V_T}, 5, v{V_LANE}', f'v_mul_u32_u24 v{V_T}, 24, v{V_T}', f'v_bfe_u32 v{V_T+1}, v{V_LANE}, 2, 3', f'v_add_lshl_u32 v{V_T}, v{V_T}, v{V_T+1}, 2',
      f'v_add_u32 v{V_T}, s{S_T2}, v{V_T}', 's_waitcnt lgkmcnt(0)')
    U = 112
    for p in range(12): a(f'ds_read_b32 v{U+p}, v{V_T} offset:{L_OV+4*(48*(p&3)+8*(p>>2))}')
    A = 160
    if OPT['pp']:
        a(f's_mov_b32 s{S_T3}, 0x07060302')
        for q in range(6):
            a(f's_waitcnt lgkmcnt({10-2*q})', f'v_perm_b32 v{U+12+(q&1)}, v{U+2*q+1}, v{U+2*q}, s{S_T3}')
            for i in range(4):
                c0 = '0' if q == 0 else f'v{A+2*i}'; c1 = '0' if q == 0 else f'v{A+2*i+1}'
                a(f'v_dot2_f32_bf16 v{A+2*i}, v{WGT+8*q+i}, v{U+12+(q&1)}, {c0}', f'v_dot2_f32_bf16 v{A+2*i+1}, v{WGT+8*q+4+i}, v{U+12+(q&1)}, {c1}')
    else:
      for p in range(12):
        a(f's_waitcnt lgkmcnt({11-p})', f'v_lshrrev_b32 v{U+12+(p&1)}, 16, v{U+p}')
        for i in range(4):
            c0 = '0' if p == 0 else f'v{A+2*i}'; c1 = '0' if p == 0 else f'v{A+2*i+1}'
            a(f'v_dot2_f32_bf16 v{A+2*i}, v{WGT+4*p+i}, v{U+12+(p&1)}, {c0}', f'v_dot2_f32_bf16 v{A+2*i+1}, v{WGT+4*p+i}, v{U+p}, {c1}')
    a('s_nop 2')
    for d in ('row_ror:4', 'row_ror:8'):
        for i in range(8): dpp(a, 'v_add_f32', A+i, d)
    swap_reduce(a, A, 4, 'v_permlane16_swap_b32')
    a(f'v_and_b32 v{V_T}, 3, v{V_LANE}', f'v_lshlrev_b32 v{V_T}, 5, v{V_T}', f'v_bfe_u32 v{V_T+1}, v{V_LANE}, 4, 1', f'v_lshl_add_u32 v{V_T}, v{V_T+1}, 4, v{V_T}',
      f'v_lshrrev_b32 v{V_T+1}, 5, v{V_LANE}', f'v_lshl_add_u32 v{V_T}, v{V_T+1}, 3, v{V_T}', f's_lshl_b32 s{S_T0}, s{S_WAVE}, 7', f'v_add_u32 v{V_T}, s{S_T0}, v{V_T}')
    swap_reduce(a, A, 2, 'v_permlane32_swap_b32')
    a(f'ds_write_b64 v{V_T}, v[{A}:{A+1}] offset:{L_B}', 's_waitcnt lgkmcnt(0)', 's_barrier')
    done = a.label('wd')
    a(f's_cmp_ge_u32 s{S_WAVE}, 1', f's_cbranch_scc1 {done}')
    a(f'v_and_b32 v{V_T}, 31, v0', f'v_lshlrev_b32 v{V_T}, 2, v{V_T}')
    for w in range(4): a(f'ds_read_b32 v{U+w}, v{V_T} offset:{L_B+128*w}')
    a(f's_and_b32 s{S_T0}, s2, 7', f's_mul_i32 s{S_T0}, s{S_T0}, 2560', f's_lshr_b32 s{S_T1}, s2, 3', f's_lshl_b32 s{S_T1}, s{S_T1}, 7',
      f's_add_u32 s{S_T0}, s{S_T0}, s{S_T1}', f's_add_u32 s{S_T0}, s{S_T0}, {HP}', 's_bfm_b64 exec, 32, 0', 's_waitcnt lgkmcnt(0)')
    a(f'v_add_f32 v{U}, v{U}, v{U+1}', f'v_add_f32 v{U+2}, v{U+2}, v{U+3}', f'v_add_f32 v{U}, v{U}, v{U+2}')
    for r in range(OPT['hr']):
        a(f'buffer_store_dword v{U}, v{V_T}, {WS}, s{S_T0} offen sc1')
        if r < OPT['hr']-1: a(f's_add_u32 s{S_T0}, s{S_T0}, {HPS}')
    a('s_mov_b64 exec, -1', f'{done}:')

H_HN, H_X = 70, 64
def phase_h(a):
    a(f's_mul_i32 s{S_T0}, s{S_WAVE}, 5120', f's_add_u32 s{S_T0}, s{S_T0}, {HP}', f"s_and_b32 s{S_T1}, s2, {OPT['hr']-1}", f's_mul_i32 s{S_T1}, s{S_T1}, {HPS}',
      f's_add_u32 s{S_T0}, s{S_T0}, s{S_T1}', f's_add_u32 s{S_T1}, s{S_T0}, 2560', f'v_lshlrev_b32 v{V_T}, 3, v{V_LANE}')
    a(f's_mul_i32 s{S_T2}, s{S_WAVE}, 2560', f'v_add_u32 v{V_T+2}, s{S_T2}, v{V_T}')
    unpack5(a, V_XW, H_HN)
    Q = 160
    def h_issue(P):
        for b in range(2):
            for j in range(5): a(f'buffer_load_dwordx2 v[{P+10*b+2*j}:{P+10*b+2*j+1}], v{V_T}, {WS}, s{S_T0+b} offen offset:{512*j} sc1')
    def h_post(P):
        for i in range(10): a(f'v_add_f32 v{Q+i}, v{P+i}, v{P+10+i}')
    if OPT['ov']:
        poll2(a, h_issue, 20, 80, 140, 10, h_post, V_T+1)
    else:
        lbl = a.label('hspin'); spin_begin(a, lbl); h_issue(80); a('s_waitcnt vmcnt(0)'); spin_end(a, lbl, list(range(80, 100)), V_T+1); h_post(80)
    stamp(a, 7)
    for j in range(5): a(f'ds_write_b64 v{V_T+2}, v[{Q+2*j}:{Q+2*j+1}] offset:{L_C+512*j}')
    a('s_waitcnt lgkmcnt(0)', 's_barrier')
    Rr = 100
    for w in range(4):
        for j in range(5): a(f'ds_read_b64 v[{Rr+10*w+2*j}:{Rr+10*w+2*j+1}], v{V_T} offset:{L_C+2560*w+512*j}')
    a(f's_mul_i32 s{S_T0}, s{S_WAVE}, 1280', f'v_lshlrev_b32 v{V_T}, 2, v{V_LANE}', f'v_add_u32 v{V_T}, s{S_T0}, v{V_T}', 's_waitcnt lgkmcnt(0)')
    for i in range(10): a(f'v_add_f32 v{Rr+i}, v{Rr+i}, v{Rr+10+i}', f'v_add_f32 v{Rr+20+i}, v{Rr+20+i}, v{Rr+30+i}')
    for i in range(10): a(f'v_add_f32 v{Rr+i}, v{Rr+i}, v{Rr+20+i}')
    for j in range(5):
        i = 2*j
        a(f'v_cvt_pk_bf16_f32 v{V_T+1}, v{Rr+i}, v{Rr+i+1}', f'v_lshlrev_b32 v{Rr+i}, 16, v{V_T+1}', f'v_and_b32 v{Rr+i+1}, 0xffff0000, v{V_T+1}',
          f'v_add_f32 v{H_HN+i}, v{H_HN+i}, v{Rr+i}', f'v_add_f32 v{H_HN+i+1}, v{H_HN+i+1}, v{Rr+i+1}', f'v_cvt_pk_bf16_f32 v{H_X+j}, v{H_HN+i}, v{H_HN+i+1}',
          f'v_lshlrev_b32 v{H_HN+i}, 16, v{H_X+j}', f'v_and_b32 v{H_HN+i+1}, 0xffff0000, v{H_X+j}')
        a(f'ds_write_b32 v{V_T}, v{H_X+j} offset:{L_H+256*j}')
    layernorm(a, H_HN, V_T+4)
    for j in range(5):
        a(f'v_cvt_pk_bf16_f32 v{H_X+j}, v{H_HN+2*j}, v{H_HN+2*j+1}', f'ds_write_b32 v{V_T}, v{H_X+j} offset:{L_XN+256*j}')

def phase_m(a):
    U, A = 80, 96
    a(f'v_and_b32 v{V_T}, 127, v0', f'v_lshrrev_b32 v{V_T}, 1, v{V_T}', f'v_lshlrev_b32 v{V_T}, 1, v{V_T}', f's_mul_i32 s{S_T0}, s{S_WAVE}, 1280', f'v_add_u32 v{V_T}, s{S_T0}, v{V_T}', 's_waitcnt vmcnt(0) lgkmcnt(0)')
    for p in range(10): a(f'ds_read_u16 v{U+p}, v{V_T} offset:{L_XN+128*p}')
    if OPT['pp']:
        for q in range(5):
            a(f's_waitcnt lgkmcnt({8-2*q})', f'v_lshl_or_b32 v{U+10+(q&1)}, v{U+2*q+1}, 16, v{U+2*q}')
            for i in range(4):
                c0 = '0' if q == 0 else f'v{A+2*i}'; c1 = '0' if q == 0 else f'v{A+2*i+1}'
                a(f'v_dot2_f32_bf16 v{A+2*i}, v{WGT+8*q+i}, v{U+10+(q&1)}, {c0}', f'v_dot2_f32_bf16 v{A+2*i+1}, v{WGT+8*q+4+i}, v{U+10+(q&1)}, {c1}')
    else:
      for p in range(10):
        a(f's_waitcnt lgkmcnt({9-p})', f'v_lshlrev_b32 v{U+10+(p&1)}, 16, v{U+p}')
        for i in range(4):
            c0 = '0' if p == 0 else f'v{A+2*i}'; c1 = '0' if p == 0 else f'v{A+2*i+1}'
            a(f'v_dot2_f32_bf16 v{A+2*i}, v{WGT+4*p+i}, v{U+p}, {c0}', f'v_dot2_f32_bf16 v{A+2*i+1}, v{WGT+4*p+i}, v{U+10+(p&1)}, {c1}')
    a('s_nop 2')
    for d in ('quad_perm:[2,3,0,1]', 'row_ror:4', 'row_ror:8'):
        for i in range(8): dpp(a, 'v_add_f32', A+i, d)
    swap_reduce(a, A, 4, 'v_permlane16_swap_b32')
    a(f'v_and_b32 v{V_T}, 1, v{V_LANE}', f'v_lshlrev_b32 v{V_T}, 5, v{V_T}', f'v_bfe_u32 v{V_T+1}, v{V_LANE}, 4, 1', f'v_lshl_add_u32 v{V_T}, v{V_T+1}, 4, v{V_T}',
      f'v_lshrrev_b32 v{V_T+1}, 5, v{V_LANE}', f'v_lshl_add_u32 v{V_T}, v{V_T+1}, 3, v{V_T}', f's_lshl_b32 s{S_T0}, s{S_WAVE}, 6', f'v_add_u32 v{V_T}, s{S_T0}, v{V_T}')
    swap_reduce(a, A, 2, 'v_permlane32_swap_b32')
    a(f'ds_write_b64 v{V_T}, v[{A}:{A+1}] offset:{L_D}', 's_waitcnt lgkmcnt(0)', 's_barrier')
    a(f'v_and_b32 v{V_T}, 15, v{V_LANE}', f'v_lshlrev_b32 v{V_T}, 2, v{V_T}')
    for k in range(4): a(f'ds_read_b32 v{U+k}, v{V_T} offset:{L_D+64*k}')
    a(f's_lshl_b32 s{S_T0}, s{S_WAVE}, 7', f'v_lshlrev_b32 v{V_T+1}, 2, v{V_LANE}', f'v_add_u32 v{V_T+1}, s{S_T0}, v{V_T+1}', 's_waitcnt lgkmcnt(0)')
    a(f'v_add_f32 v{U}, v{U}, v{U+1}', f'v_add_f32 v{U+2}, v{U+2}, v{U+3}')
    bf16r(a, U, U); bf16r(a, U+2, U+2)
    a(f'v_mul_f32 v{U+1}, s{S_LOG2E}, v{U}', f'v_sub_f32 v{U+1}, 0, v{U+1}', f'v_exp_f32 v{U+1}, v{U+1}', 's_nop 0', f'v_add_f32 v{U+1}, 1.0, v{U+1}', f'v_rcp_f32 v{U+1}, v{U+1}', 's_nop 0', f'v_mul_f32 v{U}, v{U}, v{U+1}')
    bf16r(a, U, U)
    a(f'v_mul_f32 v{U}, v{U}, v{U+2}')
    bf16r(a, U, U)
    a(f'v_cmp_gt_u32 vcc, 16, v{V_LANE}', 's_nop 1', f'v_cndmask_b32 v{U}, v{V_ZERO}, v{U}, vcc')
    a('s_bfm_b64 exec, 18, 0', f'ds_write_b32 v{V_T+1}, v{U} offset:{L_E}', 's_mov_b64 exec, -1')
    a(f'v_mul_u32_u24 v{V_T}, 205, v0', f'v_lshrrev_b32 v{V_T}, 14, v{V_T}', f'v_lshl_add_u32 v{V_T+1}, v{V_T}, 2, s{S_T0}', 's_waitcnt lgkmcnt(0)')
    for i in range(6): a(f'ds_read_b32 v{U+i}, v{V_T+1} offset:{L_E+12*i}')
    a(f'v_mul_u32_u24 v{V_T+2}, 80, v{V_T}', f'v_sub_u32 v{V_T+2}, v0, v{V_T+2}', f'v_lshlrev_b32 v{V_T+2}, 5, v{V_T+2}', f'v_mul_u32_u24 v{V_T}, 2560, v{V_T}', f'v_add_u32 v{V_T+2}, v{V_T+2}, v{V_T}')
    if OPT['pp']:
        a(f's_mov_b32 s{S_T3}, 0x07060302')
        for q in range(3):
            a(f's_waitcnt lgkmcnt({4-2*q})', f'v_perm_b32 v{U+6+(q&1)}, v{U+2*q+1}, v{U+2*q}, s{S_T3}')
            for e in range(4):
                c0 = '0' if q == 0 else f'v{A+2*e}'; c1 = '0' if q == 0 else f'v{A+2*e+1}'
                a(f'v_dot2_f32_bf16 v{A+2*e}, v{WGT+40+8*q+e}, v{U+6+(q&1)}, {c0}', f'v_dot2_f32_bf16 v{A+2*e+1}, v{WGT+40+8*q+4+e}, v{U+6+(q&1)}, {c1}')
    else:
      for i in range(6):
        a(f's_waitcnt lgkmcnt({5-i})', f'v_lshrrev_b32 v{U+6+(i&1)}, 16, v{U+i}')
        for e in range(4):
            c0 = '0' if i == 0 else f'v{A+2*e}'; c1 = '0' if i == 0 else f'v{A+2*e+1}'
            a(f'v_dot2_f32_bf16 v{A+2*e}, v{WGT+40+4*i+e}, v{U+6+(i&1)}, {c0}', f'v_dot2_f32_bf16 v{A+2*e+1}, v{WGT+40+4*i+e}, v{U+i}, {c1}')
    a('v_cmp_gt_u32 vcc, 240, v0', 's_and_saveexec_b64 s[34:35], vcc', 's_nop 1')
    a(f'ds_write_b128 v{V_T+2}, v[{A}:{A+3}] offset:{L_F}', f'ds_write_b128 v{V_T+2}, v[{A+4}:{A+7}] offset:{L_F+16}')
    a('s_mov_b64 exec, s[34:35]', 's_waitcnt lgkmcnt(0)', 's_barrier')
    done = a.label('md')
    a('v_cmp_gt_u32 vcc, 160, v0', 's_and_saveexec_b64 s[34:35], vcc', f's_cbranch_execz {done}', f'v_lshlrev_b32 v{V_T}, 4, v0')
    for g in range(3): a(f'ds_read_b128 v[{U+4*g}:{U+4*g+3}], v{V_T} offset:{L_F+2560*g}')
    a(f'v_lshrrev_b32 v{V_T}, 2, v0', f'v_mul_u32_u24 v{V_T}, 6144, v{V_T}', f'v_and_b32 v{V_T+1}, 3, v0', f'v_lshl_add_u32 v{V_T}, v{V_T+1}, 4, v{V_T}',
      f's_lshl_b32 s{S_T0}, s{S_M}, 6', f's_add_u32 s{S_T0}, s{S_T0}, {YP}', 's_waitcnt lgkmcnt(0)')
    for e in range(4): a(f'v_add_f32 v{U+e}, v{U+e}, v{U+4+e}')
    for e in range(4): a(f'v_add_f32 v{U+e}, v{U+e}, v{U+8+e}')
    a(f'buffer_store_dwordx4 v[{U}:{U+3}], v{V_T}, {WS}, s{S_T0} offen sc1')
    a(f'{done}:', 's_mov_b64 exec, s[34:35]')

def phase_f(a):
    U = 80
    a(f'v_dot2_f32_bf16 v{V_SIG}, v{H_X}, v{V_XW+5}, 0')
    for j in range(1, 5): a(f'v_dot2_f32_bf16 v{V_SIG}, v{H_X+j}, v{V_XW+5+j}, v{V_SIG}')
    a(f's_mul_i32 s{S_T0}, s{S_M}, 6144', f's_add_u32 s{S_T0}, s{S_T0}, {YP}', f's_add_u32 s{S_T1}, s{S_T0}, 4096', f'v_lshlrev_b32 v{V_T}, 3, v0')
    wave_red(a, [V_SIG], [V_T+1])
    bf16r(a, V_SIG, V_SIG)
    a(f'v_mul_f32 v{V_SIG}, s{S_LOG2E}, v{V_SIG}', f'v_sub_f32 v{V_SIG}, 0, v{V_SIG}', f'v_exp_f32 v{V_SIG}, v{V_SIG}', 's_nop 0',
      f'v_add_f32 v{V_SIG}, 1.0, v{V_SIG}', f'v_rcp_f32 v{V_SIG}, v{V_SIG}', 's_nop 0')
    bf16r(a, V_SIG, V_SIG)
    a(f'v_and_b32 v{V_T+2}, 15, v0', f's_lshl_b32 s{S_T2}, s{S_M}, 4', f'v_add_u32 v{V_T+2}, s{S_T2}, v{V_T+2}', f'v_lshlrev_b32 v{V_T+2}, 1, v{V_T+2}')
    HH = 126
    a(f'ds_read_u16 v{HH}, v{V_T+2} offset:{L_H}', f'ds_read_u16 v{HH+1}, v{V_T+2} offset:{L_XN}')
    srd(a, SRD_A, P_OUT, 1280)
    Y = 100
    def f_issue(P):
        a(f'buffer_load_dwordx2 v[{P}:{P+1}], v{V_T}, {WS}, s{S_T0} offen sc1', f'buffer_load_dwordx2 v[{P+2}:{P+3}], v{V_T}, {WS}, s{S_T0} offen offset:2048 sc1',
          f'buffer_load_dwordx2 v[{P+4}:{P+5}], v{V_T}, {WS}, s{S_T1} offen sc1')
    def f_post(P):
        a(f'v_add_f32 v{Y}, v{P}, v{P+2}', f'v_add_f32 v{Y+1}, v{P+1}, v{P+3}', f'v_add_f32 v{Y}, v{Y}, v{P+4}', f'v_add_f32 v{Y+1}, v{Y+1}, v{P+5}')
    if OPT['ov']:
        poll2(a, f_issue, 6, 80, 88, 3, f_post, V_T+1)
    else:
        lbl = a.label('fspin'); spin_begin(a, lbl); f_issue(80); a('s_waitcnt vmcnt(0)'); spin_end(a, lbl, list(range(80, 86)), V_T+1); f_post(80)
    stamp(a, 10)
    a('s_nop 1'); dpp(a, 'v_add_f32', Y, 'row_ror:8'); dpp(a, 'v_add_f32', Y+1, 'row_ror:8')
    swap_reduce(a, Y, 1, 'v_permlane16_swap_b32')
    a(f'v_mov_b32 v{Y+1}, v{Y}', f'v_and_b32 v{V_T}, 7, v{V_LANE}', f'v_lshlrev_b32 v{V_T}, 3, v{V_T}', f'v_bfe_u32 v{V_T+1}, v{V_LANE}, 4, 1', f'v_lshl_add_u32 v{V_T}, v{V_T+1}, 2, v{V_T}',
      f's_lshl_b32 s{S_T0}, s{S_WAVE}, 6', f'v_add_u32 v{V_T}, s{S_T0}, v{V_T}')
    a(f'v_permlane32_swap_b32 v{Y}, v{Y+1}', 's_nop 0', f'v_add_f32 v{Y}, v{Y}, v{Y+1}')
    a(f'ds_write_b32 v{V_T}, v{Y} offset:{L_G}', 's_waitcnt lgkmcnt(0)', 's_barrier')
    done = a.label('fd')
    a(f's_cmp_ge_u32 s{S_WAVE}, 1', f's_cbranch_scc1 {done}')
    a(f'v_and_b32 v{V_T}, 15, v0', f'v_lshlrev_b32 v{V_T}, 2, v{V_T}')
    U = 104
    for w in range(4): a(f'ds_read_b32 v{U+w}, v{V_T} offset:{L_G+64*w}')
    a(f'v_lshlrev_b32 v{U+16}, 16, v{HH}', f'v_lshlrev_b32 v{U+17}, 16, v{HH+1}', 's_bfm_b64 exec, 16, 0', 's_waitcnt lgkmcnt(0)')
    a(f'v_add_f32 v{U}, v{U}, v{U+1}', f'v_add_f32 v{U+2}, v{U+2}, v{U+3}', f'v_add_f32 v{U}, v{U}, v{U+2}')
    bf16r(a, U, U)
    a(f'v_mul_f32 v{U}, v{U}, v{V_SIG}')
    bf16r(a, U, U)
    a(f'v_add_f32 v{U}, v{U+17}, v{U}')
    bf16r(a, U, U)
    a(f'v_add_f32 v{U}, v{U+16}, v{U}', f'v_cvt_pk_bf16_f32 v{U}, v{U}, v{U}')
    a(f'buffer_store_short v{U}, v{V_T+2}, {R(SRD_A)}, 0 offen', 's_mov_b64 exec, -1', f'{done}:')

def build():
    a = Asm()
    name = NAME_BASE + '_kernel'
    hdr = header([f'; @launch grid=(256,1,1) block=(256,1,1) lds={LDS_BYTES}'])
    a('.amdgcn_target "amdgcn-amd-amdhsa--gfx950"', '.text')
    end = a.label('end')
    a(f'.globl {name}', '.p2align 8', f'.type {name},@function', f'{name}:', 'L_code_start:')
    prologue(a, end)
    stamp(a, 0); dstamp(a, 4, True)
    startup(a)
    stream(a)
    stamp(a, 3); dstamp(a, 7)
    a('L_tail_start:')
    phase_t1(a)
    stamp(a, 4)
    rm = a.label('rolem'); fin = a.label('fin')
    a('s_cmp_ge_u32 s2, 160', f's_cbranch_scc1 {rm}')
    phase_w(a); stamp(a, 6)
    a(f's_branch {fin}', f'{rm}:')
    phase_h(a); stamp(a, 8)
    phase_m(a); stamp(a, 9)
    a(f's_cmp_ge_u32 s{S_M}, 40', f's_cbranch_scc1 {fin}')
    phase_f(a); stamp(a, 11)
    a(f'{fin}:', 's_waitcnt vmcnt(0) lgkmcnt(0)')
    stamp(a, 15); dstamp(a, 5)
    a('s_waitcnt vmcnt(0)')
    a(f'{end}:', 's_endpgm', 'L_code_end:')
    a('.section .rodata,"a"', '.p2align 6')
    a.lines.append(kernel_desc(name, 256, 102))
    return '\n'.join(hdr) + '\n' + a.text()

if __name__ == '__main__':
    for x in sys.argv[1:]:
        if x == 'stamp': OPT['stamp'] = 1
        elif '=' in x:
            k, v = x.split('='); assert k in OPT, k; OPT[k] = int(v)
    sys.stdout.write(build())
```

```python
import sys, struct
from asmlib import *

def f2u(x): return struct.unpack('<I', struct.pack('<f', x))[0]
SCALE = f2u(192 ** -0.5); LOG2E = f2u(1.4426950408889634); INV640 = f2u(1.0/640); EPS = f2u(1e-5); NEGBIG = f2u(-3.0e38)
KV_BYTES = 402653184; HEAD_BYTES = 12582912
CNT, OP, HP, YP, EPOCH, TS, QP2, WS_USED = 0x40000, 0x50000, 0x180000, 0xA0000, 0xE8000, 0xF0000, 0x100000, 0x240000
HPS = 20480 + 256
SC = 0x1B0000
L_RED = 0
L_A, L_B, L_C, L_D, L_E, L_F, L_G = 0, 3072, 4096, 14336, 14592, 15104, 3072
L_XN = 24576
L_H = 29696
L_SM = 34816
L_OV = 35840
L_SC = 38912
LDS_BYTES = 38912 + 16384
S_WAVE = 3
SRD_K, SRD_V, SRD_WS, SRD_A, SRD_B = 8, 12, 16, 20, 24
S_HEAD, S_MEM, S_SCALE, S_LOG2E = 28, 29, 30, 31
S_T0, S_T1, S_T2, S_T3 = 32, 33, 34, 35
P_X, P_K, P_V, P_WQ, P_WO, P_BX, P_WR, P_WG = 36, 38, 40, 42, 44, 46, 48, 50
P_WU, P_WD, P_OUT, P_DBG, P_WS = 52, 54, 56, 58, 60
S_OFF, S_HB, S_CNT, S_NX, S_SPIN, S_M = 62, 63, 64, 65, 66, 67
S_G = 68
S_ROT, S_TAG, S_K, S_SU = 76, 77, 78, 79
S_ROW = 86
S_SCB, S_SCB0 = 71, 69
S_DST = 72
S_MASK = 74
V_SC = 112
V_G8 = 164
V_SCA = 165
SRD_C, SRD_D, SRD_E = 88, 92, 96
V_LANE, V_OFFB, V_ZERO = 1, 2, 3
V_Q, V_ACC, V_M, V_L, V_T = 4, 16, 40, 41, 42
V_ATOM, V_SIG, V_E, V_DBG = 56, 57, 58, 59
V_CPF = 168
V_RING = 64
PF = 116
WGT = 192
V_XW = 176
WS = f's[{SRD_WS}:{SRD_WS+3}]'
OPT = dict(P=0, NS1=60, NS=60, hrot=11, cpf=1, cpf2=1, stamp=0, stampw=0, wmode=1, qov=1, npre=4, ov=0, fast=1, wsplit=6, dstamp=0, hr=1, pp=1)

def srd(a, reg, ptr, size):
    a(f's_mov_b32 s{reg}, s{ptr}', f's_and_b32 s{reg+1}, s{ptr+1}, 0xffff', f's_mov_b32 s{reg+2}, {size}', f's_mov_b32 s{reg+3}, 0x20000')
def R(a_): return f's[{a_}:{a_+3}]'
def stamp(a, slot):
    if not OPT['stamp']: return
    sk = a.label('ts')
    a(f"s_cmp_lg_u32 s{S_WAVE}, {OPT['stampw']}", f's_cbranch_scc1 {sk}')
    a('s_memrealtime s[80:81]', 's_waitcnt lgkmcnt(0)')
    a(f's_lshl_b32 s82, s2, 7', f's_add_u32 s82, s82, {TS + slot*8}')
    a('v_mov_b32 v62, s80', 'v_mov_b32 v63, s81', 's_mov_b64 s[84:85], exec', 's_mov_b64 exec, 1')
    a(f'buffer_store_dwordx2 v[62:63], v{V_ZERO}, {WS}, s82 offen')
    a('s_mov_b64 exec, s[84:85]', 's_nop 1')
    a(f'{sk}:')
def dstamp(a, word, neg=False):
    if not OPT['dstamp']: return
    sk = a.label('ds')
    a(f's_cmp_lg_u32 s{S_WAVE}, 0', f's_cbranch_scc1 {sk}')
    a('s_memrealtime s[80:81]', 's_waitcnt lgkmcnt(0)')
    if neg: a('s_not_b32 s80, s80')
    a(f's_mov_b32 s84, s{P_DBG}', f's_and_b32 s85, s{P_DBG+1}, 0xffff')
    a('v_mov_b32 v62, s80', f'v_mov_b32 v63, {4*word}', 's_mov_b64 s[82:83], exec', 's_mov_b64 exec, 1')
    a(f'global_atomic_umax v63, v62, s[84:85]')
    a('s_mov_b64 exec, s[82:83]', 's_nop 1')
    a(f'{sk}:')
def bf16r(a, dst, src):
    a(f'v_cvt_pk_bf16_f32 v{dst}, v{src}, v{src}', f'v_and_b32 v{dst}, 0xffff0000, v{dst}')
def dpp(a, ins, v, d): a(f'{ins}_dpp v{v}, v{v}, v{v} {d} row_mask:0xf bank_mask:0xf')
def wave_red(a, vs, ts, op='v_add_f32'):
    pad = max(0, 2 - (len(vs) - 1))
    for d in ('quad_perm:[1,0,3,2]', 'quad_perm:[2,3,0,1]', 'row_half_mirror', 'row_mirror'):
        a('s_nop 1')
        for v in vs: dpp(a, op, v, d)
    for p in ('v_permlane16_swap_b32', 'v_permlane32_swap_b32'):
        for v, t in zip(vs, ts): a(f'v_mov_b32 v{t}, v{v}')
        a('s_nop 1')
        for v, t in zip(vs, ts): a(f'{p} v{t}, v{v}')
        a('s_nop 0')
        for v, t in zip(vs, ts): a(f'{op} v{v}, v{v}, v{t}')
def groups_red(a, v, t, op):
    a('s_nop 1'); dpp(a, op, v, 'row_ror:8')
    for p in ('v_permlane16_swap_b32', 'v_permlane32_swap_b32'):
        a(f'v_mov_b32 v{t}, v{v}', 's_nop 1', f'{p} v{t}, v{v}', 's_nop 0', f'{op} v{v}, v{v}, v{t}')
def swap_reduce(a, base, n, p):
    a('s_nop 1')
    for i in range(n): a(f'{p} v{base+i}, v{base+n+i}')
    a('s_nop 0')
    for i in range(n): a(f'v_add_f32 v{base+i}, v{base+i}, v{base+n+i}')
def unpack5(a, src, dst):
    for j in range(5): a(f'v_lshlrev_b32 v{dst+2*j}, 16, v{src+j}', f'v_and_b32 v{dst+2*j+1}, 0xffff0000, v{src+j}')
def layernorm(a, x, t):
    s1, s2, u, w2, sd, mean = t, t+1, t+2, t+3, t+4, t+5
    a('s_nop 0', f'v_readfirstlane_b32 s{S_T0}, v{x}', 's_nop 1')
    a(f'v_subrev_f32 v{s1}, s{S_T0}, v{x}', f'v_mul_f32 v{s2}, v{s1}, v{s1}')
    for i in range(1, 10):
        a(f'v_subrev_f32 v{u}, s{S_T0}, v{x+i}', f'v_add_f32 v{s1}, v{s1}, v{u}', f'v_fmac_f32 v{s2}, v{u}, v{u}')
    wave_red(a, [s1, s2], [u, w2])
    a(f'v_mul_f32 v{s1}, 0x{INV640:08x}, v{s1}', f'v_mul_f32 v{s2}, 0x{INV640:08x}, v{s2}')
    a(f'v_fma_f32 v{s2}, -v{s1}, v{s1}, v{s2}', f'v_max_f32 v{s2}, 0, v{s2}')
    a(f'v_add_f32 v{mean}, s{S_T0}, v{s1}')
    bf16r(a, s2, s2)
    a(f'v_add_f32 v{s2}, 0x{EPS:08x}, v{s2}')
    bf16r(a, s2, s2)
    a(f'v_sqrt_f32 v{sd}, v{s2}')
    bf16r(a, mean, mean)
    bf16r(a, sd, sd)
    a(f'v_rcp_f32 v{sd}, v{sd}')
    for i in range(0, 10, 2):
        a(f'v_sub_f32 v{x+i}, v{x+i}, v{mean}', f'v_sub_f32 v{x+i+1}, v{x+i+1}, v{mean}', f'v_cvt_pk_bf16_f32 v{u}, v{x+i}, v{x+i+1}',
          f'v_lshlrev_b32 v{x+i}, 16, v{u}', f'v_and_b32 v{x+i+1}, 0xffff0000, v{u}', f'v_mul_f32 v{x+i}, v{x+i}, v{sd}', f'v_mul_f32 v{x+i+1}, v{x+i+1}, v{sd}')
def pv_unit(a, vreg, plo, phi):
    for j in range(3):
        for i in range(4):
            a(f'v_dot2_f32_bf16 v{V_ACC+8*j+2*i}, v{vreg+4*j+i}, v{plo}, v{V_ACC+8*j+2*i}')
            a(f'v_dot2_f32_bf16 v{V_ACC+8*j+2*i+1}, v{vreg+4*j+i}, v{phi}, v{V_ACC+8*j+2*i+1}')
def acc_reduce_write(a, lbase, t):
    a('s_nop 2')
    for i in range(24): dpp(a, 'v_add_f32', V_ACC+i, 'row_ror:8')
    swap_reduce(a, V_ACC, 12, 'v_permlane16_swap_b32')
    a(f'v_and_b32 v{t}, 7, v{V_LANE}', f'v_mul_u32_u24 v{t}, 96, v{t}', f'v_bfe_u32 v{t+1}, v{V_LANE}, 4, 1', f'v_mul_u32_u24 v{t+1}, 48, v{t+1}', f'v_add_u32 v{t}, v{t}, v{t+1}',
      f'v_lshrrev_b32 v{t+1}, 5, v{V_LANE}', f'v_mul_u32_u24 v{t+1}, 24, v{t+1}', f's_mul_i32 s{S_T0}, s{S_WAVE}, 768', f'v_add3_u32 v{t}, v{t}, v{t+1}, s{S_T0}')
    swap_reduce(a, V_ACC, 6, 'v_permlane32_swap_b32')
    for i in range(3): a(f'ds_write_b64 v{t}, v[{V_ACC+2*i}:{V_ACC+2*i+1}] offset:{lbase+8*i}')
def m_index(a):
    a(f's_sub_u32 s{S_T0}, s2, 160', f's_and_b32 s{S_T1}, s{S_T0}, 7', f's_mul_i32 s{S_T1}, s{S_T1}, 12', f's_lshr_b32 s{S_T0}, s{S_T0}, 3', f's_add_u32 s{S_M}, s{S_T0}, s{S_T1}')
def role_branch(a, wbody, mbody):
    lm = a.label('rm'); le = a.label('re')
    a('s_cmp_ge_u32 s2, 160', f's_cbranch_scc1 {lm}'); wbody(); a(f's_branch {le}', f'{lm}:'); mbody(); a(f'{le}:')
def spin_begin(a, lbl): a(f's_mov_b32 s{S_SPIN}, 0', f'{lbl}:')
def spin_end(a, lbl, regs, t):
    ok = a.label('ok')
    a(f'v_max3_u32 v{t}, v{regs[0]}, v{regs[1]}, v{regs[2]}'); rest = regs[3:]
    while len(rest) >= 2:
        a(f'v_max3_u32 v{t}, v{t}, v{rest[0]}, v{rest[1]}'); rest = rest[2:]
    if rest: a(f'v_max_u32 v{t}, v{t}, v{rest[0]}')
    a(f'v_cmp_eq_u32 vcc, -1, v{t}', f's_cbranch_vccz {ok}')
    a(f's_add_u32 s{S_SPIN}, s{S_SPIN}, 1', f's_cmp_lt_u32 s{S_SPIN}, 200000', f's_cbranch_scc1 {lbl}')
    a(f'{ok}:')
def sent_check(a, regs, t):
    a(f'v_max3_u32 v{t}, v{regs[0]}, v{regs[1]}, v{regs[2]}'); rest = regs[3:]
    while len(rest) >= 2:
        a(f'v_max3_u32 v{t}, v{t}, v{rest[0]}, v{rest[1]}'); rest = rest[2:]
    if rest: a(f'v_max_u32 v{t}, v{t}, v{rest[0]}')
    a(f'v_cmp_eq_u32 vcc, -1, v{t}')
def poll2(a, issue_fn, nregs, baseA, baseB, nloads, post, t):
    lbl = a.label('spin'); okA = a.label('okA'); okB = a.label('okB'); join = a.label('join')
    a(f's_mov_b32 s{S_SPIN}, 0')
    issue_fn(baseA)
    a(f'{lbl}:')
    issue_fn(baseB)
    a(f's_waitcnt vmcnt({nloads})'); sent_check(a, list(range(baseA, baseA+nregs)), t); a(f's_cbranch_vccz {okA}')
    issue_fn(baseA)
    a(f's_waitcnt vmcnt({nloads})'); sent_check(a, list(range(baseB, baseB+nregs)), t); a(f's_cbranch_vccz {okB}')
    a(f's_add_u32 s{S_SPIN}, s{S_SPIN}, 1', f's_cmp_lt_u32 s{S_SPIN}, 100000', f's_cbranch_scc1 {lbl}', f's_branch {okA}')
    a(f'{okB}:'); post(baseB); a(f's_branch {join}')
    a(f'{okA}:'); post(baseA)
    a(f'{join}:')
def code_prefetch(a, start, end, n, vtmp):
    pc = a.label('pc')
    a(f's_getpc_b64 s[{SRD_C}:{SRD_C+1}]', f'{pc}:')
    if start == 'L_code_start': a(f's_sub_u32 s{SRD_C}, s{SRD_C}, {pc}-{start}', f's_subb_u32 s{SRD_C+1}, s{SRD_C+1}, 0')
    else: a(f's_add_u32 s{SRD_C}, s{SRD_C}, {start}-{pc}', f's_addc_u32 s{SRD_C+1}, s{SRD_C+1}, 0')
    a(f's_and_b32 s{SRD_C+1}, s{SRD_C+1}, 0xffff', f's_mov_b32 s{SRD_C+2}, {end}-{start}', f's_mov_b32 s{SRD_C+3}, 0x20000')
    a(f's_lshr_b32 s{S_T0}, s2, 3', f's_mul_i32 s{S_T0}, s{S_T0}, ((({end}-{start})+31)/32+15)&0xfffffff0')
    a(f'v_lshlrev_b32 v{vtmp}, 4, v{V_LANE}')
    for i in range(n): a(f'buffer_load_dwordx4 v[{V_CPF}:{V_CPF+3}], v{vtmp}, {R(SRD_C)}, s{S_T0} offen offset:{1024*i}')

def prologue(a, endlabel):
    a('s_cmp_ge_u32 s2, 256', f's_cbranch_scc1 {endlabel}')
    a('s_load_dwordx16 s[36:51], s[0:1], 0', 's_load_dwordx8 s[52:59], s[0:1], 64', 's_load_dwordx2 s[60:61], s[0:1], 96')
    a(f'v_lshrrev_b32 v{V_LANE}, 6, v0', f'v_mov_b32 v{V_ZERO}, 0', f'v_readfirstlane_b32 s{S_WAVE}, v{V_LANE}', f'v_and_b32 v{V_LANE}, 63, v0')
    a(f'v_lshrrev_b32 v{V_T}, 3, v{V_LANE}', f'v_mul_u32_u24 v{V_T}, 384, v{V_T}', f'v_and_b32 v{V_T+1}, 7, v{V_LANE}', f'v_lshl_add_u32 v{V_OFFB}, v{V_T+1}, 4, v{V_T}')
    a(f's_mov_b32 s{S_SCALE}, 0x{SCALE:08x}', f's_mov_b32 s{S_LOG2E}, 0x{LOG2E:08x}')
    a(f's_lshr_b32 s{S_T0}, s2, 3', f's_and_b32 s{S_MEM}, s2, 7', f's_lshl_b32 s{S_T1}, s{S_MEM}, 2', f's_add_u32 s{S_T0}, s{S_T0}, s{S_T1}', f's_and_b32 s{S_HEAD}, s{S_T0}, 31')
    a(f's_lshl_b32 s{S_ROW}, s{S_HEAD}, 3', f's_add_u32 s{S_ROW}, s{S_ROW}, s{S_MEM}')
    a('s_waitcnt lgkmcnt(0)')
    srd(a, SRD_WS, P_WS, WS_USED)
    for r in (SRD_C, SRD_D, SRD_E): srd(a, r, P_WS, WS_USED)

V_PA, V_PB, S_PA, S_PB, S_PRE = 48, 49, 87, 100, 101
def w_setup(a):
    srd(a, SRD_C, P_WO, 7864320)
    a(f's_and_b32 s{S_T0}, s2, 7', f's_mul_i32 s{S_T0}, s{S_T0}, 768', f's_mul_i32 s{S_T1}, s{S_WAVE}, 192', f's_add_u32 s{S_T0}, s{S_T0}, s{S_T1}',
      f's_mul_i32 s{S_T0}, s{S_T0}, 1280', f's_lshr_b32 s{S_T1}, s2, 3', f's_lshl_b32 s{S_T1}, s{S_T1}, 6', f's_add_u32 s{S_PA}, s{S_T0}, s{S_T1}')
    a(f'v_lshrrev_b32 v{V_PA}, 2, v{V_LANE}', f'v_mul_u32_u24 v{V_PA}, 1280, v{V_PA}', f'v_and_b32 v{V_PB}, 3, v{V_LANE}', f'v_lshl_add_u32 v{V_PA}, v{V_PB}, 4, v{V_PA}')
def w_loads():
    return [f'buffer_load_dwordx4 v[{WGT+4*p}:{WGT+4*p+3}], v{V_PA}, {R(SRD_C)}, s{S_PA} offen nt\ns_add_u32 s{S_PA}, s{S_PA}, {16*1280}' for p in range(12)]
def m_setup(a):
    a(f's_cmp_ge_u32 s{S_WAVE}, 2', f's_cselect_b32 s{S_T0}, s{P_WU}, s{P_WG}', f's_cselect_b32 s{S_T1}, s{P_WU+1}, s{P_WG+1}')
    srd(a, SRD_C, S_T0, 1966080); srd(a, SRD_D, P_WD, 1966080)
    a(f'v_and_b32 v{V_PB}, 127, v0', f'v_lshrrev_b32 v{V_PA}, 1, v{V_PB}', f'v_mul_u32_u24 v{V_PA}, 3072, v{V_PA}', f'v_and_b32 v{V_PB}, 1, v{V_PB}', f'v_lshl_add_u32 v{V_PA}, v{V_PB}, 4, v{V_PA}')
    a(f's_lshl_b32 s{S_PA}, s{S_M}, 5')
    a(f'v_mul_u32_u24 v{V_PB}, 205, v0', f'v_lshrrev_b32 v{V_PB}, 14, v{V_PB}', f'v_mul_u32_u24 v50, 80, v{V_PB}', f'v_sub_u32 v50, v0, v50',
      f'v_mul_u32_u24 v{V_PB}, 1280, v{V_PB}', f'v_lshl_add_u32 v{V_PB}, v50, 4, v{V_PB}', f's_mul_i32 s{S_PB}, s{S_M}, {16*1280}')
def m_loads():
    l = [f'buffer_load_dwordx4 v[{WGT+4*p}:{WGT+4*p+3}], v{V_PA}, {R(SRD_C)}, s{S_PA} offen nt\ns_add_u32 s{S_PA}, s{S_PA}, {64*3072}' for p in range(10)]
    l += [f'buffer_load_dwordx4 v[{WGT+40+4*i}:{WGT+40+4*i+3}], v{V_PB}, {R(SRD_D)}, s{S_PB} offen nt\ns_add_u32 s{S_PB}, s{S_PB}, 3840' for i in range(6)]
    return l
def w_weights(a):
    w_setup(a)
    for l in w_loads(): a(l)
def m_weights(a):
    m_setup(a)
    for l in m_loads(): a(l)
NW_W, NW_M = 12, 16

def setoff(a):
    a(f's_add_u32 s{S_OFF}, s{S_NX}, s{S_ROT}', f's_and_b32 s{S_OFF}, s{S_OFF}, 2047', f's_mul_i32 s{S_OFF}, s{S_OFF}, 6144', f's_add_u32 s{S_OFF}, s{S_OFF}, s{S_HB}')
def issue(a, r, srd_=None):
    srd_ = SRD_K if srd_ is None else srd_
    for j in range(6): a(f'buffer_load_dwordx4 v[{r+4*j}:{r+4*j+3}], v{V_OFFB}, {R(srd_)}, s{S_OFF} offen offset:{128*(j%3)+3072*(j//3)} nt')
def atomic(a):
    a(f'v_mov_b32 v{V_ATOM}, 1', 's_mov_b64 exec, 1', f'buffer_atomic_add v{V_ATOM}, v{V_ZERO}, {WS}, s{S_CNT} offen sc0', 's_mov_b64 exec, -1')
def static_next(a):
    a(f's_mov_b32 s{S_NX}, s{S_SU}', f's_add_u32 s{S_SU}, s{S_SU}, 32', f's_add_u32 s{S_K}, s{S_K}, 1')
def scores(a, r):
    ta = (V_T, V_T+2, V_T+3); tb = (V_T+1, V_T+4, V_T+5)
    for i in range(4):
        for u, ts in ((0, ta), (1, tb)):
            for j, t in enumerate(ts):
                c = '0' if i == 0 else f'v{t}'
                a(f'v_dot2_f32_bf16 v{t}, v{r+12*u+4*j+i}, v{V_Q+4*j+i}, {c}')
    a('s_nop 1')
    a(f'v_add_f32 v{ta[0]}, v{ta[0]}, v{ta[1]}', f'v_add_f32 v{tb[0]}, v{tb[0]}, v{tb[1]}', f'v_add_f32 v{ta[0]}, v{ta[0]}, v{ta[2]}', f'v_add_f32 v{tb[0]}, v{tb[0]}, v{tb[2]}')
    for d in ('quad_perm:[1,0,3,2]', 'quad_perm:[2,3,0,1]', 'row_half_mirror'):
        a('s_nop 0'); dpp(a, 'v_add_f32', V_T, d); dpp(a, 'v_add_f32', V_T+1, d)
    a(f'v_cvt_pk_bf16_f32 v{V_T+2}, v{V_T}, v{V_T+1}', f'v_lshlrev_b32 v{V_T}, 16, v{V_T+2}', f'v_and_b32 v{V_T+1}, 0xffff0000, v{V_T+2}',
      f'v_mul_f32 v{V_T}, s{S_SCALE}, v{V_T}', f'v_mul_f32 v{V_T+1}, s{S_SCALE}, v{V_T+1}',
      f'v_cvt_pk_bf16_f32 v{V_T+2}, v{V_T}, v{V_T+1}', f'v_lshlrev_b32 v{V_T}, 16, v{V_T+2}', f'v_and_b32 v{V_T+1}, 0xffff0000, v{V_T+2}')
def k_step(a, slot, base=None):
    scores(a, V_RING + 24*slot if base is None else base)
    dy = a.label('kd'); jn = a.label('kj')
    a(f's_cmp_lt_i32 s{S_DST+slot}, 0', f's_mov_b64 exec, s[{S_MASK}:{S_MASK+1}]', f's_cbranch_scc1 {dy}')
    a(f'v_add_u32 v{V_T+2}, s{S_DST+slot}, v{V_SCA}', f'ds_write_b64 v{V_T+2}, v[{V_T}:{V_T+1}] offset:{L_SC}', f's_branch {jn}')
    a(f'{dy}:', f's_and_b32 s{S_T0}, s{S_DST+slot}, 0x7fffffff', f'buffer_store_dwordx2 v[{V_T}:{V_T+1}], v{V_G8}, {WS}, s{S_T0} offen sc1', f'{jn}:')
    a('s_mov_b64 exec, -1')
def v_step(a, slot):
    r = V_RING + 24*slot; sa, sb = V_SC+2*slot, V_SC+2*slot+1
    t1, t2, t3, t4 = V_T, V_T+2, V_T+3, V_T+4
    a(f'v_max3_f32 v{t1}, v{V_M}, v{sa}, v{sb}', f'v_sub_f32 v{t2}, v{V_M}, v{t1}', f'v_sub_f32 v{t3}, v{sa}, v{t1}', f'v_sub_f32 v{t4}, v{sb}, v{t1}',
      f'v_mul_f32 v{t2}, s{S_LOG2E}, v{t2}', f'v_mul_f32 v{t3}, s{S_LOG2E}, v{t3}', f'v_mul_f32 v{t4}, s{S_LOG2E}, v{t4}',
      f'v_exp_f32 v{t2}, v{t2}', f'v_exp_f32 v{t3}, v{t3}', f'v_exp_f32 v{t4}, v{t4}', f'v_mov_b32 v{V_M}, v{t1}',
      f'v_fma_f32 v{V_L}, v{V_L}, v{t2}, v{t3}', f'v_cvt_pk_bf16_f32 v{t1}, v{t3}, 0', f'v_cvt_pk_bf16_f32 v{t1+1}, 0, v{t3}',
      f'v_add_f32 v{V_L}, v{V_L}, v{t4}', f'v_cvt_pk_bf16_f32 v{t4+1}, v{t4}, 0', f'v_cvt_pk_bf16_f32 v{t4}, 0, v{t4}')
    for i in range(12):
        a(f'v_pk_mul_f32 v[{V_ACC+2*i}:{V_ACC+2*i+1}], v[{V_ACC+2*i}:{V_ACC+2*i+1}], v[{t2}:{t2+1}] op_sel_hi:[1,0]')
    pv_unit(a, r, t1, t1+1)
    pv_unit(a, r+12, t4+1, t4)

def startup(a):
    P = OPT['P']; NC = 2 if OPT['cpf'] else 0
    X, XF, W = 64, 70, 80
    srd(a, SRD_A, P_X, 1280); srd(a, SRD_B, P_WQ, 7864320)
    a(f'v_lshlrev_b32 v{V_T}, 2, v{V_LANE}', f's_mov_b32 s{S_T0}, {EPOCH}')
    a(f'buffer_load_dword v{V_E}, v{V_ZERO}, {WS}, s{S_T0} offen sc1')
    for j in range(5): a(f'buffer_load_dword v{X+j}, v{V_T}, {R(SRD_A)}, 0 offen offset:{256*j}')
    a(f'v_lshrrev_b32 v{V_T+1}, 3, v{V_LANE}', f'v_mul_u32_u24 v{V_T+1}, 12288, v{V_T+1}', f'v_and_b32 v{V_T+2}, 7, v{V_LANE}', f'v_lshl_add_u32 v{V_T+1}, v{V_T+2}, 4, v{V_T+1}')
    a(f's_mul_i32 s70, s{S_MEM}, 80', f's_lshl_b32 s{S_T1}, s{S_WAVE}, 3', f's_add_u32 s70, s70, s{S_T1}',
      f's_mul_i32 s{S_T1}, s70, 12288', f's_mul_i32 s{S_T2}, s{S_HEAD}, 384', f's_add_u32 s{S_T1}, s{S_T1}, s{S_T2}')
    third = a.label('q3')
    for u in range(3):
        if u == 2: a(f's_cmp_ge_u32 s{S_WAVE}, 2', f's_cbranch_scc1 {third}')
        for j in range(3): a(f'buffer_load_dwordx4 v[{W+12*u+4*j}:{W+12*u+4*j+3}], v{V_T+1}, {R(SRD_B)}, s{S_T1} offen offset:{128*j} nt')
        a(f's_add_u32 s{S_T1}, s{S_T1}, {32*12288}')
    a(f'{third}:')
    srd(a, SRD_K, P_K, KV_BYTES); srd(a, SRD_V, P_V, KV_BYTES)
    for i in range(4): a(f'v_mov_b32 v{V_T+2+i}, -1')
    a(f's_lshl_b32 s{S_T0}, s{S_ROW}, 10', f's_add_u32 s{S_T0}, s{S_T0}, {OP}', f'v_lshlrev_b32 v{V_T}, 2, v0')
    a(f'buffer_store_dword v{V_T+2}, v{V_T}, {WS}, s{S_T0} offen sc1')
    a(f's_lshl_b32 s{S_T0}, s{S_ROW}, 11', f's_add_u32 s{S_T0}, s{S_T0}, {SC}', f'v_lshlrev_b32 v{V_T+1}, 3, v0')
    a(f'buffer_store_dwordx2 v[{V_T+2}:{V_T+3}], v{V_T+1}, {WS}, s{S_T0} offen sc1')
    def wclr():
        sk = a.label('wc')
        a(f's_cmp_lg_u32 s{S_WAVE}, 0', f's_cbranch_scc1 {sk}')
        a(f's_and_b32 s{S_T0}, s2, 7', f's_mul_i32 s{S_T0}, s{S_T0}, 2560', f's_lshr_b32 s{S_T1}, s2, 3', f's_lshl_b32 s{S_T1}, s{S_T1}, 7',
          f's_add_u32 s{S_T0}, s{S_T0}, s{S_T1}', f's_add_u32 s{S_T0}, s{S_T0}, {HP}')
        a('v_cmp_gt_u32 vcc, 32, v0', 's_and_saveexec_b64 s[34:35], vcc')
        for r in range(OPT['hr']):
            a(f'buffer_store_dword v{V_T+2}, v{V_T}, {WS}, s{S_T0} offen sc1')
            if r < OPT['hr']-1: a(f's_add_u32 s{S_T0}, s{S_T0}, {HPS}')
        a('s_mov_b64 exec, s[34:35]', f'{sk}:')
    def mclr():
        m_index(a)
        sk = a.label('mc')
        a(f's_cmp_ge_u32 s{S_WAVE}, 3', f's_cbranch_scc1 {sk}')
        a(f'v_lshrrev_b32 v{V_T}, 2, v0', f'v_mul_u32_u24 v{V_T}, 6144, v{V_T}', f'v_and_b32 v{V_T+1}, 3, v0', f'v_lshl_add_u32 v{V_T}, v{V_T+1}, 4, v{V_T}',
          f's_lshl_b32 s{S_T0}, s{S_M}, 6', f's_add_u32 s{S_T0}, s{S_T0}, {YP}')
        a('v_cmp_gt_u32 vcc, 160, v0', 's_and_saveexec_b64 s[34:35], vcc', f'buffer_store_dwordx4 v[{V_T+2}:{V_T+5}], v{V_T}, {WS}, s{S_T0} offen sc1', 's_mov_b64 exec, s[34:35]', f'{sk}:')
    role_branch(a, wclr, mclr)
    sk = a.label('cz')
    a(f's_lshl_b32 s{S_CNT}, s{S_HEAD}, 8', f's_add_u32 s{S_CNT}, s{S_CNT}, {CNT}')
    a(f's_or_b32 s{S_T0}, s{S_MEM}, s{S_WAVE}', f's_cmp_lg_u32 s{S_T0}, 0', f's_cbranch_scc1 {sk}', 's_mov_b64 exec, 1')
    a(f'buffer_store_dword v{V_ZERO}, v{V_ZERO}, {WS}, s{S_CNT} offen sc1', f'buffer_store_dword v{V_ZERO}, v{V_ZERO}, {WS}, s{S_CNT} offen offset:128 sc1', 's_mov_b64 exec, -1', f'{sk}:')
    a(f's_mul_i32 s{S_HB}, s{S_HEAD}, {HEAD_BYTES}', f"s_mul_i32 s{S_ROT}, s{S_HEAD}, {OPT['hrot']}")
    a(f's_lshl_b32 s{S_SU}, s{S_MEM}, 2', f's_add_u32 s{S_SU}, s{S_SU}, s{S_WAVE}', f's_mov_b32 s{S_K}, 0')
    a(f's_lshl_b32 s{S_SCB0}, s{S_HEAD}, 14', f's_add_u32 s{S_SCB0}, s{S_SCB0}, {SC}', f's_or_b32 s{S_SCB}, s{S_SCB0}, 0x80000000')
    nopf = a.label('nopf'); pfd = a.label('pfd')
    a(f's_cmp_ge_u32 s{S_WAVE}, 3', f's_cbranch_scc1 {nopf}')
    if NC: code_prefetch(a, 'L_code_start', 'L_code_end', NC, V_T)
    for k in range(P):
        static_next(a); setoff(a); issue(a, PF + 24*k)
    a(f's_waitcnt vmcnt({7+NC+6*P})', f's_branch {pfd}', f'{nopf}:', 's_waitcnt vmcnt(7)', f'{pfd}:')
    a(f'v_readfirstlane_b32 s{S_TAG}, v{V_E}')
    unpack5(a, X, XF)
    a(f's_add_u32 s{S_TAG}, s{S_TAG}, 1')
    for i in range(24): a(f'v_mov_b32 v{V_ACC+i}, 0')
    layernorm(a, XF, V_T+4)
    for j in range(5): a(f'v_cvt_pk_bf16_f32 v{X+j}, v{XF+2*j}, v{XF+2*j+1}')
    a(f's_mul_i32 s{S_T2}, s{S_WAVE}, 1280', f'v_lshlrev_b32 v{V_T}, 2, v{V_LANE}', f'v_add_u32 v{V_T}, s{S_T2}, v{V_T}')
    for j in range(5): a(f'ds_write_b32 v{V_T}, v{X+j} offset:{L_XN+256*j}')
    a(f's_lshl_b32 s{S_T0}, s70, 1', f's_add_u32 s{S_T0}, s{S_T0}, s{S_T2}', f'v_lshrrev_b32 v{V_T}, 3, v{V_LANE}', f'v_lshlrev_b32 v{V_T}, 1, v{V_T}', f'v_add_u32 v{V_T}, s{S_T0}, v{V_T}')
    a('s_waitcnt lgkmcnt(0)')
    for u in range(3): a(f'ds_read_u16 v{X+u}, v{V_T} offset:{L_XN+64*u}')
    w3 = a.label('w3'); w3d = a.label('w3d')
    a(f's_cmp_ge_u32 s{S_WAVE}, 3', f's_cbranch_scc1 {w3}', f's_waitcnt lgkmcnt(0) vmcnt({NC+6*P})', f's_branch {w3d}',
      f'{w3}:', 's_waitcnt lgkmcnt(0) vmcnt(0)', f'{w3d}:')
    NE = OPT['wsplit'] if OPT['wmode'] <= 1 else 0
    if NE:
        ske = a.label('ske')
        role_branch(a, lambda: w_setup(a), lambda: m_setup(a))
        a(f's_cmp_ge_u32 s{S_WAVE}, 3', f's_cbranch_scc1 {ske}')
        role_branch(a, lambda: [a(l) for l in w_loads()[:NE]], lambda: [a(l) for l in m_loads()[10:10+NE]])
        a(f'{ske}:')
    stamp(a, 12)
    skip = a.label('q3b')
    for u in range(3):
        if u == 2: a(f's_cmp_ge_u32 s{S_WAVE}, 2', f's_cbranch_scc1 {skip}')
        a(f'v_lshlrev_b32 v{X+4}, 16, v{X+u}')
        pv_unit(a, W+12*u, X+u, X+4)
    a(f'{skip}:')
    acc_reduce_write(a, L_A, V_T)
    a('s_waitcnt lgkmcnt(0)', 's_barrier')
    stamp(a, 1)
    gat = a.label('gat'); qrdy = a.label('qrdy')
    a(f's_cmp_ge_u32 s{S_WAVE}, 3', f's_cbranch_scc1 {gat}')
    a(f'v_lshlrev_b32 v{V_T}, 2, v0')
    for w in range(4): a(f'ds_read_b32 v{96+w}, v{V_T} offset:{L_A+768*w}')
    a(f's_lshl_b32 s{S_T0}, s{S_ROW}, 11', f's_add_u32 s{S_T0}, s{S_T0}, {QP2}', f'v_lshlrev_b32 v{V_T}, 3, v0', 's_waitcnt lgkmcnt(0)')
    a('v_add_f32 v96, v96, v97', 'v_add_f32 v98, v98, v99', f'v_mov_b32 v97, s{S_TAG}', 'v_add_f32 v96, v96, v98')
    a(f'buffer_store_dwordx2 v[96:97], v{V_T}, {WS}, s{S_T0} offen sc1')
    if OPT['wmode'] == 1: a('s_waitcnt vmcnt(0)')
    if OPT['wmode'] <= 1:
        if NE:
            role_branch(a, lambda: [a(l) for l in w_loads()[NE:]], lambda: [a(l) for l in m_loads()[:10] + m_loads()[10+NE:]])
        else:
            role_branch(a, lambda: w_weights(a), lambda: m_weights(a))
    a(f's_branch {qrdy}')
    a(f'{gat}:')
    a(f's_lshl_b32 s{S_T0}, s{S_HEAD}, 14', f's_add_u32 s{S_T0}, s{S_T0}, {QP2}')
    a(f's_add_u32 s{S_T1}, s{S_T0}, 4096', f's_add_u32 s{S_T2}, s{S_T0}, 8192', f's_add_u32 s{S_T3}, s{S_T0}, 12288', f'v_lshlrev_b32 v{V_T}, 3, v{V_LANE}')
    def qissue(base):
        for s in range(8):
            for j in range(3):
                r = base + 2*(3*s+j)
                a(f'buffer_load_dwordx2 v[{r}:{r+1}], v{V_T}, {WS}, s{S_T0 + s//2} offen offset:{2048*(s&1)+512*j} sc1')
    def qcheck(base):
        tags = [base + 2*i + 1 for i in range(24)]
        a(f'v_min3_u32 v{V_T+2}, v{tags[0]}, v{tags[1]}, v{tags[2]}', f'v_max3_u32 v{V_T+3}, v{tags[0]}, v{tags[1]}, v{tags[2]}')
        for i in range(3, 23, 2):
            a(f'v_min3_u32 v{V_T+2}, v{V_T+2}, v{tags[i]}, v{tags[i+1]}', f'v_max3_u32 v{V_T+3}, v{V_T+3}, v{tags[i]}, v{tags[i+1]}')
        a(f'v_min_u32 v{V_T+2}, v{V_T+2}, v{tags[23]}', f'v_max_u32 v{V_T+3}, v{V_T+3}, v{tags[23]}')
        a(f'v_xor_b32 v{V_T+2}, s{S_TAG}, v{V_T+2}', f'v_xor_b32 v{V_T+3}, s{S_TAG}, v{V_T+3}', f'v_or_b32 v{V_T+2}, v{V_T+2}, v{V_T+3}')
        a(f'v_cmp_ne_u32 vcc, 0, v{V_T+2}')
    def qpost(base):
        for j in range(3):
            for s in range(1, 8): a(f'v_add_f32 v{base+2*j}, v{base+2*j}, v{base+2*(3*s+j)}')
            a(f'v_cvt_pk_bf16_f32 v{base+2*j}, v{base+2*j}, v{base+2*j}')
            a(f'ds_write_b16 v{V_T+6+j}, v{base+2*j} offset:{L_SM+64}')
    for j in range(3):
        a(f'v_add_u32 v{V_T+1}, {64*j}, v{V_LANE}', f'v_mul_u32_u24 v{V_T+2}, 2731, v{V_T+1}', f'v_lshrrev_b32 v{V_T+2}, 16, v{V_T+2}',
          f'v_mul_u32_u24 v{V_T+3}, 24, v{V_T+2}', f'v_sub_u32 v{V_T+3}, v{V_T+1}, v{V_T+3}',
          f'v_lshrrev_b32 v{V_T+4}, 3, v{V_T+3}', f'v_and_b32 v{V_T+3}, 7, v{V_T+3}', f'v_lshlrev_b32 v{V_T+4}, 6, v{V_T+4}',
          f'v_lshl_add_u32 v{V_T+4}, v{V_T+2}, 3, v{V_T+4}', f'v_add_lshl_u32 v{V_T+6+j}, v{V_T+4}, v{V_T+3}, 1')
    lbl = a.label('qspin'); ok = a.label('qok'); qjoin = a.label('qjoin')
    if OPT['qov']:
        okb = a.label('qokb')
        a(f's_mov_b32 s{S_SPIN}, 0')
        qissue(64)
        a(f'{lbl}:')
        qissue(116)
        a('s_waitcnt vmcnt(24)'); qcheck(64); a(f's_cbranch_vccz {ok}')
        qissue(64)
        a('s_waitcnt vmcnt(24)'); qcheck(116); a(f's_cbranch_vccz {okb}')
        a(f's_add_u32 s{S_SPIN}, s{S_SPIN}, 1', f's_cmp_lt_u32 s{S_SPIN}, 100000', f's_cbranch_scc1 {lbl}', f's_branch {ok}')
        a(f'{okb}:')
        qpost(116)
        a(f's_branch {qjoin}', f'{ok}:')
    else:
        spin_begin(a, lbl)
        qissue(64)
        a('s_waitcnt vmcnt(0)'); qcheck(64)
        a(f's_cbranch_vccz {ok}', f's_add_u32 s{S_SPIN}, s{S_SPIN}, 1', f's_cmp_lt_u32 s{S_SPIN}, 200000', f's_cbranch_scc1 {lbl}', f'{ok}:')
    qpost(64)
    a(f'{qjoin}:')
    stamp(a, 13)
    srd(a, SRD_A, P_DBG, 256)
    a(f'v_mov_b32 v{V_T}, 1', 's_mov_b64 exec, 1', f'buffer_atomic_add v{V_T}, v{V_ZERO}, {R(SRD_A)}, 0 offen', 's_mov_b64 exec, -1')
    if OPT['wmode'] <= 1: role_branch(a, lambda: w_weights(a), lambda: m_weights(a))
    a(f'{qrdy}:')
    a('s_waitcnt lgkmcnt(0)', 's_barrier')
    a(f'v_and_b32 v{V_T}, 7, v{V_LANE}', f'v_lshlrev_b32 v{V_T}, 4, v{V_T}')
    for j in range(3): a(f'ds_read_b128 v[{V_Q+4*j}:{V_Q+4*j+3}], v{V_T} offset:{L_SM+64+128*j}')

def pair_perm(a):
    a(f's_mov_b32 s{S_T2}, 0x05040100', f's_mov_b32 s{S_T3}, 0x07060302')
    def do(pairs):
        for A_, B_ in pairs:
            a(f'v_perm_b32 v50, v{B_}, v{A_}, s{S_T3}', f'v_perm_b32 v{A_}, v{B_}, v{A_}, s{S_T2}', f'v_mov_b32 v{B_}, v50')
    role_branch(a, lambda: do([(WGT+8*q+i, WGT+8*q+4+i) for q in range(6) for i in range(4)]),
                   lambda: do([(WGT+8*q+i, WGT+8*q+4+i) for q in range(8) for i in range(4)]))
def late_loads(a):
    sk = a.label('lx')
    a('s_cmp_lt_u32 s2, 160', f's_cbranch_scc1 {sk}')
    srd(a, SRD_D, P_X, 1280); srd(a, SRD_E, P_WR, 1280)
    a(f'v_lshlrev_b32 v50, 2, v{V_LANE}')
    for j in range(5): a(f'buffer_load_dword v{V_XW+j}, v50, {R(SRD_D)}, 0 offen offset:{256*j}')
    for j in range(5): a(f'buffer_load_dword v{V_XW+5+j}, v50, {R(SRD_E)}, 0 offen offset:{256*j}')
    a(f'{sk}:')
    if OPT['cpf2']: code_prefetch(a, 'L_tail_start', 'L_code_end', 1, 50)

def stream(a):
    NS1, NS = OPT['NS1'], OPT['NS']
    NDYN1 = 2048 - 32*NS1; NDYN = 2048 - 32*NS
    P = OPT['P']
    assert NS <= NS1 <= 64 and NDYN <= 256 and P <= 2 and P < NS
    def prepare(n):
        a(f's_mov_b32 s{S_NX}, s{S_SU}', f's_add_u32 s{S_SU}, s{S_SU}, 32'); setoff(a)
        a(f's_cmp_ge_u32 s{S_K}, {n}')
    a(f'v_lshrrev_b32 v{V_G8}, 3, v{V_LANE}', f'v_lshlrev_b32 v{V_G8}, 3, v{V_G8}', f's_lshl_b32 s{S_T0}, s{S_WAVE}, 12', f'v_add_u32 v{V_SCA}, s{S_T0}, v{V_G8}')
    a(f's_mov_b32 s{S_MASK}, 0x01010101', f's_mov_b32 s{S_MASK+1}, 0x01010101')
    a(f's_lshl_b32 s{S_DST}, s{S_K}, 6')
    static_next(a); setoff(a); issue(a, V_RING, SRD_K)
    a('s_waitcnt lgkmcnt(0)')
    if P:
        sk = a.label('pfs')
        a(f's_cmp_ge_u32 s{S_WAVE}, 3', f's_cbranch_scc1 {sk}', 's_waitcnt vmcnt(6)')
        for k in range(P):
            a(f's_mov_b32 s{S_DST+1}, {64*k}')
            k_step(a, 1, PF + 24*k)
        a(f'{sk}:')
    stamp(a, 2); dstamp(a, 6)
    prepare(NS1)
    loop = a.label('kloop'); drains = []; sws = []
    a(f'{loop}:')
    for t in range(2):
        o = 1 - t
        a('s_waitcnt vmcnt(0)')
        dyn = a.label('kdyn'); cont = a.label('kcont'); dl = a.label('kdrain'); sw = a.label('ksw'); drains.append((dl, t)); sws.append((sw, cont))
        a(f's_cbranch_scc1 {dyn if NDYN1 else dl}')
        issue(a, V_RING + 24*o, SRD_K)
        a(f's_lshl_b32 s{S_DST+o}, s{S_K}, 6')
        if NS1 > NS:
            a(f's_sub_u32 s{S_T0}, s{S_NX}, {32*NS}', f's_lshl_b32 s{S_T0}, s{S_T0}, 6', f's_add_u32 s{S_T0}, s{S_T0}, s{S_SCB}',
              f's_cmp_ge_u32 s{S_K}, {NS}', f's_cselect_b32 s{S_DST+o}, s{S_T0}, s{S_DST+o}')
        a(f's_add_u32 s{S_K}, s{S_K}, 1', f's_cmp_eq_u32 s{S_K}, {NS1}', f's_cbranch_scc1 {sw}')
        a(f'{cont}:')
        k_step(a, t)
        prepare(NS1)
        nxt = a.label('kn') if t == 0 else loop
        a(f's_branch {nxt}')
        if NDYN1:
            a(f'{dyn}:')
            a(f'v_readfirstlane_b32 s{S_NX}, v{V_ATOM}', 's_nop 0', f's_cmp_ge_u32 s{S_NX}, {NDYN1}', f's_cbranch_scc1 {dl}')
            a(f's_add_u32 s{S_NX}, s{S_NX}, {32*NS1}', f's_sub_u32 s{S_T0}, s{S_NX}, {32*NS}', f's_lshl_b32 s{S_T0}, s{S_T0}, 6', f's_add_u32 s{S_DST+o}, s{S_T0}, s{S_SCB}')
            setoff(a); issue(a, V_RING + 24*o, SRD_K); atomic(a)
            a(f's_branch {cont}')
        if t == 0: a(f'{nxt}:')
    for sw, cont in sws:
        a(f'{sw}:')
        if NDYN1: atomic(a)
        srd(a, SRD_E, P_DBG, 256)
        a(f'buffer_load_dword v{V_DBG}, v{V_ZERO}, {R(SRD_E)}, 0 offen sc1')
        a(f's_branch {cont}')
    ventry = [a.label('vent0'), a.label('vent1')]
    for dl, t in drains:
        o = 1 - t
        a(f'{dl}:')
        a(f's_lshl_b32 s{S_SU}, s{S_MEM}, 2', f's_add_u32 s{S_SU}, s{S_SU}, s{S_WAVE}', f's_mov_b32 s{S_K}, 0', f's_add_u32 s{S_CNT}, s{S_CNT}, 128')
        static_next(a); setoff(a); issue(a, V_RING + 24*o, SRD_V)
        k_step(a, t)
        stamp(a, 14)
        dbg_check(a)
        for i in range(24): a(f'v_mov_b32 v{V_ACC+i}, 0')
        a(f'v_mov_b32 v{V_M}, 0x{NEGBIG:08x}', f'v_mov_b32 v{V_L}, 0')
        a('s_waitcnt lgkmcnt(0)', f'ds_read_b64 v[{V_SC+2*o}:{V_SC+2*o+1}], v{V_SCA} offset:{L_SC}')
        prepare(NS)
        a(f's_branch {ventry[o]}')
    done = a.label('sdone'); vdr = []; vsw = []; rep = []
    for t in range(2):
        o = 1 - t
        a(f'{ventry[t]}:')
        a('s_waitcnt vmcnt(0) lgkmcnt(0)')
        dyn = a.label('vdyn'); cont = a.label('vcont'); dl = a.label('vdrain'); sw = a.label('vsw'); rp = a.label('vrp'); rb = a.label('vrb')
        vdr.append((dl, t)); vsw.append((sw, cont)); rep.append((rp, rb, t))
        a(f's_cbranch_scc1 {dyn}')
        issue(a, V_RING + 24*o, SRD_V)
        a(f's_lshl_b32 s{S_T0}, s{S_K}, 6', f'v_add_u32 v{V_T}, s{S_T0}, v{V_SCA}', f'ds_read_b64 v[{V_SC+2*o}:{V_SC+2*o+1}], v{V_T} offset:{L_SC}')
        a(f's_add_u32 s{S_K}, s{S_K}, 1', f's_cmp_eq_u32 s{S_K}, {NS}', f's_cbranch_scc1 {sw}')
        a(f'{cont}:')
        a(f'v_max_u32 v{V_T}, v{V_SC+2*t}, v{V_SC+2*t+1}', f'v_cmp_eq_u32 vcc, -1, v{V_T}', f's_cbranch_vccnz {rp}', f'{rb}:')
        v_step(a, t)
        prepare(NS)
        a(f's_branch {ventry[o]}')
        a(f'{dyn}:')
        a(f'v_readfirstlane_b32 s{S_NX}, v{V_ATOM}', 's_nop 0', f's_cmp_ge_u32 s{S_NX}, {NDYN}', f's_cbranch_scc1 {dl}')
        a(f's_lshl_b32 s{S_DST+o}, s{S_NX}, 6', f's_add_u32 s{S_DST+o}, s{S_DST+o}, s{S_SCB0}', f's_add_u32 s{S_NX}, s{S_NX}, {32*NS}')
        setoff(a); issue(a, V_RING + 24*o, SRD_V)
        a(f'buffer_load_dwordx2 v[{V_SC+2*o}:{V_SC+2*o+1}], v{V_G8}, {WS}, s{S_DST+o} offen sc1')
        atomic(a)
        a(f's_branch {cont}')
    for sw, cont in vsw:
        a(f'{sw}:')
        atomic(a)
        if OPT['pp']: pair_perm(a)
        late_loads(a)
        a(f's_branch {cont}')
    for rp, rb, t in rep:
        lp = a.label('rpl')
        a(f'{rp}:', f's_mov_b32 s{S_SPIN}, 0', f'{lp}:')
        a(f'buffer_load_dwordx2 v[{V_SC+2*t}:{V_SC+2*t+1}], v{V_G8}, {WS}, s{S_DST+t} offen sc1', 's_waitcnt vmcnt(0)')
        a(f'v_max_u32 v{V_T}, v{V_SC+2*t}, v{V_SC+2*t+1}', f'v_cmp_eq_u32 vcc, -1, v{V_T}', f's_cbranch_vccz {rb}')
        a(f's_add_u32 s{S_SPIN}, s{S_SPIN}, 1', f's_cmp_lt_u32 s{S_SPIN}, 200000', f's_cbranch_scc1 {lp}', f's_branch {rb}')
    for dl, t in vdr:
        a(f'{dl}:')
        rp = a.label('drp'); rb = a.label('drb'); lp = a.label('drl')
        a(f'v_max_u32 v{V_T}, v{V_SC+2*t}, v{V_SC+2*t+1}', f'v_cmp_eq_u32 vcc, -1, v{V_T}', f's_cbranch_vccz {rb}', f's_mov_b32 s{S_SPIN}, 0', f'{lp}:')
        a(f'buffer_load_dwordx2 v[{V_SC+2*t}:{V_SC+2*t+1}], v{V_G8}, {WS}, s{S_DST+t} offen sc1', 's_waitcnt vmcnt(0)')
        a(f'v_max_u32 v{V_T}, v{V_SC+2*t}, v{V_SC+2*t+1}', f'v_cmp_eq_u32 vcc, -1, v{V_T}', f's_cbranch_vccz {rb}')
        a(f's_add_u32 s{S_SPIN}, s{S_SPIN}, 1', f's_cmp_lt_u32 s{S_SPIN}, 200000', f's_cbranch_scc1 {lp}', f'{rb}:')
        v_step(a, t)
        a(f's_branch {done}')
    a(f'{done}:')

def phase_t1(a):
    t = V_T
    a('s_nop 2', f'v_mov_b32 v{t+2}, v{V_M}')
    groups_red(a, t+2, t+3, 'v_max_f32')
    a(f'v_sub_f32 v{t+4}, v{V_M}, v{t+2}', f'v_mul_f32 v{t+4}, s{S_LOG2E}, v{t+4}', f'v_exp_f32 v{t+4}, v{t+4}', 's_nop 0', f'v_mul_f32 v{V_L}, v{V_L}, v{t+4}')
    for i in range(12): a(f'v_pk_mul_f32 v[{V_ACC+2*i}:{V_ACC+2*i+1}], v[{V_ACC+2*i}:{V_ACC+2*i+1}], v[{t+4}:{t+5}] op_sel_hi:[1,0]')
    groups_red(a, V_L, t+3, 'v_add_f32')
    a(f'v_mov_b32 v{t+3}, v{V_L}', f's_lshl_b32 s{S_T1}, s{S_WAVE}, 3', f'v_mov_b32 v{t+6}, s{S_T1}', f'ds_write_b64 v{t+6}, v[{t+2}:{t+3}] offset:{L_SM}')
    acc_reduce_write(a, L_A, t+6)
    a('s_waitcnt lgkmcnt(0)', 's_barrier')
    a(f'ds_read_b128 v[100:103], v{V_ZERO} offset:{L_SM}', f'ds_read_b128 v[104:107], v{V_ZERO} offset:{L_SM+16}', f'v_lshlrev_b32 v{t}, 2, v0')
    for w in range(4): a(f'ds_read_b32 v{96+w}, v{t} offset:{L_A+768*w}')
    a(f's_lshl_b32 s{S_T0}, s{S_ROW}, 10', f's_add_u32 s{S_T0}, s{S_T0}, {OP}', 's_waitcnt lgkmcnt(4)')
    a('v_max_f32 v108, v100, v102', 'v_max3_f32 v108, v108, v104, v106')
    for w in range(4): a(f'v_sub_f32 v{110+w}, v{100+2*w}, v108', f'v_mul_f32 v{110+w}, s{S_LOG2E}, v{110+w}')
    for w in range(4): a(f'v_exp_f32 v{110+w}, v{110+w}')
    a('s_waitcnt lgkmcnt(0)', 'v_mul_f32 v96, v96, v110', 'v_mul_f32 v109, v101, v110')
    for w in range(1, 4): a(f'v_fmac_f32 v96, v{96+w}, v{110+w}', f'v_fmac_f32 v109, v{101+2*w}, v{110+w}')
    a('v_cmp_eq_u32 vcc, 192, v0', 's_nop 1', 'v_cndmask_b32 v96, v96, v108, vcc', 'v_cmp_eq_u32 vcc, 193, v0', 's_nop 1', 'v_cndmask_b32 v96, v96, v109, vcc')
    a('v_cmp_lt_u32 vcc, 193, v0', 's_nop 1', f'v_cndmask_b32 v96, v96, v{V_ZERO}, vcc')
    a('v_cmp_gt_u32 vcc, 196, v0', 's_and_saveexec_b64 s[34:35], vcc')
    sk = a.label('t1s')
    a(f's_cbranch_execz {sk}', f'buffer_store_dword v96, v{t}, {WS}, s{S_T0} offen sc1', f'{sk}:', 's_mov_b64 exec, s[34:35]')

def dbg_check(a):
    ok = a.label('dok'); lp = a.label('dlp')
    a(f'v_readfirstlane_b32 s{S_T0}, v{V_DBG}', 's_nop 0', f's_cmp_ge_u32 s{S_T0}, 256', f's_cbranch_scc1 {ok}')
    srd(a, SRD_A, P_DBG, 256)
    a(f's_mov_b32 s{S_SPIN}, 0', f'{lp}:', f'buffer_load_dword v{V_DBG}, v{V_ZERO}, {R(SRD_A)}, 0 offen sc1', 's_waitcnt vmcnt(0)')
    a(f'v_readfirstlane_b32 s{S_T0}, v{V_DBG}', 's_nop 0', f's_cmp_ge_u32 s{S_T0}, 256', f's_cbranch_scc1 {ok}')
    a(f's_add_u32 s{S_SPIN}, s{S_SPIN}, 1', f's_cmp_lt_u32 s{S_SPIN}, 200000', f's_cbranch_scc1 {lp}', f'{ok}:')
    sk = a.label('ep')
    a(f's_or_b32 s{S_T0}, s2, s{S_WAVE}', f's_cmp_lg_u32 s{S_T0}, 0', f's_cbranch_scc1 {sk}')
    a(f'v_mov_b32 v{V_T}, s{S_TAG}', f's_mov_b32 s{S_T0}, {EPOCH}', 's_mov_b64 exec, 1', f'buffer_store_dword v{V_T}, v{V_ZERO}, {WS}, s{S_T0} offen sc1', 's_mov_b64 exec, -1', f'{sk}:')

def phase_w(a):
    a(f's_and_b32 s{S_T0}, s2, 7', f's_lshl_b32 s{S_T0}, s{S_T0}, 2', f's_add_u32 s{S_T0}, s{S_T0}, s{S_WAVE}',
      f's_lshl_b32 s{S_T0}, s{S_T0}, 13', f's_add_u32 s{S_T0}, s{S_T0}, {OP}', f's_add_u32 s{S_T1}, s{S_T0}, 4096', f'v_lshlrev_b32 v{V_T}, 4, v{V_LANE}')
    a(f's_mul_i32 s{S_T2}, s{S_WAVE}, 768', f'v_add_u32 v{V_T+2}, s{S_T2}, v{V_T}')
    a('s_bfm_b64 exec, 49, 0')
    O = 108
    def w_issue(Pr):
        for s in range(8): a(f'buffer_load_dwordx4 v[{Pr+4*s}:{Pr+4*s+3}], v{V_T}, {WS}, s{S_T0 if s < 4 else S_T1} offen offset:{1024*(s&3)} sc1')
    def w_post(Pr):
        Mx, Ls, Fs = 96, 97, 98
        a(f'v_max3_f32 v{Mx}, v{Pr}, v{Pr+4}, v{Pr+8}', f'v_max3_f32 v{Mx}, v{Mx}, v{Pr+12}, v{Pr+16}', f'v_max3_f32 v{Mx}, v{Mx}, v{Pr+20}, v{Pr+24}', f'v_max_f32 v{Mx}, v{Mx}, v{Pr+28}')
        for s in range(8): a(f'v_sub_f32 v{Fs+s}, v{Pr+4*s}, v{Mx}', f'v_mul_f32 v{Fs+s}, s{S_LOG2E}, v{Fs+s}')
        for s in range(8): a(f'v_exp_f32 v{Fs+s}, v{Fs+s}')
        a(f'v_mul_f32 v{Ls}, v{Pr+1}, v{Fs}')
        for s in range(1, 8): a(f'v_fmac_f32 v{Ls}, v{Pr+4*s+1}, v{Fs+s}')
        a(f'v_rcp_f32 v{Ls}, v{Ls}', 's_nop 0')
        for s in range(8): a(f'v_mul_f32 v{Fs+s}, v{Fs+s}, v{Ls}')
        for s in range(8): a(f'v_readlane_b32 s{S_G+s}, v{Fs+s}, 48')
        a('s_nop 1')
        for e in range(4): a(f'v_mul_f32 v{O+e}, s{S_G}, v{Pr+e}')
        for s in range(1, 8):
            for e in range(4): a(f'v_fmac_f32 v{O+e}, s{S_G+s}, v{Pr+4*s+e}')
    if OPT['ov']:
        poll2(a, w_issue, 32, 64, 128, 8, w_post, V_T+1)
    else:
        lbl = a.label('wspin'); spin_begin(a, lbl); w_issue(64); a('s_waitcnt vmcnt(0)'); spin_end(a, lbl, list(range(64, 96)), V_T+1); w_post(64)
    stamp(a, 5)
    for e in range(4): bf16r(a, O+e, O+e)
    a('s_bfm_b64 exec, 48, 0', f'ds_write_b128 v{V_T+2}, v[{O}:{O+3}] offset:{L_OV}', 's_mov_b64 exec, -1')
    a(f'v_lshrrev_b32 v{V_T}, 5, v{V_LANE}', f'v_mul_u32_u24 v{V_T}, 24, v{V_T}', f'v_bfe_u32 v{V_T+1}, v{V_LANE}, 2, 3', f'v_add_lshl_u32 v{V_T}, v{V_T}, v{V_T+1}, 2',
      f'v_add_u32 v{V_T}, s{S_T2}, v{V_T}', 's_waitcnt lgkmcnt(0)')
    U = 112
    for p in range(12): a(f'ds_read_b32 v{U+p}, v{V_T} offset:{L_OV+4*(48*(p&3)+8*(p>>2))}')
    A = 160
    if OPT['pp']:
        a(f's_mov_b32 s{S_T3}, 0x07060302')
        for q in range(6):
            a(f's_waitcnt lgkmcnt({10-2*q})', f'v_perm_b32 v{U+12+(q&1)}, v{U+2*q+1}, v{U+2*q}, s{S_T3}')
            for i in range(4):
                c0 = '0' if q == 0 else f'v{A+2*i}'; c1 = '0' if q == 0 else f'v{A+2*i+1}'
                a(f'v_dot2_f32_bf16 v{A+2*i}, v{WGT+8*q+i}, v{U+12+(q&1)}, {c0}', f'v_dot2_f32_bf16 v{A+2*i+1}, v{WGT+8*q+4+i}, v{U+12+(q&1)}, {c1}')
    else:
      for p in range(12):
        a(f's_waitcnt lgkmcnt({11-p})', f'v_lshrrev_b32 v{U+12+(p&1)}, 16, v{U+p}')
        for i in range(4):
            c0 = '0' if p == 0 else f'v{A+2*i}'; c1 = '0' if p == 0 else f'v{A+2*i+1}'
            a(f'v_dot2_f32_bf16 v{A+2*i}, v{WGT+4*p+i}, v{U+12+(p&1)}, {c0}', f'v_dot2_f32_bf16 v{A+2*i+1}, v{WGT+4*p+i}, v{U+p}, {c1}')
    a('s_nop 2')
    for d in ('row_ror:4', 'row_ror:8'):
        for i in range(8): dpp(a, 'v_add_f32', A+i, d)
    swap_reduce(a, A, 4, 'v_permlane16_swap_b32')
    a(f'v_and_b32 v{V_T}, 3, v{V_LANE}', f'v_lshlrev_b32 v{V_T}, 5, v{V_T}', f'v_bfe_u32 v{V_T+1}, v{V_LANE}, 4, 1', f'v_lshl_add_u32 v{V_T}, v{V_T+1}, 4, v{V_T}',
      f'v_lshrrev_b32 v{V_T+1}, 5, v{V_LANE}', f'v_lshl_add_u32 v{V_T}, v{V_T+1}, 3, v{V_T}', f's_lshl_b32 s{S_T0}, s{S_WAVE}, 7', f'v_add_u32 v{V_T}, s{S_T0}, v{V_T}')
    swap_reduce(a, A, 2, 'v_permlane32_swap_b32')
    a(f'ds_write_b64 v{V_T}, v[{A}:{A+1}] offset:{L_B}', 's_waitcnt lgkmcnt(0)', 's_barrier')
    done = a.label('wd')
    a(f's_cmp_ge_u32 s{S_WAVE}, 1', f's_cbranch_scc1 {done}')
    a(f'v_and_b32 v{V_T}, 31, v0', f'v_lshlrev_b32 v{V_T}, 2, v{V_T}')
    for w in range(4): a(f'ds_read_b32 v{U+w}, v{V_T} offset:{L_B+128*w}')
    a(f's_and_b32 s{S_T0}, s2, 7', f's_mul_i32 s{S_T0}, s{S_T0}, 2560', f's_lshr_b32 s{S_T1}, s2, 3', f's_lshl_b32 s{S_T1}, s{S_T1}, 7',
      f's_add_u32 s{S_T0}, s{S_T0}, s{S_T1}', f's_add_u32 s{S_T0}, s{S_T0}, {HP}', 's_bfm_b64 exec, 32, 0', 's_waitcnt lgkmcnt(0)')
    a(f'v_add_f32 v{U}, v{U}, v{U+1}', f'v_add_f32 v{U+2}, v{U+2}, v{U+3}', f'v_add_f32 v{U}, v{U}, v{U+2}')
    for r in range(OPT['hr']):
        a(f'buffer_store_dword v{U}, v{V_T}, {WS}, s{S_T0} offen sc1')
        if r < OPT['hr']-1: a(f's_add_u32 s{S_T0}, s{S_T0}, {HPS}')
    a('s_mov_b64 exec, -1', f'{done}:')

H_HN, H_X = 70, 64
def phase_h(a):
    a(f's_mul_i32 s{S_T0}, s{S_WAVE}, 5120', f's_add_u32 s{S_T0}, s{S_T0}, {HP}', f"s_and_b32 s{S_T1}, s2, {OPT['hr']-1}", f's_mul_i32 s{S_T1}, s{S_T1}, {HPS}',
      f's_add_u32 s{S_T0}, s{S_T0}, s{S_T1}', f's_add_u32 s{S_T1}, s{S_T0}, 2560', f'v_lshlrev_b32 v{V_T}, 3, v{V_LANE}')
    a(f's_mul_i32 s{S_T2}, s{S_WAVE}, 2560', f'v_add_u32 v{V_T+2}, s{S_T2}, v{V_T}')
    unpack5(a, V_XW, H_HN)
    Q = 160
    def h_issue(P):
        for b in range(2):
            for j in range(5): a(f'buffer_load_dwordx2 v[{P+10*b+2*j}:{P+10*b+2*j+1}], v{V_T}, {WS}, s{S_T0+b} offen offset:{512*j} sc1')
    def h_post(P):
        for i in range(10): a(f'v_add_f32 v{Q+i}, v{P+i}, v{P+10+i}')
    if OPT['ov']:
        poll2(a, h_issue, 20, 80, 140, 10, h_post, V_T+1)
    else:
        lbl = a.label('hspin'); spin_begin(a, lbl); h_issue(80); a('s_waitcnt vmcnt(0)'); spin_end(a, lbl, list(range(80, 100)), V_T+1); h_post(80)
    stamp(a, 7)
    for j in range(5): a(f'ds_write_b64 v{V_T+2}, v[{Q+2*j}:{Q+2*j+1}] offset:{L_C+512*j}')
    a('s_waitcnt lgkmcnt(0)', 's_barrier')
    Rr = 100
    for w in range(4):
        for j in range(5): a(f'ds_read_b64 v[{Rr+10*w+2*j}:{Rr+10*w+2*j+1}], v{V_T} offset:{L_C+2560*w+512*j}')
    a(f's_mul_i32 s{S_T0}, s{S_WAVE}, 1280', f'v_lshlrev_b32 v{V_T}, 2, v{V_LANE}', f'v_add_u32 v{V_T}, s{S_T0}, v{V_T}', 's_waitcnt lgkmcnt(0)')
    for i in range(10): a(f'v_add_f32 v{Rr+i}, v{Rr+i}, v{Rr+10+i}', f'v_add_f32 v{Rr+20+i}, v{Rr+20+i}, v{Rr+30+i}')
    for i in range(10): a(f'v_add_f32 v{Rr+i}, v{Rr+i}, v{Rr+20+i}')
    for j in range(5):
        i = 2*j
        a(f'v_cvt_pk_bf16_f32 v{V_T+1}, v{Rr+i}, v{Rr+i+1}', f'v_lshlrev_b32 v{Rr+i}, 16, v{V_T+1}', f'v_and_b32 v{Rr+i+1}, 0xffff0000, v{V_T+1}',
          f'v_add_f32 v{H_HN+i}, v{H_HN+i}, v{Rr+i}', f'v_add_f32 v{H_HN+i+1}, v{H_HN+i+1}, v{Rr+i+1}', f'v_cvt_pk_bf16_f32 v{H_X+j}, v{H_HN+i}, v{H_HN+i+1}',
          f'v_lshlrev_b32 v{H_HN+i}, 16, v{H_X+j}', f'v_and_b32 v{H_HN+i+1}, 0xffff0000, v{H_X+j}')
        a(f'ds_write_b32 v{V_T}, v{H_X+j} offset:{L_H+256*j}')
    layernorm(a, H_HN, V_T+4)
    for j in range(5):
        a(f'v_cvt_pk_bf16_f32 v{H_X+j}, v{H_HN+2*j}, v{H_HN+2*j+1}', f'ds_write_b32 v{V_T}, v{H_X+j} offset:{L_XN+256*j}')

def phase_m(a):
    U, A = 80, 96
    a(f'v_and_b32 v{V_T}, 127, v0', f'v_lshrrev_b32 v{V_T}, 1, v{V_T}', f'v_lshlrev_b32 v{V_T}, 1, v{V_T}', f's_mul_i32 s{S_T0}, s{S_WAVE}, 1280', f'v_add_u32 v{V_T}, s{S_T0}, v{V_T}', 's_waitcnt vmcnt(0) lgkmcnt(0)')
    for p in range(10): a(f'ds_read_u16 v{U+p}, v{V_T} offset:{L_XN+128*p}')
    if OPT['pp']:
        for q in range(5):
            a(f's_waitcnt lgkmcnt({8-2*q})', f'v_lshl_or_b32 v{U+10+(q&1)}, v{U+2*q+1}, 16, v{U+2*q}')
            for i in range(4):
                c0 = '0' if q == 0 else f'v{A+2*i}'; c1 = '0' if q == 0 else f'v{A+2*i+1}'
                a(f'v_dot2_f32_bf16 v{A+2*i}, v{WGT+8*q+i}, v{U+10+(q&1)}, {c0}', f'v_dot2_f32_bf16 v{A+2*i+1}, v{WGT+8*q+4+i}, v{U+10+(q&1)}, {c1}')
    else:
      for p in range(10):
        a(f's_waitcnt lgkmcnt({9-p})', f'v_lshlrev_b32 v{U+10+(p&1)}, 16, v{U+p}')
        for i in range(4):
            c0 = '0' if p == 0 else f'v{A+2*i}'; c1 = '0' if p == 0 else f'v{A+2*i+1}'
            a(f'v_dot2_f32_bf16 v{A+2*i}, v{WGT+4*p+i}, v{U+p}, {c0}', f'v_dot2_f32_bf16 v{A+2*i+1}, v{WGT+4*p+i}, v{U+10+(p&1)}, {c1}')
    a('s_nop 2')
    for d in ('quad_perm:[2,3,0,1]', 'row_ror:4', 'row_ror:8'):
        for i in range(8): dpp(a, 'v_add_f32', A+i, d)
    swap_reduce(a, A, 4, 'v_permlane16_swap_b32')
    a(f'v_and_b32 v{V_T}, 1, v{V_LANE}', f'v_lshlrev_b32 v{V_T}, 5, v{V_T}', f'v_bfe_u32 v{V_T+1}, v{V_LANE}, 4, 1', f'v_lshl_add_u32 v{V_T}, v{V_T+1}, 4, v{V_T}',
      f'v_lshrrev_b32 v{V_T+1}, 5, v{V_LANE}', f'v_lshl_add_u32 v{V_T}, v{V_T+1}, 3, v{V_T}', f's_lshl_b32 s{S_T0}, s{S_WAVE}, 6', f'v_add_u32 v{V_T}, s{S_T0}, v{V_T}')
    swap_reduce(a, A, 2, 'v_permlane32_swap_b32')
    a(f'ds_write_b64 v{V_T}, v[{A}:{A+1}] offset:{L_D}', 's_waitcnt lgkmcnt(0)', 's_barrier')
    a(f'v_and_b32 v{V_T}, 15, v{V_LANE}', f'v_lshlrev_b32 v{V_T}, 2, v{V_T}')
    for k in range(4): a(f'ds_read_b32 v{U+k}, v{V_T} offset:{L_D+64*k}')
    a(f's_lshl_b32 s{S_T0}, s{S_WAVE}, 7', f'v_lshlrev_b32 v{V_T+1}, 2, v{V_LANE}', f'v_add_u32 v{V_T+1}, s{S_T0}, v{V_T+1}', 's_waitcnt lgkmcnt(0)')
    a(f'v_add_f32 v{U}, v{U}, v{U+1}', f'v_add_f32 v{U+2}, v{U+2}, v{U+3}')
    bf16r(a, U, U); bf16r(a, U+2, U+2)
    a(f'v_mul_f32 v{U+1}, s{S_LOG2E}, v{U}', f'v_sub_f32 v{U+1}, 0, v{U+1}', f'v_exp_f32 v{U+1}, v{U+1}', 's_nop 0', f'v_add_f32 v{U+1}, 1.0, v{U+1}', f'v_rcp_f32 v{U+1}, v{U+1}', 's_nop 0', f'v_mul_f32 v{U}, v{U}, v{U+1}')
    bf16r(a, U, U)
    a(f'v_mul_f32 v{U}, v{U}, v{U+2}')
    bf16r(a, U, U)
    a(f'v_cmp_gt_u32 vcc, 16, v{V_LANE}', 's_nop 1', f'v_cndmask_b32 v{U}, v{V_ZERO}, v{U}, vcc')
    a('s_bfm_b64 exec, 18, 0', f'ds_write_b32 v{V_T+1}, v{U} offset:{L_E}', 's_mov_b64 exec, -1')
    a(f'v_mul_u32_u24 v{V_T}, 205, v0', f'v_lshrrev_b32 v{V_T}, 14, v{V_T}', f'v_lshl_add_u32 v{V_T+1}, v{V_T}, 2, s{S_T0}', 's_waitcnt lgkmcnt(0)')
    for i in range(6): a(f'ds_read_b32 v{U+i}, v{V_T+1} offset:{L_E+12*i}')
    a(f'v_mul_u32_u24 v{V_T+2}, 80, v{V_T}', f'v_sub_u32 v{V_T+2}, v0, v{V_T+2}', f'v_lshlrev_b32 v{V_T+2}, 5, v{V_T+2}', f'v_mul_u32_u24 v{V_T}, 2560, v{V_T}', f'v_add_u32 v{V_T+2}, v{V_T+2}, v{V_T}')
    if OPT['pp']:
        a(f's_mov_b32 s{S_T3}, 0x07060302')
        for q in range(3):
            a(f's_waitcnt lgkmcnt({4-2*q})', f'v_perm_b32 v{U+6+(q&1)}, v{U+2*q+1}, v{U+2*q}, s{S_T3}')
            for e in range(4):
                c0 = '0' if q == 0 else f'v{A+2*e}'; c1 = '0' if q == 0 else f'v{A+2*e+1}'
                a(f'v_dot2_f32_bf16 v{A+2*e}, v{WGT+40+8*q+e}, v{U+6+(q&1)}, {c0}', f'v_dot2_f32_bf16 v{A+2*e+1}, v{WGT+40+8*q+4+e}, v{U+6+(q&1)}, {c1}')
    else:
      for i in range(6):
        a(f's_waitcnt lgkmcnt({5-i})', f'v_lshrrev_b32 v{U+6+(i&1)}, 16, v{U+i}')
        for e in range(4):
            c0 = '0' if i == 0 else f'v{A+2*e}'; c1 = '0' if i == 0 else f'v{A+2*e+1}'
            a(f'v_dot2_f32_bf16 v{A+2*e}, v{WGT+40+4*i+e}, v{U+6+(i&1)}, {c0}', f'v_dot2_f32_bf16 v{A+2*e+1}, v{WGT+40+4*i+e}, v{U+i}, {c1}')
    a('v_cmp_gt_u32 vcc, 240, v0', 's_and_saveexec_b64 s[34:35], vcc', 's_nop 1')
    a(f'ds_write_b128 v{V_T+2}, v[{A}:{A+3}] offset:{L_F}', f'ds_write_b128 v{V_T+2}, v[{A+4}:{A+7}] offset:{L_F+16}')
    a('s_mov_b64 exec, s[34:35]', 's_waitcnt lgkmcnt(0)', 's_barrier')
    done = a.label('md')
    a('v_cmp_gt_u32 vcc, 160, v0', 's_and_saveexec_b64 s[34:35], vcc', f's_cbranch_execz {done}', f'v_lshlrev_b32 v{V_T}, 4, v0')
    for g in range(3): a(f'ds_read_b128 v[{U+4*g}:{U+4*g+3}], v{V_T} offset:{L_F+2560*g}')
    a(f'v_lshrrev_b32 v{V_T}, 2, v0', f'v_mul_u32_u24 v{V_T}, 6144, v{V_T}', f'v_and_b32 v{V_T+1}, 3, v0', f'v_lshl_add_u32 v{V_T}, v{V_T+1}, 4, v{V_T}',
      f's_lshl_b32 s{S_T0}, s{S_M}, 6', f's_add_u32 s{S_T0}, s{S_T0}, {YP}', 's_waitcnt lgkmcnt(0)')
    for e in range(4): a(f'v_add_f32 v{U+e}, v{U+e}, v{U+4+e}')
    for e in range(4): a(f'v_add_f32 v{U+e}, v{U+e}, v{U+8+e}')
    a(f'buffer_store_dwordx4 v[{U}:{U+3}], v{V_T}, {WS}, s{S_T0} offen sc1')
    a(f'{done}:', 's_mov_b64 exec, s[34:35]')

def phase_f(a):
    U = 80
    a(f'v_dot2_f32_bf16 v{V_SIG}, v{H_X}, v{V_XW+5}, 0')
    for j in range(1, 5): a(f'v_dot2_f32_bf16 v{V_SIG}, v{H_X+j}, v{V_XW+5+j}, v{V_SIG}')
    a(f's_mul_i32 s{S_T0}, s{S_M}, 6144', f's_add_u32 s{S_T0}, s{S_T0}, {YP}', f's_add_u32 s{S_T1}, s{S_T0}, 4096', f'v_lshlrev_b32 v{V_T}, 3, v0')
    wave_red(a, [V_SIG], [V_T+1])
    bf16r(a, V_SIG, V_SIG)
    a(f'v_mul_f32 v{V_SIG}, s{S_LOG2E}, v{V_SIG}', f'v_sub_f32 v{V_SIG}, 0, v{V_SIG}', f'v_exp_f32 v{V_SIG}, v{V_SIG}', 's_nop 0',
      f'v_add_f32 v{V_SIG}, 1.0, v{V_SIG}', f'v_rcp_f32 v{V_SIG}, v{V_SIG}', 's_nop 0')
    bf16r(a, V_SIG, V_SIG)
    a(f'v_and_b32 v{V_T+2}, 15, v0', f's_lshl_b32 s{S_T2}, s{S_M}, 4', f'v_add_u32 v{V_T+2}, s{S_T2}, v{V_T+2}', f'v_lshlrev_b32 v{V_T+2}, 1, v{V_T+2}')
    HH = 126
    a(f'ds_read_u16 v{HH}, v{V_T+2} offset:{L_H}', f'ds_read_u16 v{HH+1}, v{V_T+2} offset:{L_XN}')
    srd(a, SRD_A, P_OUT, 1280)
    Y = 100
    def f_issue(P):
        a(f'buffer_load_dwordx2 v[{P}:{P+1}], v{V_T}, {WS}, s{S_T0} offen sc1', f'buffer_load_dwordx2 v[{P+2}:{P+3}], v{V_T}, {WS}, s{S_T0} offen offset:2048 sc1',
          f'buffer_load_dwordx2 v[{P+4}:{P+5}], v{V_T}, {WS}, s{S_T1} offen sc1')
    def f_post(P):
        a(f'v_add_f32 v{Y}, v{P}, v{P+2}', f'v_add_f32 v{Y+1}, v{P+1}, v{P+3}', f'v_add_f32 v{Y}, v{Y}, v{P+4}', f'v_add_f32 v{Y+1}, v{Y+1}, v{P+5}')
    if OPT['ov']:
        poll2(a, f_issue, 6, 80, 88, 3, f_post, V_T+1)
    else:
        lbl = a.label('fspin'); spin_begin(a, lbl); f_issue(80); a('s_waitcnt vmcnt(0)'); spin_end(a, lbl, list(range(80, 86)), V_T+1); f_post(80)
    stamp(a, 10)
    a('s_nop 1'); dpp(a, 'v_add_f32', Y, 'row_ror:8'); dpp(a, 'v_add_f32', Y+1, 'row_ror:8')
    swap_reduce(a, Y, 1, 'v_permlane16_swap_b32')
    a(f'v_mov_b32 v{Y+1}, v{Y}', f'v_and_b32 v{V_T}, 7, v{V_LANE}', f'v_lshlrev_b32 v{V_T}, 3, v{V_T}', f'v_bfe_u32 v{V_T+1}, v{V_LANE}, 4, 1', f'v_lshl_add_u32 v{V_T}, v{V_T+1}, 2, v{V_T}',
      f's_lshl_b32 s{S_T0}, s{S_WAVE}, 6', f'v_add_u32 v{V_T}, s{S_T0}, v{V_T}')
    a(f'v_permlane32_swap_b32 v{Y}, v{Y+1}', 's_nop 0', f'v_add_f32 v{Y}, v{Y}, v{Y+1}')
    a(f'ds_write_b32 v{V_T}, v{Y} offset:{L_G}', 's_waitcnt lgkmcnt(0)', 's_barrier')
    done = a.label('fd')
    a(f's_cmp_ge_u32 s{S_WAVE}, 1', f's_cbranch_scc1 {done}')
    a(f'v_and_b32 v{V_T}, 15, v0', f'v_lshlrev_b32 v{V_T}, 2, v{V_T}')
    U = 104
    for w in range(4): a(f'ds_read_b32 v{U+w}, v{V_T} offset:{L_G+64*w}')
    a(f'v_lshlrev_b32 v{U+16}, 16, v{HH}', f'v_lshlrev_b32 v{U+17}, 16, v{HH+1}', 's_bfm_b64 exec, 16, 0', 's_waitcnt lgkmcnt(0)')
    a(f'v_add_f32 v{U}, v{U}, v{U+1}', f'v_add_f32 v{U+2}, v{U+2}, v{U+3}', f'v_add_f32 v{U}, v{U}, v{U+2}')
    bf16r(a, U, U)
    a(f'v_mul_f32 v{U}, v{U}, v{V_SIG}')
    bf16r(a, U, U)
    a(f'v_add_f32 v{U}, v{U+17}, v{U}')
    bf16r(a, U, U)
    a(f'v_add_f32 v{U}, v{U+16}, v{U}', f'v_cvt_pk_bf16_f32 v{U}, v{U}, v{U}')
    a(f'buffer_store_short v{U}, v{V_T+2}, {R(SRD_A)}, 0 offen', 's_mov_b64 exec, -1', f'{done}:')

DOC = """; ---------------------------------------------------------------------------------------------------------------
;  startup : LN(x); partial q over 80 rows of wq per workgroup; the 8 members of a head exchange the partials through the
;            workspace ({value, tag} granules, tag = epoch word + 1); hand-off areas are reset to a sentinel (0xffffffff) and
;            (scores through the workspace).
; ---------------------------------------------------------------------------------------------------------------"""
def build():
    a = Asm()
    name = NAME_BASE + '_kernel'
    hdr = header([f'; @launch grid=(256,1,1) block=(256,1,1) lds={LDS_BYTES}'])
    hdr += DOC.split('\n')
    a('.amdgcn_target "amdgcn-amd-amdhsa--gfx950"', '.text')
    end = a.label('end')
    a(f'.globl {name}', '.p2align 8', f'.type {name},@function', f'{name}:', 'L_code_start:')
    prologue(a, end)
    stamp(a, 0); dstamp(a, 4, True)
    startup(a)
    stream(a)
    stamp(a, 3); dstamp(a, 7)
    a('L_tail_start:')
    phase_t1(a)
    stamp(a, 4)
    rm = a.label('rolem'); fin = a.label('fin')
    a('s_cmp_ge_u32 s2, 160', f's_cbranch_scc1 {rm}')
    phase_w(a); stamp(a, 6)
    a(f's_branch {fin}', f'{rm}:')
    phase_h(a); stamp(a, 8)
    phase_m(a); stamp(a, 9)
    a(f's_cmp_ge_u32 s{S_M}, 40', f's_cbranch_scc1 {fin}')
    phase_f(a); stamp(a, 11)
    a(f'{fin}:', 's_waitcnt vmcnt(0) lgkmcnt(0)')
    stamp(a, 15); dstamp(a, 5)
    a('s_waitcnt vmcnt(0)')
    a(f'{end}:', 's_endpgm', 'L_code_end:')
    a('.section .rodata,"a"', '.p2align 6')
    a.lines.append(kernel_desc(name, 256, 102))
    return '\n'.join(hdr) + '\n' + a.text()

if __name__ == '__main__':
    for x in sys.argv[1:]:
        if x == 'stamp': OPT['stamp'] = 1
        elif '=' in x:
            k, v = x.split('='); assert k in OPT, k; OPT[k] = int(v)
    sys.stdout.write(build())
```

```python
import sys, struct
from asmlib import *

def f2u(x): return struct.unpack('<I', struct.pack('<f', x))[0]
SCALE = f2u(192 ** -0.5); LOG2E = f2u(1.4426950408889634); INV640 = f2u(1.0/640); EPS = f2u(1e-5); NEGBIG = f2u(-3.0e38)
KV_BYTES = 402653184; HEAD_BYTES = 12582912
CNT, OP, HP, YP, EPOCH, TS, QP2, WS_USED = 0x40000, 0x50000, 0x180000, 0xA0000, 0xE8000, 0xF0000, 0x100000, 0x240000
HPS = 20480 + 256
SC = 0x1B0000
L_RED = 0
L_A, L_B, L_C, L_D, L_E, L_F, L_G = 0, 3072, 4096, 14336, 14592, 15104, 3072
L_XN = 24576
L_H = 29696
L_SM = 34816
L_OV = 35840
L_SC = 38912
LDS_BYTES = 38912 + 16384
S_WAVE = 3
SRD_K, SRD_V, SRD_WS, SRD_A, SRD_B = 8, 12, 16, 20, 24
S_HEAD, S_MEM, S_SCALE, S_LOG2E = 28, 29, 30, 31
S_T0, S_T1, S_T2, S_T3 = 32, 33, 34, 35
P_X, P_K, P_V, P_WQ, P_WO, P_BX, P_WR, P_WG = 36, 38, 40, 42, 44, 46, 48, 50
P_WU, P_WD, P_OUT, P_DBG, P_WS = 52, 54, 56, 58, 60
S_OFF, S_HB, S_CNT, S_NX, S_SPIN, S_M = 62, 63, 64, 65, 66, 67
S_G = 68
S_ROT, S_TAG, S_K, S_SU = 76, 77, 78, 79
S_ROW = 86
S_SCB, S_SCB0 = 71, 69
S_DST = 72
S_MASK = 74
V_SC = 112
V_G8 = 164
V_T1A, V_T4 = 166, 167
S_OPR = 5
V_SCA = 165
SRD_C, SRD_D, SRD_E = 88, 92, 96
V_LANE, V_OFFB, V_ZERO = 1, 2, 3
V_Q, V_ACC, V_M, V_L, V_T = 4, 16, 40, 41, 42
V_ATOM, V_SIG, V_E, V_DBG = 56, 57, 58, 59
V_CPF = 168
V_RING = 64
PF = 116
WGT = 192
V_XW = 176
WS = f's[{SRD_WS}:{SRD_WS+3}]'
OPT = dict(P=0, NS1=60, NS=60, hrot=11, cpf=1, cpf2=1, stamp=0, stampw=0, wmode=1, qov=1, npre=4, ov=0, fast=1, wsplit=6, dstamp=0, hr=1, pp=1)

def srd(a, reg, ptr, size):
    a(f's_mov_b32 s{reg}, s{ptr}', f's_and_b32 s{reg+1}, s{ptr+1}, 0xffff', f's_mov_b32 s{reg+2}, {size}', f's_mov_b32 s{reg+3}, 0x20000')
def R(a_): return f's[{a_}:{a_+3}]'
def stamp(a, slot):
    if not OPT['stamp']: return
    sk = a.label('ts')
    a(f"s_cmp_lg_u32 s{S_WAVE}, {OPT['stampw']}", f's_cbranch_scc1 {sk}')
    a('s_memrealtime s[80:81]', 's_waitcnt lgkmcnt(0)')
    a(f's_lshl_b32 s82, s2, 7', f's_add_u32 s82, s82, {TS + slot*8}')
    a('v_mov_b32 v62, s80', 'v_mov_b32 v63, s81', 's_mov_b64 s[84:85], exec', 's_mov_b64 exec, 1')
    a(f'buffer_store_dwordx2 v[62:63], v{V_ZERO}, {WS}, s82 offen')
    a('s_mov_b64 exec, s[84:85]', 's_nop 1')
    a(f'{sk}:')
def dstamp(a, word, neg=False):
    if not OPT['dstamp']: return
    sk = a.label('ds')
    a(f's_cmp_lg_u32 s{S_WAVE}, 0', f's_cbranch_scc1 {sk}')
    a('s_memrealtime s[80:81]', 's_waitcnt lgkmcnt(0)')
    if neg: a('s_not_b32 s80, s80')
    a(f's_mov_b32 s84, s{P_DBG}', f's_and_b32 s85, s{P_DBG+1}, 0xffff')
    a('v_mov_b32 v62, s80', f'v_mov_b32 v63, {4*word}', 's_mov_b64 s[82:83], exec', 's_mov_b64 exec, 1')
    a(f'global_atomic_umax v63, v62, s[84:85]')
    a('s_mov_b64 exec, s[82:83]', 's_nop 1')
    a(f'{sk}:')
def bf16r(a, dst, src):
    a(f'v_cvt_pk_bf16_f32 v{dst}, v{src}, v{src}', f'v_and_b32 v{dst}, 0xffff0000, v{dst}')
def dpp(a, ins, v, d): a(f'{ins}_dpp v{v}, v{v}, v{v} {d} row_mask:0xf bank_mask:0xf')
def wave_red(a, vs, ts, op='v_add_f32'):
    pad = max(0, 2 - (len(vs) - 1))
    for d in ('quad_perm:[1,0,3,2]', 'quad_perm:[2,3,0,1]', 'row_half_mirror', 'row_mirror'):
        a('s_nop 1')
        for v in vs: dpp(a, op, v, d)
    for p in ('v_permlane16_swap_b32', 'v_permlane32_swap_b32'):
        for v, t in zip(vs, ts): a(f'v_mov_b32 v{t}, v{v}')
        a('s_nop 1')
        for v, t in zip(vs, ts): a(f'{p} v{t}, v{v}')
        a('s_nop 0')
        for v, t in zip(vs, ts): a(f'{op} v{v}, v{v}, v{t}')
def groups_red(a, v, t, op):
    a('s_nop 1'); dpp(a, op, v, 'row_ror:8')
    for p in ('v_permlane16_swap_b32', 'v_permlane32_swap_b32'):
        a(f'v_mov_b32 v{t}, v{v}', 's_nop 1', f'{p} v{t}, v{v}', 's_nop 0', f'{op} v{v}, v{v}, v{t}')
def swap_reduce(a, base, n, p):
    a('s_nop 1')
    for i in range(n): a(f'{p} v{base+i}, v{base+n+i}')
    a('s_nop 0')
    if n % 2 == 0 and base % 2 == 0:
        for i in range(0, n, 2): a(f'v_pk_add_f32 v[{base+i}:{base+i+1}], v[{base+i}:{base+i+1}], v[{base+n+i}:{base+n+i+1}]')
    else:
        for i in range(n): a(f'v_add_f32 v{base+i}, v{base+i}, v{base+n+i}')
def unpack5(a, src, dst):
    for j in range(5): a(f'v_lshlrev_b32 v{dst+2*j}, 16, v{src+j}', f'v_and_b32 v{dst+2*j+1}, 0xffff0000, v{src+j}')
def layernorm(a, x, t):
    s1, s2, u, w2, sd, mean = t, t+1, t+2, t+3, t+4, t+5
    a('s_nop 0', f'v_readfirstlane_b32 s{S_T0}, v{x}', 's_nop 1')
    a(f'v_subrev_f32 v{s1}, s{S_T0}, v{x}', f'v_mul_f32 v{s2}, v{s1}, v{s1}')
    for i in range(1, 10):
        a(f'v_subrev_f32 v{u}, s{S_T0}, v{x+i}', f'v_add_f32 v{s1}, v{s1}, v{u}', f'v_fmac_f32 v{s2}, v{u}, v{u}')
    wave_red(a, [s1, s2], [u, w2])
    a(f'v_mul_f32 v{s1}, 0x{INV640:08x}, v{s1}', f'v_mul_f32 v{s2}, 0x{INV640:08x}, v{s2}')
    a(f'v_fma_f32 v{s2}, -v{s1}, v{s1}, v{s2}', f'v_max_f32 v{s2}, 0, v{s2}')
    a(f'v_add_f32 v{mean}, s{S_T0}, v{s1}')
    bf16r(a, s2, s2)
    a(f'v_add_f32 v{s2}, 0x{EPS:08x}, v{s2}')
    bf16r(a, s2, s2)
    a(f'v_sqrt_f32 v{sd}, v{s2}')
    bf16r(a, mean, mean)
    bf16r(a, sd, sd)
    a(f'v_rcp_f32 v{sd}, v{sd}')
    for i in range(0, 10, 2):
        a(f'v_sub_f32 v{x+i}, v{x+i}, v{mean}', f'v_sub_f32 v{x+i+1}, v{x+i+1}, v{mean}', f'v_cvt_pk_bf16_f32 v{u}, v{x+i}, v{x+i+1}',
          f'v_lshlrev_b32 v{x+i}, 16, v{u}', f'v_and_b32 v{x+i+1}, 0xffff0000, v{u}', f'v_mul_f32 v{x+i}, v{x+i}, v{sd}', f'v_mul_f32 v{x+i+1}, v{x+i+1}, v{sd}')
def pv_unit(a, vreg, plo, phi):
    for j in range(3):
        for i in range(4):
            a(f'v_dot2_f32_bf16 v{V_ACC+8*j+2*i}, v{vreg+4*j+i}, v{plo}, v{V_ACC+8*j+2*i}')
            a(f'v_dot2_f32_bf16 v{V_ACC+8*j+2*i+1}, v{vreg+4*j+i}, v{phi}, v{V_ACC+8*j+2*i+1}')
def acc_addr(a, dst, t):
    a(f'v_and_b32 v{dst}, 7, v{V_LANE}', f'v_mul_u32_u24 v{dst}, 96, v{dst}', f'v_bfe_u32 v{t}, v{V_LANE}, 4, 1', f'v_mul_u32_u24 v{t}, 48, v{t}', f'v_add_u32 v{dst}, v{dst}, v{t}',
      f'v_lshrrev_b32 v{t}, 5, v{V_LANE}', f'v_mul_u32_u24 v{t}, 24, v{t}', f's_mul_i32 s{S_T0}, s{S_WAVE}, 768', f'v_add3_u32 v{dst}, v{dst}, v{t}, s{S_T0}')
def acc_reduce_write(a, lbase, t, addr=None):
    a('s_nop 2')
    for i in range(24): dpp(a, 'v_add_f32', V_ACC+i, 'row_ror:8')
    swap_reduce(a, V_ACC, 12, 'v_permlane16_swap_b32')
    if addr is None:
        acc_addr(a, t, t+1); addr = t
    swap_reduce(a, V_ACC, 6, 'v_permlane32_swap_b32')
    for i in range(3): a(f'ds_write_b64 v{addr}, v[{V_ACC+2*i}:{V_ACC+2*i+1}] offset:{lbase+8*i}')
def m_index(a):
    a(f's_sub_u32 s{S_T0}, s2, 160', f's_and_b32 s{S_T1}, s{S_T0}, 7', f's_mul_i32 s{S_T1}, s{S_T1}, 12', f's_lshr_b32 s{S_T0}, s{S_T0}, 3', f's_add_u32 s{S_M}, s{S_T0}, s{S_T1}')
def role_branch(a, wbody, mbody):
    lm = a.label('rm'); le = a.label('re')
    a('s_cmp_ge_u32 s2, 160', f's_cbranch_scc1 {lm}'); wbody(); a(f's_branch {le}', f'{lm}:'); mbody(); a(f'{le}:')
def spin_begin(a, lbl): a(f's_mov_b32 s{S_SPIN}, 0', f'{lbl}:')
def spin_end(a, lbl, regs, t):
    ok = a.label('ok')
    a(f'v_max3_u32 v{t}, v{regs[0]}, v{regs[1]}, v{regs[2]}'); rest = regs[3:]
    while len(rest) >= 2:
        a(f'v_max3_u32 v{t}, v{t}, v{rest[0]}, v{rest[1]}'); rest = rest[2:]
    if rest: a(f'v_max_u32 v{t}, v{t}, v{rest[0]}')
    a(f'v_cmp_eq_u32 vcc, -1, v{t}', f's_cbranch_vccz {ok}')
    a(f's_add_u32 s{S_SPIN}, s{S_SPIN}, 1', f's_cmp_lt_u32 s{S_SPIN}, 200000', f's_cbranch_scc1 {lbl}')
    a(f'{ok}:')
def sent_check(a, regs, t):
    a(f'v_max3_u32 v{t}, v{regs[0]}, v{regs[1]}, v{regs[2]}'); rest = regs[3:]
    while len(rest) >= 2:
        a(f'v_max3_u32 v{t}, v{t}, v{rest[0]}, v{rest[1]}'); rest = rest[2:]
    if rest: a(f'v_max_u32 v{t}, v{t}, v{rest[0]}')
    a(f'v_cmp_eq_u32 vcc, -1, v{t}')
def poll2(a, issue_fn, nregs, baseA, baseB, nloads, post, t):
    lbl = a.label('spin'); okA = a.label('okA'); okB = a.label('okB'); join = a.label('join')
    a(f's_mov_b32 s{S_SPIN}, 0')
    issue_fn(baseA)
    a(f'{lbl}:')
    issue_fn(baseB)
    a(f's_waitcnt vmcnt({nloads})'); sent_check(a, list(range(baseA, baseA+nregs)), t); a(f's_cbranch_vccz {okA}')
    issue_fn(baseA)
    a(f's_waitcnt vmcnt({nloads})'); sent_check(a, list(range(baseB, baseB+nregs)), t); a(f's_cbranch_vccz {okB}')
    a(f's_add_u32 s{S_SPIN}, s{S_SPIN}, 1', f's_cmp_lt_u32 s{S_SPIN}, 100000', f's_cbranch_scc1 {lbl}', f's_branch {okA}')
    a(f'{okB}:'); post(baseB); a(f's_branch {join}')
    a(f'{okA}:'); post(baseA)
    a(f'{join}:')
def code_prefetch(a, start, end, n, vtmp):
    pc = a.label('pc')
    a(f's_getpc_b64 s[{SRD_C}:{SRD_C+1}]', f'{pc}:')
    if start == 'L_code_start': a(f's_sub_u32 s{SRD_C}, s{SRD_C}, {pc}-{start}', f's_subb_u32 s{SRD_C+1}, s{SRD_C+1}, 0')
    else: a(f's_add_u32 s{SRD_C}, s{SRD_C}, {start}-{pc}', f's_addc_u32 s{SRD_C+1}, s{SRD_C+1}, 0')
    a(f's_and_b32 s{SRD_C+1}, s{SRD_C+1}, 0xffff', f's_mov_b32 s{SRD_C+2}, {end}-{start}', f's_mov_b32 s{SRD_C+3}, 0x20000')
    a(f's_lshr_b32 s{S_T0}, s2, 3', f's_mul_i32 s{S_T0}, s{S_T0}, ((({end}-{start})+31)/32+15)&0xfffffff0')
    a(f'v_lshlrev_b32 v{vtmp}, 4, v{V_LANE}')
    for i in range(n): a(f'buffer_load_dwordx4 v[{V_CPF}:{V_CPF+3}], v{vtmp}, {R(SRD_C)}, s{S_T0} offen offset:{1024*i}')

def prologue(a, endlabel):
    a('s_cmp_ge_u32 s2, 256', f's_cbranch_scc1 {endlabel}')
    a('s_load_dwordx16 s[36:51], s[0:1], 0', 's_load_dwordx8 s[52:59], s[0:1], 64', 's_load_dwordx2 s[60:61], s[0:1], 96')
    a(f'v_lshrrev_b32 v{V_LANE}, 6, v0', f'v_mov_b32 v{V_ZERO}, 0', f'v_readfirstlane_b32 s{S_WAVE}, v{V_LANE}', f'v_and_b32 v{V_LANE}, 63, v0')
    a(f'v_lshrrev_b32 v{V_T}, 3, v{V_LANE}', f'v_mul_u32_u24 v{V_T}, 384, v{V_T}', f'v_and_b32 v{V_T+1}, 7, v{V_LANE}', f'v_lshl_add_u32 v{V_OFFB}, v{V_T+1}, 4, v{V_T}')
    a(f's_mov_b32 s{S_SCALE}, 0x{SCALE:08x}', f's_mov_b32 s{S_LOG2E}, 0x{LOG2E:08x}')
    a(f's_lshr_b32 s{S_T0}, s2, 3', f's_and_b32 s{S_MEM}, s2, 7', f's_lshl_b32 s{S_T1}, s{S_MEM}, 2', f's_add_u32 s{S_T0}, s{S_T0}, s{S_T1}', f's_and_b32 s{S_HEAD}, s{S_T0}, 31')
    a(f's_lshl_b32 s{S_ROW}, s{S_HEAD}, 3', f's_add_u32 s{S_ROW}, s{S_ROW}, s{S_MEM}')
    a('s_waitcnt lgkmcnt(0)')
    srd(a, SRD_WS, P_WS, WS_USED)
    for r in (SRD_C, SRD_D, SRD_E): srd(a, r, P_WS, WS_USED)

V_PA, V_PB, S_PA, S_PB, S_PRE = 48, 49, 87, 100, 101
def w_setup(a):
    srd(a, SRD_C, P_WO, 7864320)
    a(f's_and_b32 s{S_T0}, s2, 7', f's_mul_i32 s{S_T0}, s{S_T0}, 768', f's_mul_i32 s{S_T1}, s{S_WAVE}, 192', f's_add_u32 s{S_T0}, s{S_T0}, s{S_T1}',
      f's_mul_i32 s{S_T0}, s{S_T0}, 1280', f's_lshr_b32 s{S_T1}, s2, 3', f's_lshl_b32 s{S_T1}, s{S_T1}, 6', f's_add_u32 s{S_PA}, s{S_T0}, s{S_T1}')
    a(f'v_lshrrev_b32 v{V_PA}, 2, v{V_LANE}', f'v_mul_u32_u24 v{V_PA}, 1280, v{V_PA}', f'v_and_b32 v{V_PB}, 3, v{V_LANE}', f'v_lshl_add_u32 v{V_PA}, v{V_PB}, 4, v{V_PA}')
def w_loads():
    return [f'buffer_load_dwordx4 v[{WGT+4*p}:{WGT+4*p+3}], v{V_PA}, {R(SRD_C)}, s{S_PA} offen nt\ns_add_u32 s{S_PA}, s{S_PA}, {16*1280}' for p in range(12)]
def m_setup(a):
    a(f's_cmp_ge_u32 s{S_WAVE}, 2', f's_cselect_b32 s{S_T0}, s{P_WU}, s{P_WG}', f's_cselect_b32 s{S_T1}, s{P_WU+1}, s{P_WG+1}')
    srd(a, SRD_C, S_T0, 1966080); srd(a, SRD_D, P_WD, 1966080)
    a(f'v_and_b32 v{V_PB}, 127, v0', f'v_lshrrev_b32 v{V_PA}, 1, v{V_PB}', f'v_mul_u32_u24 v{V_PA}, 3072, v{V_PA}', f'v_and_b32 v{V_PB}, 1, v{V_PB}', f'v_lshl_add_u32 v{V_PA}, v{V_PB}, 4, v{V_PA}')
    a(f's_lshl_b32 s{S_PA}, s{S_M}, 5')
    a(f'v_mul_u32_u24 v{V_PB}, 205, v0', f'v_lshrrev_b32 v{V_PB}, 14, v{V_PB}', f'v_mul_u32_u24 v50, 80, v{V_PB}', f'v_sub_u32 v50, v0, v50',
      f'v_mul_u32_u24 v{V_PB}, 1280, v{V_PB}', f'v_lshl_add_u32 v{V_PB}, v50, 4, v{V_PB}', f's_mul_i32 s{S_PB}, s{S_M}, {16*1280}')
def m_loads():
    l = [f'buffer_load_dwordx4 v[{WGT+4*p}:{WGT+4*p+3}], v{V_PA}, {R(SRD_C)}, s{S_PA} offen nt\ns_add_u32 s{S_PA}, s{S_PA}, {64*3072}' for p in range(10)]
    l += [f'buffer_load_dwordx4 v[{WGT+40+4*i}:{WGT+40+4*i+3}], v{V_PB}, {R(SRD_D)}, s{S_PB} offen nt\ns_add_u32 s{S_PB}, s{S_PB}, 3840' for i in range(6)]
    return l
def w_weights(a):
    w_setup(a)
    for l in w_loads(): a(l)
def m_weights(a):
    m_setup(a)
    for l in m_loads(): a(l)
NW_W, NW_M = 12, 16

def setoff(a):
    a(f's_add_u32 s{S_OFF}, s{S_NX}, s{S_ROT}', f's_and_b32 s{S_OFF}, s{S_OFF}, 2047', f's_mul_i32 s{S_OFF}, s{S_OFF}, 6144', f's_add_u32 s{S_OFF}, s{S_OFF}, s{S_HB}')
def issue(a, r, srd_=None):
    srd_ = SRD_K if srd_ is None else srd_
    for j in range(6): a(f'buffer_load_dwordx4 v[{r+4*j}:{r+4*j+3}], v{V_OFFB}, {R(srd_)}, s{S_OFF} offen offset:{128*(j%3)+3072*(j//3)} nt')
def atomic(a):
    a(f'v_mov_b32 v{V_ATOM}, 1', 's_mov_b64 exec, 1', f'buffer_atomic_add v{V_ATOM}, v{V_ZERO}, {WS}, s{S_CNT} offen sc0', 's_mov_b64 exec, -1')
def static_next(a):
    a(f's_mov_b32 s{S_NX}, s{S_SU}', f's_add_u32 s{S_SU}, s{S_SU}, 32', f's_add_u32 s{S_K}, s{S_K}, 1')
def scores(a, r):
    ta = (V_T, V_T+2, V_T+3); tb = (V_T+1, V_T+4, V_T+5)
    for i in range(4):
        for u, ts in ((0, ta), (1, tb)):
            for j, t in enumerate(ts):
                c = '0' if i == 0 else f'v{t}'
                a(f'v_dot2_f32_bf16 v{t}, v{r+12*u+4*j+i}, v{V_Q+4*j+i}, {c}')
    a('s_nop 1')
    a(f'v_add_f32 v{ta[0]}, v{ta[0]}, v{ta[1]}', f'v_add_f32 v{tb[0]}, v{tb[0]}, v{tb[1]}', f'v_add_f32 v{ta[0]}, v{ta[0]}, v{ta[2]}', f'v_add_f32 v{tb[0]}, v{tb[0]}, v{tb[2]}')
    for d in ('quad_perm:[1,0,3,2]', 'quad_perm:[2,3,0,1]', 'row_half_mirror'):
        a('s_nop 0'); dpp(a, 'v_add_f32', V_T, d); dpp(a, 'v_add_f32', V_T+1, d)
    a(f'v_cvt_pk_bf16_f32 v{V_T+2}, v{V_T}, v{V_T+1}', f'v_lshlrev_b32 v{V_T}, 16, v{V_T+2}', f'v_and_b32 v{V_T+1}, 0xffff0000, v{V_T+2}',
      f'v_mul_f32 v{V_T}, s{S_SCALE}, v{V_T}', f'v_mul_f32 v{V_T+1}, s{S_SCALE}, v{V_T+1}',
      f'v_cvt_pk_bf16_f32 v{V_T+2}, v{V_T}, v{V_T+1}', f'v_lshlrev_b32 v{V_T}, 16, v{V_T+2}', f'v_and_b32 v{V_T+1}, 0xffff0000, v{V_T+2}')
def k_step(a, slot, base=None):
    scores(a, V_RING + 24*slot if base is None else base)
    dy = a.label('kd'); jn = a.label('kj')
    a(f's_cmp_lt_i32 s{S_DST+slot}, 0', f's_mov_b64 exec, s[{S_MASK}:{S_MASK+1}]', f's_cbranch_scc1 {dy}')
    a(f'v_add_u32 v{V_T+2}, s{S_DST+slot}, v{V_SCA}', f'ds_write_b64 v{V_T+2}, v[{V_T}:{V_T+1}] offset:{L_SC}', f's_branch {jn}')
    a(f'{dy}:', f's_and_b32 s{S_T0}, s{S_DST+slot}, 0x7fffffff', f'buffer_store_dwordx2 v[{V_T}:{V_T+1}], v{V_G8}, {WS}, s{S_T0} offen sc1', f'{jn}:')
    a('s_mov_b64 exec, -1')
def v_step(a, slot):
    r = V_RING + 24*slot; sa, sb = V_SC+2*slot, V_SC+2*slot+1
    t1, t2, t3, t4 = V_T, V_T+2, V_T+3, V_T+4
    a(f'v_max3_f32 v{t1}, v{V_M}, v{sa}, v{sb}', f'v_sub_f32 v{t2}, v{V_M}, v{t1}', f'v_sub_f32 v{t3}, v{sa}, v{t1}', f'v_sub_f32 v{t4}, v{sb}, v{t1}',
      f'v_mul_f32 v{t2}, s{S_LOG2E}, v{t2}', f'v_mul_f32 v{t3}, s{S_LOG2E}, v{t3}', f'v_mul_f32 v{t4}, s{S_LOG2E}, v{t4}',
      f'v_exp_f32 v{t2}, v{t2}', f'v_exp_f32 v{t3}, v{t3}', f'v_exp_f32 v{t4}, v{t4}', f'v_mov_b32 v{V_M}, v{t1}',
      f'v_fma_f32 v{V_L}, v{V_L}, v{t2}, v{t3}', f'v_cvt_pk_bf16_f32 v{t1}, v{t3}, 0', f'v_cvt_pk_bf16_f32 v{t1+1}, 0, v{t3}',
      f'v_add_f32 v{V_L}, v{V_L}, v{t4}', f'v_cvt_pk_bf16_f32 v{t4+1}, v{t4}, 0', f'v_cvt_pk_bf16_f32 v{t4}, 0, v{t4}')
    for i in range(12):
        a(f'v_pk_mul_f32 v[{V_ACC+2*i}:{V_ACC+2*i+1}], v[{V_ACC+2*i}:{V_ACC+2*i+1}], v[{t2}:{t2+1}] op_sel_hi:[1,0]')
    pv_unit(a, r, t1, t1+1)
    pv_unit(a, r+12, t4+1, t4)

def startup(a):
    P = OPT['P']; NC = 2 if OPT['cpf'] else 0
    X, XF, W = 64, 70, 80
    srd(a, SRD_A, P_X, 1280); srd(a, SRD_B, P_WQ, 7864320)
    a(f'v_lshlrev_b32 v{V_T}, 2, v{V_LANE}', f's_mov_b32 s{S_T0}, {EPOCH}')
    a(f'buffer_load_dword v{V_E}, v{V_ZERO}, {WS}, s{S_T0} offen sc1')
    for j in range(5): a(f'buffer_load_dword v{X+j}, v{V_T}, {R(SRD_A)}, 0 offen offset:{256*j}')
    a(f'v_lshrrev_b32 v{V_T+1}, 3, v{V_LANE}', f'v_mul_u32_u24 v{V_T+1}, 12288, v{V_T+1}', f'v_and_b32 v{V_T+2}, 7, v{V_LANE}', f'v_lshl_add_u32 v{V_T+1}, v{V_T+2}, 4, v{V_T+1}')
    a(f's_mul_i32 s70, s{S_MEM}, 80', f's_lshl_b32 s{S_T1}, s{S_WAVE}, 3', f's_add_u32 s70, s70, s{S_T1}',
      f's_mul_i32 s{S_T1}, s70, 12288', f's_mul_i32 s{S_T2}, s{S_HEAD}, 384', f's_add_u32 s{S_T1}, s{S_T1}, s{S_T2}')
    third = a.label('q3')
    for u in range(3):
        if u == 2: a(f's_cmp_ge_u32 s{S_WAVE}, 2', f's_cbranch_scc1 {third}')
        for j in range(3): a(f'buffer_load_dwordx4 v[{W+12*u+4*j}:{W+12*u+4*j+3}], v{V_T+1}, {R(SRD_B)}, s{S_T1} offen offset:{128*j} nt')
        a(f's_add_u32 s{S_T1}, s{S_T1}, {32*12288}')
    a(f'{third}:')
    srd(a, SRD_K, P_K, KV_BYTES); srd(a, SRD_V, P_V, KV_BYTES)
    for i in range(4): a(f'v_mov_b32 v{V_T+2+i}, -1')
    a(f's_lshl_b32 s{S_T0}, s{S_ROW}, 10', f's_add_u32 s{S_T0}, s{S_T0}, {OP}', f'v_lshlrev_b32 v{V_T}, 2, v0')
    a(f'buffer_store_dword v{V_T+2}, v{V_T}, {WS}, s{S_T0} offen sc1')
    a(f's_lshl_b32 s{S_T0}, s{S_ROW}, 11', f's_add_u32 s{S_T0}, s{S_T0}, {SC}', f'v_lshlrev_b32 v{V_T+1}, 3, v0')
    a(f'buffer_store_dwordx2 v[{V_T+2}:{V_T+3}], v{V_T+1}, {WS}, s{S_T0} offen sc1')
    def wclr():
        sk = a.label('wc')
        a(f's_cmp_lg_u32 s{S_WAVE}, 0', f's_cbranch_scc1 {sk}')
        a(f's_and_b32 s{S_T0}, s2, 7', f's_mul_i32 s{S_T0}, s{S_T0}, 2560', f's_lshr_b32 s{S_T1}, s2, 3', f's_lshl_b32 s{S_T1}, s{S_T1}, 7',
          f's_add_u32 s{S_T0}, s{S_T0}, s{S_T1}', f's_add_u32 s{S_T0}, s{S_T0}, {HP}')
        a('v_cmp_gt_u32 vcc, 32, v0', 's_and_saveexec_b64 s[34:35], vcc')
        for r in range(OPT['hr']):
            a(f'buffer_store_dword v{V_T+2}, v{V_T}, {WS}, s{S_T0} offen sc1')
            if r < OPT['hr']-1: a(f's_add_u32 s{S_T0}, s{S_T0}, {HPS}')
        a('s_mov_b64 exec, s[34:35]', f'{sk}:')
    def mclr():
        m_index(a)
        sk = a.label('mc')
        a(f's_cmp_ge_u32 s{S_WAVE}, 3', f's_cbranch_scc1 {sk}')
        a(f'v_lshrrev_b32 v{V_T}, 2, v0', f'v_mul_u32_u24 v{V_T}, 6144, v{V_T}', f'v_and_b32 v{V_T+1}, 3, v0', f'v_lshl_add_u32 v{V_T}, v{V_T+1}, 4, v{V_T}',
          f's_lshl_b32 s{S_T0}, s{S_M}, 6', f's_add_u32 s{S_T0}, s{S_T0}, {YP}')
        a('v_cmp_gt_u32 vcc, 160, v0', 's_and_saveexec_b64 s[34:35], vcc', f'buffer_store_dwordx4 v[{V_T+2}:{V_T+5}], v{V_T}, {WS}, s{S_T0} offen sc1', 's_mov_b64 exec, s[34:35]', f'{sk}:')
    role_branch(a, wclr, mclr)
    sk = a.label('cz')
    a(f's_lshl_b32 s{S_CNT}, s{S_HEAD}, 8', f's_add_u32 s{S_CNT}, s{S_CNT}, {CNT}')
    a(f's_or_b32 s{S_T0}, s{S_MEM}, s{S_WAVE}', f's_cmp_lg_u32 s{S_T0}, 0', f's_cbranch_scc1 {sk}', 's_mov_b64 exec, 1')
    a(f'buffer_store_dword v{V_ZERO}, v{V_ZERO}, {WS}, s{S_CNT} offen sc1', f'buffer_store_dword v{V_ZERO}, v{V_ZERO}, {WS}, s{S_CNT} offen offset:128 sc1', 's_mov_b64 exec, -1', f'{sk}:')
    a(f's_mul_i32 s{S_HB}, s{S_HEAD}, {HEAD_BYTES}', f"s_mul_i32 s{S_ROT}, s{S_HEAD}, {OPT['hrot']}")
    a(f's_lshl_b32 s{S_SU}, s{S_MEM}, 2', f's_add_u32 s{S_SU}, s{S_SU}, s{S_WAVE}', f's_mov_b32 s{S_K}, 0')
    a(f's_lshl_b32 s{S_SCB0}, s{S_HEAD}, 14', f's_add_u32 s{S_SCB0}, s{S_SCB0}, {SC}', f's_or_b32 s{S_SCB}, s{S_SCB0}, 0x80000000')
    nopf = a.label('nopf'); pfd = a.label('pfd')
    a(f's_cmp_ge_u32 s{S_WAVE}, 3', f's_cbranch_scc1 {nopf}')
    if NC: code_prefetch(a, 'L_code_start', 'L_code_end', NC, V_T)
    for k in range(P):
        static_next(a); setoff(a); issue(a, PF + 24*k)
    a(f's_waitcnt vmcnt({7+NC+6*P})', f's_branch {pfd}', f'{nopf}:', 's_waitcnt vmcnt(7)', f'{pfd}:')
    a(f'v_readfirstlane_b32 s{S_TAG}, v{V_E}')
    unpack5(a, X, XF)
    a(f's_add_u32 s{S_TAG}, s{S_TAG}, 1')
    for i in range(24): a(f'v_mov_b32 v{V_ACC+i}, 0')
    layernorm(a, XF, V_T+4)
    for j in range(5): a(f'v_cvt_pk_bf16_f32 v{X+j}, v{XF+2*j}, v{XF+2*j+1}')
    a(f's_mul_i32 s{S_T2}, s{S_WAVE}, 1280', f'v_lshlrev_b32 v{V_T}, 2, v{V_LANE}', f'v_add_u32 v{V_T}, s{S_T2}, v{V_T}')
    for j in range(5): a(f'ds_write_b32 v{V_T}, v{X+j} offset:{L_XN+256*j}')
    a(f's_lshl_b32 s{S_T0}, s70, 1', f's_add_u32 s{S_T0}, s{S_T0}, s{S_T2}', f'v_lshrrev_b32 v{V_T}, 3, v{V_LANE}', f'v_lshlrev_b32 v{V_T}, 1, v{V_T}', f'v_add_u32 v{V_T}, s{S_T0}, v{V_T}')
    a('s_waitcnt lgkmcnt(0)')
    for u in range(3): a(f'ds_read_u16 v{X+u}, v{V_T} offset:{L_XN+64*u}')
    w3 = a.label('w3'); w3d = a.label('w3d')
    a(f's_cmp_ge_u32 s{S_WAVE}, 3', f's_cbranch_scc1 {w3}', f's_waitcnt lgkmcnt(0) vmcnt({NC+6*P})', f's_branch {w3d}',
      f'{w3}:', 's_waitcnt lgkmcnt(0) vmcnt(0)', f'{w3d}:')
    NE = OPT['wsplit'] if OPT['wmode'] <= 1 else 0
    if NE:
        ske = a.label('ske')
        role_branch(a, lambda: w_setup(a), lambda: m_setup(a))
        a(f's_cmp_ge_u32 s{S_WAVE}, 3', f's_cbranch_scc1 {ske}')
        role_branch(a, lambda: [a(l) for l in w_loads()[:NE]], lambda: [a(l) for l in m_loads()[10:10+NE]])
        a(f'{ske}:')
    stamp(a, 12)
    skip = a.label('q3b')
    for u in range(3):
        if u == 2: a(f's_cmp_ge_u32 s{S_WAVE}, 2', f's_cbranch_scc1 {skip}')
        a(f'v_lshlrev_b32 v{X+4}, 16, v{X+u}')
        pv_unit(a, W+12*u, X+u, X+4)
    a(f'{skip}:')
    acc_reduce_write(a, L_A, V_T)
    a('s_waitcnt lgkmcnt(0)', 's_barrier')
    stamp(a, 1)
    gat = a.label('gat'); qrdy = a.label('qrdy')
    a(f's_cmp_ge_u32 s{S_WAVE}, 3', f's_cbranch_scc1 {gat}')
    a(f'v_lshlrev_b32 v{V_T}, 2, v0')
    for w in range(4): a(f'ds_read_b32 v{96+w}, v{V_T} offset:{L_A+768*w}')
    a(f's_lshl_b32 s{S_T0}, s{S_ROW}, 11', f's_add_u32 s{S_T0}, s{S_T0}, {QP2}', f'v_lshlrev_b32 v{V_T}, 3, v0', 's_waitcnt lgkmcnt(0)')
    a('v_add_f32 v96, v96, v97', 'v_add_f32 v98, v98, v99', f'v_mov_b32 v97, s{S_TAG}', 'v_add_f32 v96, v96, v98')
    a(f'buffer_store_dwordx2 v[96:97], v{V_T}, {WS}, s{S_T0} offen sc1')
    if OPT['wmode'] == 1: a('s_waitcnt vmcnt(0)')
    if OPT['wmode'] <= 1:
        if NE:
            role_branch(a, lambda: [a(l) for l in w_loads()[NE:]], lambda: [a(l) for l in m_loads()[:10] + m_loads()[10+NE:]])
        else:
            role_branch(a, lambda: w_weights(a), lambda: m_weights(a))
    a(f's_branch {qrdy}')
    a(f'{gat}:')
    a(f's_lshl_b32 s{S_T0}, s{S_HEAD}, 14', f's_add_u32 s{S_T0}, s{S_T0}, {QP2}')
    a(f's_add_u32 s{S_T1}, s{S_T0}, 4096', f's_add_u32 s{S_T2}, s{S_T0}, 8192', f's_add_u32 s{S_T3}, s{S_T0}, 12288', f'v_lshlrev_b32 v{V_T}, 3, v{V_LANE}')
    def qissue(base):
        for s in range(8):
            for j in range(3):
                r = base + 2*(3*s+j)
                a(f'buffer_load_dwordx2 v[{r}:{r+1}], v{V_T}, {WS}, s{S_T0 + s//2} offen offset:{2048*(s&1)+512*j} sc1')
    def qcheck(base):
        tags = [base + 2*i + 1 for i in range(24)]
        a(f'v_min3_u32 v{V_T+2}, v{tags[0]}, v{tags[1]}, v{tags[2]}', f'v_max3_u32 v{V_T+3}, v{tags[0]}, v{tags[1]}, v{tags[2]}')
        for i in range(3, 23, 2):
            a(f'v_min3_u32 v{V_T+2}, v{V_T+2}, v{tags[i]}, v{tags[i+1]}', f'v_max3_u32 v{V_T+3}, v{V_T+3}, v{tags[i]}, v{tags[i+1]}')
        a(f'v_min_u32 v{V_T+2}, v{V_T+2}, v{tags[23]}', f'v_max_u32 v{V_T+3}, v{V_T+3}, v{tags[23]}')
        a(f'v_xor_b32 v{V_T+2}, s{S_TAG}, v{V_T+2}', f'v_xor_b32 v{V_T+3}, s{S_TAG}, v{V_T+3}', f'v_or_b32 v{V_T+2}, v{V_T+2}, v{V_T+3}')
        a(f'v_cmp_ne_u32 vcc, 0, v{V_T+2}')
    def qpost(base):
        for j in range(3):
            for s in range(1, 8): a(f'v_add_f32 v{base+2*j}, v{base+2*j}, v{base+2*(3*s+j)}')
            a(f'v_cvt_pk_bf16_f32 v{base+2*j}, v{base+2*j}, v{base+2*j}')
            a(f'ds_write_b16 v{V_T+6+j}, v{base+2*j} offset:{L_SM+64}')
    for j in range(3):
        a(f'v_add_u32 v{V_T+1}, {64*j}, v{V_LANE}', f'v_mul_u32_u24 v{V_T+2}, 2731, v{V_T+1}', f'v_lshrrev_b32 v{V_T+2}, 16, v{V_T+2}',
          f'v_mul_u32_u24 v{V_T+3}, 24, v{V_T+2}', f'v_sub_u32 v{V_T+3}, v{V_T+1}, v{V_T+3}',
          f'v_lshrrev_b32 v{V_T+4}, 3, v{V_T+3}', f'v_and_b32 v{V_T+3}, 7, v{V_T+3}', f'v_lshlrev_b32 v{V_T+4}, 6, v{V_T+4}',
          f'v_lshl_add_u32 v{V_T+4}, v{V_T+2}, 3, v{V_T+4}', f'v_add_lshl_u32 v{V_T+6+j}, v{V_T+4}, v{V_T+3}, 1')
    lbl = a.label('qspin'); ok = a.label('qok'); qjoin = a.label('qjoin')
    if OPT['qov']:
        okb = a.label('qokb')
        a(f's_mov_b32 s{S_SPIN}, 0')
        qissue(64)
        a(f'{lbl}:')
        qissue(116)
        a('s_waitcnt vmcnt(24)'); qcheck(64); a(f's_cbranch_vccz {ok}')
        qissue(64)
        a('s_waitcnt vmcnt(24)'); qcheck(116); a(f's_cbranch_vccz {okb}')
        a(f's_add_u32 s{S_SPIN}, s{S_SPIN}, 1', f's_cmp_lt_u32 s{S_SPIN}, 100000', f's_cbranch_scc1 {lbl}', f's_branch {ok}')
        a(f'{okb}:')
        qpost(116)
        a(f's_branch {qjoin}', f'{ok}:')
    else:
        spin_begin(a, lbl)
        qissue(64)
        a('s_waitcnt vmcnt(0)'); qcheck(64)
        a(f's_cbranch_vccz {ok}', f's_add_u32 s{S_SPIN}, s{S_SPIN}, 1', f's_cmp_lt_u32 s{S_SPIN}, 200000', f's_cbranch_scc1 {lbl}', f'{ok}:')
    qpost(64)
    a(f'{qjoin}:')
    stamp(a, 13)
    srd(a, SRD_A, P_DBG, 256)
    a(f'v_mov_b32 v{V_T}, 1', 's_mov_b64 exec, 1', f'buffer_atomic_add v{V_T}, v{V_ZERO}, {R(SRD_A)}, 0 offen', 's_mov_b64 exec, -1')
    if OPT['wmode'] <= 1: role_branch(a, lambda: w_weights(a), lambda: m_weights(a))
    a(f'{qrdy}:')
    a('s_waitcnt lgkmcnt(0)', 's_barrier')
    a(f'v_and_b32 v{V_T}, 7, v{V_LANE}', f'v_lshlrev_b32 v{V_T}, 4, v{V_T}')
    for j in range(3): a(f'ds_read_b128 v[{V_Q+4*j}:{V_Q+4*j+3}], v{V_T} offset:{L_SM+64+128*j}')

def pair_perm(a):
    a(f's_mov_b32 s{S_T2}, 0x05040100', f's_mov_b32 s{S_T3}, 0x07060302')
    def do(pairs):
        for A_, B_ in pairs:
            a(f'v_perm_b32 v50, v{B_}, v{A_}, s{S_T3}', f'v_perm_b32 v{A_}, v{B_}, v{A_}, s{S_T2}', f'v_mov_b32 v{B_}, v50')
    role_branch(a, lambda: do([(WGT+8*q+i, WGT+8*q+4+i) for q in range(6) for i in range(4)]),
                   lambda: do([(WGT+8*q+i, WGT+8*q+4+i) for q in range(8) for i in range(4)]))
def late_loads(a):
    sk = a.label('lx')
    a('s_cmp_lt_u32 s2, 160', f's_cbranch_scc1 {sk}')
    srd(a, SRD_D, P_X, 1280); srd(a, SRD_E, P_WR, 1280)
    a(f'v_lshlrev_b32 v50, 3, v{V_LANE}', f's_mul_i32 s{S_T0}, s{S_WAVE}, 320')
    a(f'buffer_load_dwordx2 v[{V_XW}:{V_XW+1}], v50, {R(SRD_D)}, s{S_T0} offen')
    a(f'v_lshlrev_b32 v50, 2, v{V_LANE}')
    for j in range(5): a(f'buffer_load_dword v{V_XW+5+j}, v50, {R(SRD_E)}, 0 offen offset:{256*j}')
    a(f'{sk}:')
    if OPT['cpf2']: code_prefetch(a, 'L_tail_start', 'L_code_end', 1, 50)

def stream(a):
    NS1, NS = OPT['NS1'], OPT['NS']
    NDYN1 = 2048 - 32*NS1; NDYN = 2048 - 32*NS
    P = OPT['P']
    assert NS <= NS1 <= 64 and NDYN <= 256 and P <= 2 and P < NS
    def prepare(n):
        a(f's_mov_b32 s{S_NX}, s{S_SU}', f's_add_u32 s{S_SU}, s{S_SU}, 32'); setoff(a)
        a(f's_cmp_ge_u32 s{S_K}, {n}')
    a(f'v_lshrrev_b32 v{V_G8}, 3, v{V_LANE}', f'v_lshlrev_b32 v{V_G8}, 3, v{V_G8}', f's_lshl_b32 s{S_T0}, s{S_WAVE}, 12', f'v_add_u32 v{V_SCA}, s{S_T0}, v{V_G8}')
    a(f's_mov_b32 s{S_MASK}, 0x01010101', f's_mov_b32 s{S_MASK+1}, 0x01010101')
    a(f's_lshl_b32 s{S_DST}, s{S_K}, 6')
    static_next(a); setoff(a); issue(a, V_RING, SRD_K)
    acc_addr(a, V_T1A, 50)
    a(f'v_lshlrev_b32 v{V_T4}, 2, v0', f's_lshl_b32 s{S_OPR}, s{S_ROW}, 10', f's_add_u32 s{S_OPR}, s{S_OPR}, {OP}')
    a('s_waitcnt lgkmcnt(0)')
    if P:
        sk = a.label('pfs')
        a(f's_cmp_ge_u32 s{S_WAVE}, 3', f's_cbranch_scc1 {sk}', 's_waitcnt vmcnt(6)')
        for k in range(P):
            a(f's_mov_b32 s{S_DST+1}, {64*k}')
            k_step(a, 1, PF + 24*k)
        a(f'{sk}:')
    stamp(a, 2); dstamp(a, 6)
    prepare(NS1)
    loop = a.label('kloop'); drains = []; sws = []
    a(f'{loop}:')
    for t in range(2):
        o = 1 - t
        a('s_waitcnt vmcnt(0)')
        dyn = a.label('kdyn'); cont = a.label('kcont'); dl = a.label('kdrain'); sw = a.label('ksw'); drains.append((dl, t)); sws.append((sw, cont))
        a(f's_cbranch_scc1 {dyn if NDYN1 else dl}')
        issue(a, V_RING + 24*o, SRD_K)
        a(f's_lshl_b32 s{S_DST+o}, s{S_K}, 6')
        if NS1 > NS:
            a(f's_sub_u32 s{S_T0}, s{S_NX}, {32*NS}', f's_lshl_b32 s{S_T0}, s{S_T0}, 6', f's_add_u32 s{S_T0}, s{S_T0}, s{S_SCB}',
              f's_cmp_ge_u32 s{S_K}, {NS}', f's_cselect_b32 s{S_DST+o}, s{S_T0}, s{S_DST+o}')
        a(f's_add_u32 s{S_K}, s{S_K}, 1', f's_cmp_eq_u32 s{S_K}, {NS1}', f's_cbranch_scc1 {sw}')
        a(f'{cont}:')
        k_step(a, t)
        prepare(NS1)
        nxt = a.label('kn') if t == 0 else loop
        a(f's_branch {nxt}')
        if NDYN1:
            a(f'{dyn}:')
            a(f'v_readfirstlane_b32 s{S_NX}, v{V_ATOM}', 's_nop 0', f's_cmp_ge_u32 s{S_NX}, {NDYN1}', f's_cbranch_scc1 {dl}')
            a(f's_add_u32 s{S_NX}, s{S_NX}, {32*NS1}', f's_sub_u32 s{S_T0}, s{S_NX}, {32*NS}', f's_lshl_b32 s{S_T0}, s{S_T0}, 6', f's_add_u32 s{S_DST+o}, s{S_T0}, s{S_SCB}')
            setoff(a); issue(a, V_RING + 24*o, SRD_K); atomic(a)
            a(f's_branch {cont}')
        if t == 0: a(f'{nxt}:')
    for sw, cont in sws:
        a(f'{sw}:')
        if NDYN1: atomic(a)
        srd(a, SRD_E, P_DBG, 256)
        a(f'buffer_load_dword v{V_DBG}, v{V_ZERO}, {R(SRD_E)}, 0 offen sc1')
        a(f's_branch {cont}')
    ventry = [a.label('vent0'), a.label('vent1')]
    for dl, t in drains:
        o = 1 - t
        a(f'{dl}:')
        a(f's_lshl_b32 s{S_SU}, s{S_MEM}, 2', f's_add_u32 s{S_SU}, s{S_SU}, s{S_WAVE}', f's_mov_b32 s{S_K}, 0', f's_add_u32 s{S_CNT}, s{S_CNT}, 128')
        static_next(a); setoff(a); issue(a, V_RING + 24*o, SRD_V)
        k_step(a, t)
        stamp(a, 14)
        dbg_check(a)
        for i in range(24): a(f'v_mov_b32 v{V_ACC+i}, 0')
        a(f'v_mov_b32 v{V_M}, 0x{NEGBIG:08x}', f'v_mov_b32 v{V_L}, 0')
        a('s_waitcnt lgkmcnt(0)', f'ds_read_b64 v[{V_SC+2*o}:{V_SC+2*o+1}], v{V_SCA} offset:{L_SC}')
        prepare(NS)
        a(f's_branch {ventry[o]}')
    done = a.label('sdone'); vdr = []; vsw = []; rep = []
    for t in range(2):
        o = 1 - t
        a(f'{ventry[t]}:')
        a('s_waitcnt vmcnt(0) lgkmcnt(0)')
        dyn = a.label('vdyn'); cont = a.label('vcont'); dl = a.label('vdrain'); sw = a.label('vsw'); rp = a.label('vrp'); rb = a.label('vrb')
        vdr.append((dl, t)); vsw.append((sw, cont)); rep.append((rp, rb, t))
        a(f's_cbranch_scc1 {dyn}')
        issue(a, V_RING + 24*o, SRD_V)
        a(f's_lshl_b32 s{S_T0}, s{S_K}, 6', f'v_add_u32 v{V_T}, s{S_T0}, v{V_SCA}', f'ds_read_b64 v[{V_SC+2*o}:{V_SC+2*o+1}], v{V_T} offset:{L_SC}')
        a(f's_add_u32 s{S_K}, s{S_K}, 1', f's_cmp_eq_u32 s{S_K}, {NS}', f's_cbranch_scc1 {sw}')
        a(f'{cont}:')
        a(f'v_max_u32 v{V_T}, v{V_SC+2*t}, v{V_SC+2*t+1}', f'v_cmp_eq_u32 vcc, -1, v{V_T}', f's_cbranch_vccnz {rp}', f'{rb}:')
        v_step(a, t)
        prepare(NS)
        a(f's_branch {ventry[o]}')
        a(f'{dyn}:')
        a(f'v_readfirstlane_b32 s{S_NX}, v{V_ATOM}', 's_nop 0', f's_cmp_ge_u32 s{S_NX}, {NDYN}', f's_cbranch_scc1 {dl}')
        a(f's_lshl_b32 s{S_DST+o}, s{S_NX}, 6', f's_add_u32 s{S_DST+o}, s{S_DST+o}, s{S_SCB0}', f's_add_u32 s{S_NX}, s{S_NX}, {32*NS}')
        setoff(a); issue(a, V_RING + 24*o, SRD_V)
        a(f'buffer_load_dwordx2 v[{V_SC+2*o}:{V_SC+2*o+1}], v{V_G8}, {WS}, s{S_DST+o} offen sc1')
        atomic(a)
        a(f's_branch {cont}')
    for sw, cont in vsw:
        a(f'{sw}:')
        atomic(a)
        if OPT['pp']: pair_perm(a)
        late_loads(a)
        a(f's_branch {cont}')
    for rp, rb, t in rep:
        lp = a.label('rpl')
        a(f'{rp}:', f's_mov_b32 s{S_SPIN}, 0', f'{lp}:')
        a(f'buffer_load_dwordx2 v[{V_SC+2*t}:{V_SC+2*t+1}], v{V_G8}, {WS}, s{S_DST+t} offen sc1', 's_waitcnt vmcnt(0)')
        a(f'v_max_u32 v{V_T}, v{V_SC+2*t}, v{V_SC+2*t+1}', f'v_cmp_eq_u32 vcc, -1, v{V_T}', f's_cbranch_vccz {rb}')
        a(f's_add_u32 s{S_SPIN}, s{S_SPIN}, 1', f's_cmp_lt_u32 s{S_SPIN}, 200000', f's_cbranch_scc1 {lp}', f's_branch {rb}')
    for dl, t in vdr:
        a(f'{dl}:')
        rp = a.label('drp'); rb = a.label('drb'); lp = a.label('drl')
        a(f'v_max_u32 v{V_T}, v{V_SC+2*t}, v{V_SC+2*t+1}', f'v_cmp_eq_u32 vcc, -1, v{V_T}', f's_cbranch_vccz {rb}', f's_mov_b32 s{S_SPIN}, 0', f'{lp}:')
        a(f'buffer_load_dwordx2 v[{V_SC+2*t}:{V_SC+2*t+1}], v{V_G8}, {WS}, s{S_DST+t} offen sc1', 's_waitcnt vmcnt(0)')
        a(f'v_max_u32 v{V_T}, v{V_SC+2*t}, v{V_SC+2*t+1}', f'v_cmp_eq_u32 vcc, -1, v{V_T}', f's_cbranch_vccz {rb}')
        a(f's_add_u32 s{S_SPIN}, s{S_SPIN}, 1', f's_cmp_lt_u32 s{S_SPIN}, 200000', f's_cbranch_scc1 {lp}', f'{rb}:')
        v_step(a, t)
        a(f's_branch {done}')
    a(f'{done}:')

def phase_t1(a):
    t = V_T
    a('s_nop 2', f'v_mov_b32 v{t+2}, v{V_M}')
    groups_red(a, t+2, t+3, 'v_max_f32')
    a(f'v_sub_f32 v{t+4}, v{V_M}, v{t+2}', f'v_mul_f32 v{t+4}, s{S_LOG2E}, v{t+4}', f'v_exp_f32 v{t+4}, v{t+4}', 's_nop 0', f'v_mul_f32 v{V_L}, v{V_L}, v{t+4}')
    for i in range(12): a(f'v_pk_mul_f32 v[{V_ACC+2*i}:{V_ACC+2*i+1}], v[{V_ACC+2*i}:{V_ACC+2*i+1}], v[{t+4}:{t+5}] op_sel_hi:[1,0]')
    groups_red(a, V_L, t+3, 'v_add_f32')
    a(f'v_mov_b32 v{t+3}, v{V_L}', f's_lshl_b32 s{S_T1}, s{S_WAVE}, 3', f'v_mov_b32 v{t+6}, s{S_T1}', f'ds_write_b64 v{t+6}, v[{t+2}:{t+3}] offset:{L_SM}')
    acc_reduce_write(a, L_A, t+6, V_T1A)
    a('s_waitcnt lgkmcnt(0)', 's_barrier')
    a(f'ds_read_b128 v[100:103], v{V_ZERO} offset:{L_SM}', f'ds_read_b128 v[104:107], v{V_ZERO} offset:{L_SM+16}')
    for w in range(4): a(f'ds_read_b32 v{96+w}, v{V_T4} offset:{L_A+768*w}')
    a('s_waitcnt lgkmcnt(4)')
    a('v_max_f32 v108, v100, v102', 'v_max3_f32 v108, v108, v104, v106', f'v_mul_f32 v114, s{S_LOG2E}, v108')
    for w in range(4): a(f'v_fma_f32 v{110+w}, v{100+2*w}, s{S_LOG2E}, -v114')
    for w in range(4): a(f'v_exp_f32 v{110+w}, v{110+w}')
    w3 = a.label('t1w3'); jn = a.label('t1j')
    a(f's_cmp_ge_u32 s{S_WAVE}, 3', f's_cbranch_scc1 {w3}')
    a('s_waitcnt lgkmcnt(0)', 'v_mul_f32 v96, v96, v110')
    for w in range(1, 4): a(f'v_fmac_f32 v96, v{96+w}, v{110+w}')
    a(f'buffer_store_dword v96, v{V_T4}, {WS}, s{S_OPR} offen sc1', f's_branch {jn}')
    a(f'{w3}:', 'v_mul_f32 v109, v101, v110')
    for w in range(1, 4): a(f'v_fmac_f32 v109, v{101+2*w}, v{110+w}')
    a('v_mov_b32 v110, 0', 'v_mov_b32 v111, 0', 's_mov_b64 exec, 1', f'buffer_store_dwordx4 v[108:111], v{V_ZERO}, {WS}, s{S_OPR} offen offset:768 sc1', 's_mov_b64 exec, -1', 's_waitcnt lgkmcnt(0)')
    a(f'{jn}:')

def dbg_check(a):
    ok = a.label('dok'); lp = a.label('dlp')
    a(f'v_readfirstlane_b32 s{S_T0}, v{V_DBG}', 's_nop 0', f's_cmp_ge_u32 s{S_T0}, 256', f's_cbranch_scc1 {ok}')
    srd(a, SRD_A, P_DBG, 256)
    a(f's_mov_b32 s{S_SPIN}, 0', f'{lp}:', f'buffer_load_dword v{V_DBG}, v{V_ZERO}, {R(SRD_A)}, 0 offen sc1', 's_waitcnt vmcnt(0)')
    a(f'v_readfirstlane_b32 s{S_T0}, v{V_DBG}', 's_nop 0', f's_cmp_ge_u32 s{S_T0}, 256', f's_cbranch_scc1 {ok}')
    a(f's_add_u32 s{S_SPIN}, s{S_SPIN}, 1', f's_cmp_lt_u32 s{S_SPIN}, 200000', f's_cbranch_scc1 {lp}', f'{ok}:')
    sk = a.label('ep')
    a(f's_or_b32 s{S_T0}, s2, s{S_WAVE}', f's_cmp_lg_u32 s{S_T0}, 0', f's_cbranch_scc1 {sk}')
    a(f'v_mov_b32 v{V_T}, s{S_TAG}', f's_mov_b32 s{S_T0}, {EPOCH}', 's_mov_b64 exec, 1', f'buffer_store_dword v{V_T}, v{V_ZERO}, {WS}, s{S_T0} offen sc1', 's_mov_b64 exec, -1', f'{sk}:')

WA_R, WA_B, WA_BR = 170, 171, 172
def phase_w(a):
    t0, t1 = V_T+3, V_T+4
    a(f'v_lshrrev_b32 v{t0}, 5, v{V_LANE}', f'v_mul_u32_u24 v{t0}, 24, v{t0}', f'v_bfe_u32 v{t1}, v{V_LANE}, 2, 3', f'v_add_lshl_u32 v{t0}, v{t0}, v{t1}, 2',
      f's_mul_i32 s4, s{S_WAVE}, 768', f'v_add_u32 v{WA_R}, s4, v{t0}')
    a(f'v_and_b32 v{t0}, 3, v{V_LANE}', f'v_lshlrev_b32 v{t0}, 5, v{t0}', f'v_bfe_u32 v{t1}, v{V_LANE}, 4, 1', f'v_lshl_add_u32 v{t0}, v{t1}, 4, v{t0}',
      f'v_lshrrev_b32 v{t1}, 5, v{V_LANE}', f'v_lshl_add_u32 v{t0}, v{t1}, 3, v{t0}', f's_lshl_b32 s4, s{S_WAVE}, 7', f'v_add_u32 v{WA_B}, s4, v{t0}')
    a(f'v_and_b32 v{t0}, 31, v0', f'v_lshlrev_b32 v{WA_BR}, 2, v{t0}')
    a('s_and_b32 s6, s2, 7', 's_mul_i32 s6, s6, 2560', 's_lshr_b32 s4, s2, 3', 's_lshl_b32 s4, s4, 7', 's_add_u32 s6, s6, s4', f's_add_u32 s6, s6, {HP}', 's_mov_b32 s7, 0x07060302')
    a(f's_and_b32 s{S_T0}, s2, 7', f's_lshl_b32 s{S_T0}, s{S_T0}, 2', f's_add_u32 s{S_T0}, s{S_T0}, s{S_WAVE}',
      f's_lshl_b32 s{S_T0}, s{S_T0}, 13', f's_add_u32 s{S_T0}, s{S_T0}, {OP}', f's_add_u32 s{S_T1}, s{S_T0}, 4096', f'v_lshlrev_b32 v{V_T}, 4, v{V_LANE}')
    a(f's_mul_i32 s{S_T2}, s{S_WAVE}, 768', f'v_add_u32 v{V_T+2}, s{S_T2}, v{V_T}')
    a('s_bfm_b64 exec, 49, 0')
    O = 108
    def w_issue(Pr):
        for s in range(8): a(f'buffer_load_dwordx4 v[{Pr+4*s}:{Pr+4*s+3}], v{V_T}, {WS}, s{S_T0 if s < 4 else S_T1} offen offset:{1024*(s&3)} sc1')
    def w_post(Pr):
        Mx, Ls, Fs = 96, 97, 98
        a(f'v_max3_f32 v{Mx}, v{Pr}, v{Pr+4}, v{Pr+8}', f'v_max3_f32 v{Mx}, v{Mx}, v{Pr+12}, v{Pr+16}', f'v_max3_f32 v{Mx}, v{Mx}, v{Pr+20}, v{Pr+24}', f'v_max_f32 v{Mx}, v{Mx}, v{Pr+28}')
        a(f'v_mul_f32 v{Mx}, s{S_LOG2E}, v{Mx}')
        for s in range(8): a(f'v_fma_f32 v{Fs+s}, v{Pr+4*s}, s{S_LOG2E}, -v{Mx}')
        for s in range(8): a(f'v_exp_f32 v{Fs+s}, v{Fs+s}')
        a(f'v_mul_f32 v{Ls}, v{Pr+1}, v{Fs}')
        for s in range(1, 8): a(f'v_fmac_f32 v{Ls}, v{Pr+4*s+1}, v{Fs+s}')
        a(f'v_rcp_f32 v{Ls}, v{Ls}', 's_nop 0')
        for s in range(8): a(f'v_mul_f32 v{Fs+s}, v{Fs+s}, v{Ls}')
        for s in range(8): a(f'v_readlane_b32 s{S_G+s}, v{Fs+s}, 48')
        a('s_nop 1')
        for e in range(4): a(f'v_mul_f32 v{O+e}, s{S_G}, v{Pr+e}')
        for s in range(1, 8):
            for e in range(4): a(f'v_fmac_f32 v{O+e}, s{S_G+s}, v{Pr+4*s+e}')
    if OPT['ov']:
        poll2(a, w_issue, 32, 64, 128, 8, w_post, V_T+1)
    else:
        lbl = a.label('wspin'); spin_begin(a, lbl); w_issue(64); a('s_waitcnt vmcnt(0)'); spin_end(a, lbl, list(range(64, 96)), V_T+1); w_post(64)
    stamp(a, 5)
    for e in range(4): bf16r(a, O+e, O+e)
    a('s_bfm_b64 exec, 48, 0', f'ds_write_b128 v{V_T+2}, v[{O}:{O+3}] offset:{L_OV}', 's_mov_b64 exec, -1')
    a('s_waitcnt lgkmcnt(0)')
    U = 112
    for p in range(12): a(f'ds_read_b32 v{U+p}, v{WA_R} offset:{L_OV+4*(48*(p&3)+8*(p>>2))}')
    A = 160
    for q in range(6):
        a(f's_waitcnt lgkmcnt({10-2*q})', f'v_perm_b32 v{U+12+(q&1)}, v{U+2*q+1}, v{U+2*q}, s7')
        for i in range(4):
            c0 = '0' if q == 0 else f'v{A+2*i}'; c1 = '0' if q == 0 else f'v{A+2*i+1}'
            a(f'v_dot2_f32_bf16 v{A+2*i}, v{WGT+8*q+i}, v{U+12+(q&1)}, {c0}', f'v_dot2_f32_bf16 v{A+2*i+1}, v{WGT+8*q+4+i}, v{U+12+(q&1)}, {c1}')
    a('s_nop 2')
    for d in ('row_ror:4', 'row_ror:8'):
        for i in range(8): dpp(a, 'v_add_f32', A+i, d)
    swap_reduce(a, A, 4, 'v_permlane16_swap_b32')
    swap_reduce(a, A, 2, 'v_permlane32_swap_b32')
    a(f'ds_write_b64 v{WA_B}, v[{A}:{A+1}] offset:{L_B}', 's_waitcnt lgkmcnt(0)', 's_barrier')
    done = a.label('wd')
    a(f's_cmp_ge_u32 s{S_WAVE}, 1', f's_cbranch_scc1 {done}')
    for w in range(4): a(f'ds_read_b32 v{U+w}, v{WA_BR} offset:{L_B+128*w}')
    a('s_bfm_b64 exec, 32, 0', 's_waitcnt lgkmcnt(0)')
    a(f'v_add_f32 v{U}, v{U}, v{U+1}', f'v_add_f32 v{U+2}, v{U+2}, v{U+3}', f'v_add_f32 v{U}, v{U}, v{U+2}')
    a(f'buffer_store_dword v{U}, v{WA_BR}, {WS}, s6 offen sc1')
    a('s_mov_b64 exec, -1', f'{done}:')

H_HN, H_X = 70, 64
def phase_h(a):
    m_pre(a)
    a(f's_mul_i32 s{S_T0}, s{S_WAVE}, 640', f's_add_u32 s{S_T0}, s{S_T0}, {HP}', f's_add_u32 s{S_T1}, s{S_T0}, 5120', f's_add_u32 s{S_T2}, s{S_T0}, 10240', f's_add_u32 s{S_T3}, s{S_T0}, 15360')
    a(f'v_lshlrev_b32 v{V_T}, 4, v{V_LANE}')
    XF4 = 100
    a(f'v_lshlrev_b32 v{XF4}, 16, v{V_XW}', f'v_and_b32 v{XF4+1}, 0xffff0000, v{V_XW}', f'v_lshlrev_b32 v{XF4+2}, 16, v{V_XW+1}', f'v_and_b32 v{XF4+3}, 0xffff0000, v{V_XW+1}')
    a(f's_mul_i32 s{S_SPIN}, s{S_WAVE}, 320', f'v_lshlrev_b32 v{V_T+2}, 3, v{V_LANE}', f'v_add_u32 v{V_T+2}, s{S_SPIN}, v{V_T+2}')
    a('s_bfm_b64 exec, 40, 0')
    P = 64
    lbl = a.label('hspin'); spin_begin(a, lbl)
    for rb in range(8): a(f'buffer_load_dwordx4 v[{P+4*rb}:{P+4*rb+3}], v{V_T}, {WS}, s{S_T0 + rb//2} offen offset:{2560*(rb&1)} sc1')
    a('s_waitcnt vmcnt(0)')
    spin_end(a, lbl, list(range(P, P+32)), V_T+1)
    stamp(a, 7)
    def pk(d, x, y): a(f'v_pk_add_f32 v[{d}:{d+1}], v[{x}:{x+1}], v[{y}:{y+1}]')
    for h in (0, 2):
        pk(P+h, P+h, P+4+h); pk(P+8+h, P+8+h, P+12+h); pk(P+16+h, P+16+h, P+20+h); pk(P+24+h, P+24+h, P+28+h)
    for h in (0, 2):
        pk(P+h, P+h, P+8+h); pk(P+16+h, P+16+h, P+24+h)
    for h in (0, 2): pk(P+h, P+h, P+16+h)
    a(f'v_cvt_pk_bf16_f32 v{P+4}, v{P}, v{P+1}', f'v_cvt_pk_bf16_f32 v{P+5}, v{P+2}, v{P+3}')
    a(f'v_lshlrev_b32 v{P}, 16, v{P+4}', f'v_and_b32 v{P+1}, 0xffff0000, v{P+4}', f'v_lshlrev_b32 v{P+2}, 16, v{P+5}', f'v_and_b32 v{P+3}, 0xffff0000, v{P+5}')
    pk(P, P, XF4); pk(P+2, P+2, XF4+2)
    a(f'v_cvt_pk_bf16_f32 v{P+4}, v{P}, v{P+1}', f'v_cvt_pk_bf16_f32 v{P+5}, v{P+2}, v{P+3}')
    a(f'ds_write_b64 v{V_T+2}, v[{P+4}:{P+5}] offset:{L_H}', 's_mov_b64 exec, -1', f'v_lshlrev_b32 v{V_T}, 2, v{V_LANE}')
    a('s_waitcnt lgkmcnt(0)', 's_barrier')
    for j in range(5): a(f'ds_read_b32 v{H_X+j}, v{V_T} offset:{L_H+256*j}')
    a(f's_mul_i32 s{S_T0}, s{S_WAVE}, 1280', f'v_add_u32 v{V_T}, s{S_T0}, v{V_T}', 's_waitcnt lgkmcnt(0)')
    unpack5(a, H_X, H_HN)
    layernorm(a, H_HN, V_T+4)
    for j in range(5):
        a(f'v_cvt_pk_bf16_f32 v{H_X+j}, v{H_HN+2*j}, v{H_HN+2*j+1}', f'ds_write_b32 v{V_T}, v{H_X+j} offset:{L_XN+256*j}')

MA_XN, MA_D, MA_DR, MA_E, MA_ER, MA_F, MA_FR, MA_Y = 110, 111, 112, 113, 114, 115, 116, 117
S_NL2E = 4
def m_pre(a):
    t0, t1 = V_T, V_T+1
    a(f'v_and_b32 v{t0}, 127, v0', f'v_lshrrev_b32 v{t0}, 1, v{t0}', f'v_lshlrev_b32 v{t0}, 1, v{t0}', f's_mul_i32 s{S_T0}, s{S_WAVE}, 1280', f'v_add_u32 v{MA_XN}, s{S_T0}, v{t0}')
    a(f'v_and_b32 v{t0}, 1, v{V_LANE}', f'v_lshlrev_b32 v{t0}, 5, v{t0}', f'v_bfe_u32 v{t1}, v{V_LANE}, 4, 1', f'v_lshl_add_u32 v{t0}, v{t1}, 4, v{t0}',
      f'v_lshrrev_b32 v{t1}, 5, v{V_LANE}', f'v_lshl_add_u32 v{t0}, v{t1}, 3, v{t0}', f's_lshl_b32 s{S_T0}, s{S_WAVE}, 6', f'v_add_u32 v{MA_D}, s{S_T0}, v{t0}')
    a(f'v_and_b32 v{t0}, 15, v{V_LANE}', f'v_lshlrev_b32 v{MA_DR}, 2, v{t0}')
    a(f's_lshl_b32 s{S_T0}, s{S_WAVE}, 7', f'v_lshlrev_b32 v{t0}, 2, v{V_LANE}', f'v_add_u32 v{MA_E}, s{S_T0}, v{t0}')
    a(f'v_mul_u32_u24 v{t0}, 205, v0', f'v_lshrrev_b32 v{t0}, 14, v{t0}', f'v_lshl_add_u32 v{MA_ER}, v{t0}, 2, s{S_T0}')
    a(f'v_mul_u32_u24 v{t1}, 80, v{t0}', f'v_sub_u32 v{t1}, v0, v{t1}', f'v_lshlrev_b32 v{t1}, 5, v{t1}', f'v_mul_u32_u24 v{t0}, 2560, v{t0}', f'v_add_u32 v{MA_F}, v{t1}, v{t0}')
    a(f'v_lshlrev_b32 v{MA_FR}, 4, v0')
    a(f'v_lshrrev_b32 v{t0}, 2, v0', f'v_mul_u32_u24 v{t0}, 6144, v{t0}', f'v_and_b32 v{t1}, 3, v0', f'v_lshl_add_u32 v{MA_Y}, v{t1}, 4, v{t0}')
    a(f's_lshl_b32 s74, s{S_M}, 6', f's_add_u32 s74, s74, {YP}', f's_mov_b32 s{S_NL2E}, 0x{(LOG2E | 0x80000000):08x}', 's_mov_b32 s75, 0x07060302')
    a('s_movk_i32 s5, 240', 's_movk_i32 s6, 160', f'v_cmp_gt_u32 s[68:69], 16, v{V_LANE}', 'v_cmp_gt_u32 s[70:71], s5, v0', 'v_cmp_gt_u32 s[72:73], s6, v0')
def phase_m(a):
    U, A = 80, 96
    a('s_waitcnt vmcnt(0) lgkmcnt(0)')
    for p in range(10): a(f'ds_read_u16 v{U+p}, v{MA_XN} offset:{L_XN+128*p}')
    for q in range(5):
        a(f's_waitcnt lgkmcnt({8-2*q})', f'v_lshl_or_b32 v{U+10+(q&1)}, v{U+2*q+1}, 16, v{U+2*q}')
        for i in range(4):
            c0 = '0' if q == 0 else f'v{A+2*i}'; c1 = '0' if q == 0 else f'v{A+2*i+1}'
            a(f'v_dot2_f32_bf16 v{A+2*i}, v{WGT+8*q+i}, v{U+10+(q&1)}, {c0}', f'v_dot2_f32_bf16 v{A+2*i+1}, v{WGT+8*q+4+i}, v{U+10+(q&1)}, {c1}')
    a('s_nop 2')
    for d in ('quad_perm:[2,3,0,1]', 'row_ror:4', 'row_ror:8'):
        for i in range(8): dpp(a, 'v_add_f32', A+i, d)
    swap_reduce(a, A, 4, 'v_permlane16_swap_b32')
    swap_reduce(a, A, 2, 'v_permlane32_swap_b32')
    a(f'ds_write_b64 v{MA_D}, v[{A}:{A+1}] offset:{L_D}', 's_waitcnt lgkmcnt(0)', 's_barrier')
    for k in range(4): a(f'ds_read_b32 v{U+k}, v{MA_DR} offset:{L_D+64*k}')
    a('s_waitcnt lgkmcnt(0)')
    a(f'v_add_f32 v{U}, v{U}, v{U+1}', f'v_add_f32 v{U+2}, v{U+2}, v{U+3}')
    a(f'v_cvt_pk_bf16_f32 v{U+3}, v{U}, v{U+2}', f'v_lshlrev_b32 v{U}, 16, v{U+3}', f'v_and_b32 v{U+2}, 0xffff0000, v{U+3}')
    a(f'v_mul_f32 v{U+1}, s{S_NL2E}, v{U}', f'v_exp_f32 v{U+1}, v{U+1}', 's_nop 0', f'v_add_f32 v{U+1}, 1.0, v{U+1}', f'v_rcp_f32 v{U+1}, v{U+1}', 's_nop 0', f'v_mul_f32 v{U}, v{U}, v{U+1}')
    bf16r(a, U, U)
    a(f'v_mul_f32 v{U}, v{U}, v{U+2}')
    bf16r(a, U, U)
    a(f'v_cndmask_b32 v{U}, v{V_ZERO}, v{U}, s[68:69]')
    a('s_bfm_b64 exec, 18, 0', f'ds_write_b32 v{MA_E}, v{U} offset:{L_E}', 's_mov_b64 exec, -1', 's_waitcnt lgkmcnt(0)')
    for i in range(6): a(f'ds_read_b32 v{U+i}, v{MA_ER} offset:{L_E+12*i}')
    for q in range(3):
        a(f's_waitcnt lgkmcnt({4-2*q})', f'v_perm_b32 v{U+6+(q&1)}, v{U+2*q+1}, v{U+2*q}, s75')
        for e in range(4):
            c0 = '0' if q == 0 else f'v{A+2*e}'; c1 = '0' if q == 0 else f'v{A+2*e+1}'
            a(f'v_dot2_f32_bf16 v{A+2*e}, v{WGT+40+8*q+e}, v{U+6+(q&1)}, {c0}', f'v_dot2_f32_bf16 v{A+2*e+1}, v{WGT+40+8*q+4+e}, v{U+6+(q&1)}, {c1}')
    a('s_mov_b64 exec, s[70:71]', 's_nop 1')
    a(f'ds_write_b128 v{MA_F}, v[{A}:{A+3}] offset:{L_F}', f'ds_write_b128 v{MA_F}, v[{A+4}:{A+7}] offset:{L_F+16}')
    a('s_mov_b64 exec, -1', 's_waitcnt lgkmcnt(0)', 's_barrier')
    done = a.label('md')
    a(f's_cmp_ge_u32 s{S_WAVE}, 3', f's_cbranch_scc1 {done}', 's_mov_b64 exec, s[72:73]')
    for g in range(3): a(f'ds_read_b128 v[{U+4*g}:{U+4*g+3}], v{MA_FR} offset:{L_F+2560*g}')
    a('s_waitcnt lgkmcnt(0)')
    for e in (0, 2): a(f'v_pk_add_f32 v[{U+e}:{U+e+1}], v[{U+e}:{U+e+1}], v[{U+4+e}:{U+5+e}]')
    for e in (0, 2): a(f'v_pk_add_f32 v[{U+e}:{U+e+1}], v[{U+e}:{U+e+1}], v[{U+8+e}:{U+9+e}]')
    a(f'buffer_store_dwordx4 v[{U}:{U+3}], v{MA_Y}, {WS}, s74 offen sc1')
    a('s_mov_b64 exec, -1', f'{done}:')

def phase_f(a):
    U = 80
    a(f'v_dot2_f32_bf16 v{V_SIG}, v{H_X}, v{V_XW+5}, 0')
    for j in range(1, 5): a(f'v_dot2_f32_bf16 v{V_SIG}, v{H_X+j}, v{V_XW+5+j}, v{V_SIG}')
    a(f's_mul_i32 s{S_T0}, s{S_M}, 6144', f's_add_u32 s{S_T0}, s{S_T0}, {YP}', f's_add_u32 s{S_T1}, s{S_T0}, 4096', f'v_lshlrev_b32 v{V_T}, 3, v0')
    wave_red(a, [V_SIG], [V_T+1])
    bf16r(a, V_SIG, V_SIG)
    a(f'v_mul_f32 v{V_SIG}, s{S_LOG2E}, v{V_SIG}', f'v_sub_f32 v{V_SIG}, 0, v{V_SIG}', f'v_exp_f32 v{V_SIG}, v{V_SIG}', 's_nop 0',
      f'v_add_f32 v{V_SIG}, 1.0, v{V_SIG}', f'v_rcp_f32 v{V_SIG}, v{V_SIG}', 's_nop 0')
    bf16r(a, V_SIG, V_SIG)
    a(f'v_and_b32 v{V_T+2}, 15, v0', f's_lshl_b32 s{S_T2}, s{S_M}, 4', f'v_add_u32 v{V_T+2}, s{S_T2}, v{V_T+2}', f'v_lshlrev_b32 v{V_T+2}, 1, v{V_T+2}')
    HH = 126
    a(f'ds_read_u16 v{HH}, v{V_T+2} offset:{L_H}', f'ds_read_u16 v{HH+1}, v{V_T+2} offset:{L_XN}')
    srd(a, SRD_A, P_OUT, 1280)
    a(f'v_and_b32 v124, 7, v{V_LANE}', 'v_lshlrev_b32 v124, 3, v124', f'v_bfe_u32 v125, v{V_LANE}, 4, 1', 'v_lshl_add_u32 v124, v125, 2, v124',
      f's_lshl_b32 s{S_T2}, s{S_WAVE}, 6', f'v_add_u32 v124, s{S_T2}, v124', 'v_and_b32 v125, 15, v0', 'v_lshlrev_b32 v125, 2, v125')
    Y = 100
    def f_issue(P):
        a(f'buffer_load_dwordx2 v[{P}:{P+1}], v{V_T}, {WS}, s{S_T0} offen sc1', f'buffer_load_dwordx2 v[{P+2}:{P+3}], v{V_T}, {WS}, s{S_T0} offen offset:2048 sc1',
          f'buffer_load_dwordx2 v[{P+4}:{P+5}], v{V_T}, {WS}, s{S_T1} offen sc1')
    def f_post(P):
        a(f'v_add_f32 v{Y}, v{P}, v{P+2}', f'v_add_f32 v{Y+1}, v{P+1}, v{P+3}', f'v_add_f32 v{Y}, v{Y}, v{P+4}', f'v_add_f32 v{Y+1}, v{Y+1}, v{P+5}')
    if OPT['ov']:
        poll2(a, f_issue, 6, 80, 88, 3, f_post, V_T+1)
    else:
        lbl = a.label('fspin'); spin_begin(a, lbl); f_issue(80); a('s_waitcnt vmcnt(0)'); spin_end(a, lbl, list(range(80, 86)), V_T+1); f_post(80)
    stamp(a, 10)
    a('s_nop 1'); dpp(a, 'v_add_f32', Y, 'row_ror:8'); dpp(a, 'v_add_f32', Y+1, 'row_ror:8')
    swap_reduce(a, Y, 1, 'v_permlane16_swap_b32')
    a(f'v_mov_b32 v{Y+1}, v{Y}', 's_nop 1', f'v_permlane32_swap_b32 v{Y}, v{Y+1}', 's_nop 0', f'v_add_f32 v{Y}, v{Y}, v{Y+1}')
    a(f'ds_write_b32 v124, v{Y} offset:{L_G}', 's_waitcnt lgkmcnt(0)', 's_barrier')
    done = a.label('fd')
    a(f's_cmp_ge_u32 s{S_WAVE}, 1', f's_cbranch_scc1 {done}')
    U = 104
    for w in range(4): a(f'ds_read_b32 v{U+w}, v125 offset:{L_G+64*w}')
    a(f'v_lshlrev_b32 v{U+16}, 16, v{HH}', f'v_lshlrev_b32 v{U+17}, 16, v{HH+1}', 's_bfm_b64 exec, 16, 0', 's_waitcnt lgkmcnt(0)')
    a(f'v_add_f32 v{U}, v{U}, v{U+1}', f'v_add_f32 v{U+2}, v{U+2}, v{U+3}', f'v_add_f32 v{U}, v{U}, v{U+2}')
    bf16r(a, U, U)
    a(f'v_mul_f32 v{U}, v{U}, v{V_SIG}')
    bf16r(a, U, U)
    a(f'v_add_f32 v{U}, v{U+17}, v{U}')
    bf16r(a, U, U)
    a(f'v_add_f32 v{U}, v{U+16}, v{U}', f'v_cvt_pk_bf16_f32 v{U}, v{U}, v{U}')
    a(f'buffer_store_short v{U}, v{V_T+2}, {R(SRD_A)}, 0 offen', 's_mov_b64 exec, -1', f'{done}:')

DOC = """; ---------------------------------------------------------------------------------------------------------------
;  startup : LN(x); partial q over 80 rows of wq per workgroup; the 8 members of a head exchange the partials through the
;            workspace ({value, tag} granules, tag = epoch word + 1); hand-off areas are reset to a sentinel (0xffffffff) and
;            (scores through the workspace).
; ---------------------------------------------------------------------------------------------------------------"""
def build():
    a = Asm()
    name = NAME_BASE + '_kernel'
    hdr = header([f'; @launch grid=(256,1,1) block=(256,1,1) lds={LDS_BYTES}'])
    hdr += DOC.split('\n')
    a('.amdgcn_target "amdgcn-amd-amdhsa--gfx950"', '.text')
    end = a.label('end')
    a(f'.globl {name}', '.p2align 8', f'.type {name},@function', f'{name}:', 'L_code_start:')
    prologue(a, end)
    stamp(a, 0); dstamp(a, 4, True)
    startup(a)
    stream(a)
    stamp(a, 3); dstamp(a, 7)
    a('L_tail_start:')
    phase_t1(a)
    stamp(a, 4)
    rm = a.label('rolem'); fin = a.label('fin')
    a('s_cmp_ge_u32 s2, 160', f's_cbranch_scc1 {rm}')
    phase_w(a); stamp(a, 6)
    a(f's_branch {fin}', f'{rm}:')
    phase_h(a); stamp(a, 8)
    phase_m(a); stamp(a, 9)
    a(f's_cmp_ge_u32 s{S_M}, 40', f's_cbranch_scc1 {fin}')
    phase_f(a); stamp(a, 11)
    a(f'{fin}:', 's_waitcnt vmcnt(0) lgkmcnt(0)')
    stamp(a, 15); dstamp(a, 5)
    a('s_waitcnt vmcnt(0)')
    a(f'{end}:', 's_endpgm', 'L_code_end:')
    a('.section .rodata,"a"', '.p2align 6')
    a.lines.append(kernel_desc(name, 256, 102))
    return '\n'.join(hdr) + '\n' + a.text()

if __name__ == '__main__':
    for x in sys.argv[1:]:
        if x == 'stamp': OPT['stamp'] = 1
        elif '=' in x:
            k, v = x.split('='); assert k in OPT, k; OPT[k] = int(v)
    sys.stdout.write(build())
```

```python
import sys, struct
from asmlib import *

def f2u(x): return struct.unpack('<I', struct.pack('<f', x))[0]
SCALE = f2u(192 ** -0.5); LOG2E = f2u(1.4426950408889634); INV640 = f2u(1.0/640); EPS = f2u(1e-5); NEGBIG = f2u(-3.0e38)
KV_BYTES = 402653184; HEAD_BYTES = 12582912
CNT, OP, HP, YP, EPOCH, TS, QP2, WS_USED = 0x40000, 0x50000, 0x180000, 0xA0000, 0xE8000, 0xF0000, 0x100000, 0x240000
HPS = 20480 + 256
FLG = 0xEC000
SC = 0x1B0000
L_RED = 0
L_A, L_B, L_C, L_D, L_E, L_F, L_G = 0, 3072, 4096, 14336, 14592, 15104, 3072
L_XN = 24576
L_H = 29696
L_SM = 34816
L_OV = 35840
L_SC = 38912
LDS_BYTES = 38912 + 16384
S_WAVE = 3
SRD_K, SRD_V, SRD_WS, SRD_A, SRD_B = 8, 12, 16, 20, 24
S_HEAD, S_MEM, S_SCALE, S_LOG2E = 28, 29, 30, 31
S_T0, S_T1, S_T2, S_T3 = 32, 33, 34, 35
P_X, P_K, P_V, P_WQ, P_WO, P_BX, P_WR, P_WG = 36, 38, 40, 42, 44, 46, 48, 50
P_WU, P_WD, P_OUT, P_DBG, P_WS = 52, 54, 56, 58, 60
S_OFF, S_HB, S_CNT, S_NX, S_SPIN, S_M = 62, 63, 64, 65, 66, 67
S_G = 68
S_ROT, S_TAG, S_K, S_SU = 76, 77, 78, 79
S_ROW = 86
S_SCB, S_SCB0 = 71, 69
S_DST = 72
S_MASK = 74
V_SC = 112
V_G8 = 188
V_T1A, V_T4 = 190, 191
S_DBGK = 6
V_FLG = 172
S_OPR = 5
V_SCA = 189
SRD_C, SRD_D, SRD_E = 88, 92, 96
V_LANE, V_OFFB, V_ZERO = 1, 2, 3
V_Q, V_ACC, V_M, V_L, V_T = 4, 16, 40, 41, 42
V_ATOM, V_SIG, V_E, V_DBG = 56, 57, 58, 59
V_CPF = 52
V_RING = 64
PF = 116
WGT = 192
V_XW = 176
WS = f's[{SRD_WS}:{SRD_WS+3}]'
OPT = dict(P=0, NS1=59, NS=57, hrot=11, cpf=1, cpf2=1, stamp=0, stampw=0, wmode=0, qov=0, npre=4, ov=0, fast=1, wsplit=6, dstamp=0, hr=1, pp=1, slpw=0, slph=0, plate=1, wsw=6, mlate=0, dspread=0, flg=1, clate=0, la=0)

def srd(a, reg, ptr, size):
    a(f's_mov_b32 s{reg}, s{ptr}', f's_and_b32 s{reg+1}, s{ptr+1}, 0xffff', f's_mov_b32 s{reg+2}, {size}', f's_mov_b32 s{reg+3}, 0x20000')
def R(a_): return f's[{a_}:{a_+3}]'
def stamp(a, slot):
    if not OPT['stamp']: return
    sk = a.label('ts')
    a(f"s_cmp_lg_u32 s{S_WAVE}, {OPT['stampw']}", f's_cbranch_scc1 {sk}')
    a('s_memrealtime s[80:81]', 's_waitcnt lgkmcnt(0)')
    a(f's_lshl_b32 s82, s2, 7', f's_add_u32 s82, s82, {TS + slot*8}')
    a('v_mov_b32 v62, s80', 'v_mov_b32 v63, s81', 's_mov_b64 s[84:85], exec', 's_mov_b64 exec, 1')
    a(f'buffer_store_dwordx2 v[62:63], v{V_ZERO}, {WS}, s82 offen')
    a('s_mov_b64 exec, s[84:85]', 's_nop 1')
    a(f'{sk}:')
def dstamp(a, word, neg=False):
    if not OPT['dstamp']: return
    sk = a.label('ds')
    a(f's_cmp_lg_u32 s{S_WAVE}, 0', f's_cbranch_scc1 {sk}')
    a('s_memrealtime s[80:81]', 's_waitcnt lgkmcnt(0)')
    if neg: a('s_not_b32 s80, s80')
    a(f's_mov_b32 s84, s{P_DBG}', f's_and_b32 s85, s{P_DBG+1}, 0xffff')
    a('v_mov_b32 v62, s80', f'v_mov_b32 v63, {4*word}', 's_mov_b64 s[82:83], exec', 's_mov_b64 exec, 1')
    a(f'global_atomic_umax v63, v62, s[84:85]')
    a('s_mov_b64 exec, s[82:83]', 's_nop 1')
    a(f'{sk}:')
def bf16r(a, dst, src):
    a(f'v_cvt_pk_bf16_f32 v{dst}, v{src}, v{src}', f'v_and_b32 v{dst}, 0xffff0000, v{dst}')
def dpp(a, ins, v, d): a(f'{ins}_dpp v{v}, v{v}, v{v} {d} row_mask:0xf bank_mask:0xf')
def wave_red(a, vs, ts, op='v_add_f32'):
    pad = max(0, 2 - (len(vs) - 1))
    for d in ('quad_perm:[1,0,3,2]', 'quad_perm:[2,3,0,1]', 'row_half_mirror', 'row_mirror'):
        a('s_nop 1')
        for v in vs: dpp(a, op, v, d)
    for p in ('v_permlane16_swap_b32', 'v_permlane32_swap_b32'):
        for v, t in zip(vs, ts): a(f'v_mov_b32 v{t}, v{v}')
        a('s_nop 1')
        for v, t in zip(vs, ts): a(f'{p} v{t}, v{v}')
        a('s_nop 0')
        for v, t in zip(vs, ts): a(f'{op} v{v}, v{v}, v{t}')
def groups_red(a, v, t, op):
    a('s_nop 1'); dpp(a, op, v, 'row_ror:8')
    for p in ('v_permlane16_swap_b32', 'v_permlane32_swap_b32'):
        a(f'v_mov_b32 v{t}, v{v}', 's_nop 1', f'{p} v{t}, v{v}', 's_nop 0', f'{op} v{v}, v{v}, v{t}')
def swap_reduce(a, base, n, p):
    a('s_nop 1')
    for i in range(n): a(f'{p} v{base+i}, v{base+n+i}')
    a('s_nop 0')
    if n % 2 == 0 and base % 2 == 0:
        for i in range(0, n, 2): a(f'v_pk_add_f32 v[{base+i}:{base+i+1}], v[{base+i}:{base+i+1}], v[{base+n+i}:{base+n+i+1}]')
    else:
        for i in range(n): a(f'v_add_f32 v{base+i}, v{base+i}, v{base+n+i}')
def unpack5(a, src, dst):
    for j in range(5): a(f'v_lshlrev_b32 v{dst+2*j}, 16, v{src+j}', f'v_and_b32 v{dst+2*j+1}, 0xffff0000, v{src+j}')
def layernorm(a, x, t):
    s1, s2, u, w2, sd, mean = t, t+1, t+2, t+3, t+4, t+5
    a('s_nop 0', f'v_readfirstlane_b32 s{S_T0}, v{x}', 's_nop 1')
    a(f'v_subrev_f32 v{s1}, s{S_T0}, v{x}', f'v_mul_f32 v{s2}, v{s1}, v{s1}')
    for i in range(1, 10):
        a(f'v_subrev_f32 v{u}, s{S_T0}, v{x+i}', f'v_add_f32 v{s1}, v{s1}, v{u}', f'v_fmac_f32 v{s2}, v{u}, v{u}')
    wave_red(a, [s1, s2], [u, w2])
    a(f'v_mul_f32 v{s1}, 0x{INV640:08x}, v{s1}', f'v_mul_f32 v{s2}, 0x{INV640:08x}, v{s2}')
    a(f'v_fma_f32 v{s2}, -v{s1}, v{s1}, v{s2}', f'v_max_f32 v{s2}, 0, v{s2}')
    a(f'v_add_f32 v{mean}, s{S_T0}, v{s1}')
    bf16r(a, s2, s2)
    a(f'v_add_f32 v{s2}, 0x{EPS:08x}, v{s2}')
    bf16r(a, s2, s2)
    a(f'v_sqrt_f32 v{sd}, v{s2}')
    bf16r(a, mean, mean)
    bf16r(a, sd, sd)
    a(f'v_rcp_f32 v{sd}, v{sd}')
    for i in range(0, 10, 2):
        a(f'v_sub_f32 v{x+i}, v{x+i}, v{mean}', f'v_sub_f32 v{x+i+1}, v{x+i+1}, v{mean}', f'v_cvt_pk_bf16_f32 v{u}, v{x+i}, v{x+i+1}',
          f'v_lshlrev_b32 v{x+i}, 16, v{u}', f'v_and_b32 v{x+i+1}, 0xffff0000, v{u}', f'v_mul_f32 v{x+i}, v{x+i}, v{sd}', f'v_mul_f32 v{x+i+1}, v{x+i+1}, v{sd}')
def pv_unit(a, vreg, plo, phi):
    for j in range(3):
        for i in range(4):
            a(f'v_dot2_f32_bf16 v{V_ACC+8*j+2*i}, v{vreg+4*j+i}, v{plo}, v{V_ACC+8*j+2*i}')
            a(f'v_dot2_f32_bf16 v{V_ACC+8*j+2*i+1}, v{vreg+4*j+i}, v{phi}, v{V_ACC+8*j+2*i+1}')
def acc_addr(a, dst, t):
    a(f'v_and_b32 v{dst}, 7, v{V_LANE}', f'v_mul_u32_u24 v{dst}, 96, v{dst}', f'v_bfe_u32 v{t}, v{V_LANE}, 4, 1', f'v_mul_u32_u24 v{t}, 48, v{t}', f'v_add_u32 v{dst}, v{dst}, v{t}',
      f'v_lshrrev_b32 v{t}, 5, v{V_LANE}', f'v_mul_u32_u24 v{t}, 24, v{t}', f's_mul_i32 s{S_T0}, s{S_WAVE}, 768', f'v_add3_u32 v{dst}, v{dst}, v{t}, s{S_T0}')
def acc_reduce_write(a, lbase, t, addr=None):
    a('s_nop 2')
    for i in range(24): dpp(a, 'v_add_f32', V_ACC+i, 'row_ror:8')
    swap_reduce(a, V_ACC, 12, 'v_permlane16_swap_b32')
    if addr is None:
        acc_addr(a, t, t+1); addr = t
    swap_reduce(a, V_ACC, 6, 'v_permlane32_swap_b32')
    for i in range(3): a(f'ds_write_b64 v{addr}, v[{V_ACC+2*i}:{V_ACC+2*i+1}] offset:{lbase+8*i}')
def m_index(a):
    a(f's_sub_u32 s{S_T0}, s2, 160', f's_and_b32 s{S_T1}, s{S_T0}, 7', f's_mul_i32 s{S_T1}, s{S_T1}, 12', f's_lshr_b32 s{S_T0}, s{S_T0}, 3', f's_add_u32 s{S_M}, s{S_T0}, s{S_T1}')
def role_branch(a, wbody, mbody):
    lm = a.label('rm'); le = a.label('re')
    a('s_cmp_ge_u32 s2, 160', f's_cbranch_scc1 {lm}'); wbody(); a(f's_branch {le}', f'{lm}:'); mbody(); a(f'{le}:')
def spin_begin(a, lbl): a(f's_mov_b32 s{S_SPIN}, 0', f'{lbl}:')
def spin_end(a, lbl, regs, t, slp=0):
    ok = a.label('ok')
    a(f'v_max3_u32 v{t}, v{regs[0]}, v{regs[1]}, v{regs[2]}'); rest = regs[3:]
    while len(rest) >= 2:
        a(f'v_max3_u32 v{t}, v{t}, v{rest[0]}, v{rest[1]}'); rest = rest[2:]
    if rest: a(f'v_max_u32 v{t}, v{t}, v{rest[0]}')
    a(f'v_cmp_eq_u32 vcc, -1, v{t}', f's_cbranch_vccz {ok}')
    if slp: a(f's_sleep {slp}')
    a(f's_add_u32 s{S_SPIN}, s{S_SPIN}, 1', f's_cmp_lt_u32 s{S_SPIN}, 200000', f's_cbranch_scc1 {lbl}')
    a(f'{ok}:')
def sent_check(a, regs, t):
    a(f'v_max3_u32 v{t}, v{regs[0]}, v{regs[1]}, v{regs[2]}'); rest = regs[3:]
    while len(rest) >= 2:
        a(f'v_max3_u32 v{t}, v{t}, v{rest[0]}, v{rest[1]}'); rest = rest[2:]
    if rest: a(f'v_max_u32 v{t}, v{t}, v{rest[0]}')
    a(f'v_cmp_eq_u32 vcc, -1, v{t}')
def poll2(a, issue_fn, nregs, baseA, baseB, nloads, post, t):
    lbl = a.label('spin'); okA = a.label('okA'); okB = a.label('okB'); join = a.label('join')
    a(f's_mov_b32 s{S_SPIN}, 0')
    issue_fn(baseA)
    a(f'{lbl}:')
    issue_fn(baseB)
    a(f's_waitcnt vmcnt({nloads})'); sent_check(a, list(range(baseA, baseA+nregs)), t); a(f's_cbranch_vccz {okA}')
    issue_fn(baseA)
    a(f's_waitcnt vmcnt({nloads})'); sent_check(a, list(range(baseB, baseB+nregs)), t); a(f's_cbranch_vccz {okB}')
    a(f's_add_u32 s{S_SPIN}, s{S_SPIN}, 1', f's_cmp_lt_u32 s{S_SPIN}, 100000', f's_cbranch_scc1 {lbl}', f's_branch {okA}')
    a(f'{okB}:'); post(baseB); a(f's_branch {join}')
    a(f'{okA}:'); post(baseA)
    a(f'{join}:')
def code_prefetch(a, start, end, n, vtmp):
    pc = a.label('pc')
    a(f's_getpc_b64 s[{SRD_C}:{SRD_C+1}]', f'{pc}:')
    if start == 'L_code_start': a(f's_sub_u32 s{SRD_C}, s{SRD_C}, {pc}-{start}', f's_subb_u32 s{SRD_C+1}, s{SRD_C+1}, 0')
    else: a(f's_add_u32 s{SRD_C}, s{SRD_C}, {start}-{pc}', f's_addc_u32 s{SRD_C+1}, s{SRD_C+1}, 0')
    a(f's_and_b32 s{SRD_C+1}, s{SRD_C+1}, 0xffff', f's_mov_b32 s{SRD_C+2}, {end}-{start}', f's_mov_b32 s{SRD_C+3}, 0x20000')
    a(f's_lshr_b32 s{S_T0}, s2, 3', f's_mul_i32 s{S_T0}, s{S_T0}, ((({end}-{start})+31)/32+15)&0xfffffff0')
    a(f'v_lshlrev_b32 v{vtmp}, 4, v{V_LANE}')
    for i in range(n): a(f'buffer_load_dwordx4 v[{V_CPF}:{V_CPF+3}], v{vtmp}, {R(SRD_C)}, s{S_T0} offen offset:{1024*i}')

def prologue(a, endlabel):
    a('s_cmp_ge_u32 s2, 256', f's_cbranch_scc1 {endlabel}')
    a('s_load_dwordx16 s[36:51], s[0:1], 0', 's_load_dwordx8 s[52:59], s[0:1], 64', 's_load_dwordx2 s[60:61], s[0:1], 96')
    a(f'v_lshrrev_b32 v{V_LANE}, 6, v0', f'v_mov_b32 v{V_ZERO}, 0', f'v_readfirstlane_b32 s{S_WAVE}, v{V_LANE}', f'v_and_b32 v{V_LANE}, 63, v0')
    a(f'v_lshrrev_b32 v{V_T}, 3, v{V_LANE}', f'v_mul_u32_u24 v{V_T}, 384, v{V_T}', f'v_and_b32 v{V_T+1}, 7, v{V_LANE}', f'v_lshl_add_u32 v{V_OFFB}, v{V_T+1}, 4, v{V_T}')
    a(f's_mov_b32 s{S_SCALE}, 0x{SCALE:08x}', f's_mov_b32 s{S_LOG2E}, 0x{LOG2E:08x}')
    a(f's_lshr_b32 s{S_T0}, s2, 3', f's_and_b32 s{S_MEM}, s2, 7', f's_lshl_b32 s{S_T1}, s{S_MEM}, 2', f's_add_u32 s{S_T0}, s{S_T0}, s{S_T1}', f's_and_b32 s{S_HEAD}, s{S_T0}, 31')
    a(f's_lshl_b32 s{S_ROW}, s{S_HEAD}, 3', f's_add_u32 s{S_ROW}, s{S_ROW}, s{S_MEM}')
    a('s_waitcnt lgkmcnt(0)')
    srd(a, SRD_WS, P_WS, WS_USED)
    for r in (SRD_C, SRD_D, SRD_E): srd(a, r, P_WS, WS_USED)

V_PA, V_PB, S_PA, S_PB, S_PRE = 48, 49, 87, 100, 101
def w_setup(a):
    srd(a, SRD_C, P_WO, 7864320)
    a(f's_and_b32 s{S_T0}, s2, 7', f's_mul_i32 s{S_T0}, s{S_T0}, 768', f's_mul_i32 s{S_T1}, s{S_WAVE}, 192', f's_add_u32 s{S_T0}, s{S_T0}, s{S_T1}',
      f's_mul_i32 s{S_T0}, s{S_T0}, 1280', f's_lshr_b32 s{S_T1}, s2, 3', f's_lshl_b32 s{S_T1}, s{S_T1}, 6', f's_add_u32 s{S_PA}, s{S_T0}, s{S_T1}')
    a(f'v_lshrrev_b32 v{V_PA}, 2, v{V_LANE}', f'v_mul_u32_u24 v{V_PA}, 1280, v{V_PA}', f'v_and_b32 v{V_PB}, 3, v{V_LANE}', f'v_lshl_add_u32 v{V_PA}, v{V_PB}, 4, v{V_PA}')
def w_loads():
    return [f'buffer_load_dwordx4 v[{WGT+4*p}:{WGT+4*p+3}], v{V_PA}, {R(SRD_C)}, s{S_PA} offen nt\ns_add_u32 s{S_PA}, s{S_PA}, {16*1280}' for p in range(12)]
def m_setup(a):
    a(f's_cmp_ge_u32 s{S_WAVE}, 2', f's_cselect_b32 s{S_T0}, s{P_WU}, s{P_WG}', f's_cselect_b32 s{S_T1}, s{P_WU+1}, s{P_WG+1}')
    srd(a, SRD_C, S_T0, 1966080); srd(a, SRD_D, P_WD, 1966080)
    a(f'v_and_b32 v{V_PB}, 127, v0', f'v_lshrrev_b32 v{V_PA}, 1, v{V_PB}', f'v_mul_u32_u24 v{V_PA}, 3072, v{V_PA}', f'v_and_b32 v{V_PB}, 1, v{V_PB}', f'v_lshl_add_u32 v{V_PA}, v{V_PB}, 4, v{V_PA}')
    a(f's_lshl_b32 s{S_PA}, s{S_M}, 5')
    a(f'v_mul_u32_u24 v{V_PB}, 205, v0', f'v_lshrrev_b32 v{V_PB}, 14, v{V_PB}', f'v_mul_u32_u24 v50, 80, v{V_PB}', f'v_sub_u32 v50, v0, v50',
      f'v_mul_u32_u24 v{V_PB}, 1280, v{V_PB}', f'v_lshl_add_u32 v{V_PB}, v50, 4, v{V_PB}', f's_mul_i32 s{S_PB}, s{S_M}, {16*1280}')
def m_loads():
    l = [f'buffer_load_dwordx4 v[{WGT+4*p}:{WGT+4*p+3}], v{V_PA}, {R(SRD_C)}, s{S_PA} offen nt\ns_add_u32 s{S_PA}, s{S_PA}, {64*3072}' for p in range(10)]
    l += [f'buffer_load_dwordx4 v[{WGT+40+4*i}:{WGT+40+4*i+3}], v{V_PB}, {R(SRD_D)}, s{S_PB} offen nt\ns_add_u32 s{S_PB}, s{S_PB}, 3840' for i in range(6)]
    return l
def w_weights(a):
    w_setup(a)
    for l in w_loads(): a(l)
def m_weights(a):
    m_setup(a)
    for l in m_loads(): a(l)
NW_W, NW_M = 12, 16

def setoff(a):
    a(f's_add_u32 s{S_OFF}, s{S_NX}, s{S_ROT}', f's_and_b32 s{S_OFF}, s{S_OFF}, 2047', f's_mul_i32 s{S_OFF}, s{S_OFF}, 6144', f's_add_u32 s{S_OFF}, s{S_OFF}, s{S_HB}')
def issue(a, r, srd_=None):
    srd_ = SRD_K if srd_ is None else srd_
    for j in range(6): a(f'buffer_load_dwordx4 v[{r+4*j}:{r+4*j+3}], v{V_OFFB}, {R(srd_)}, s{S_OFF} offen offset:{128*(j%3)+3072*(j//3)} nt')
def atomic(a, reg=None):
    reg = V_ATOM if reg is None else reg
    a(f'v_mov_b32 v{reg}, 1', 's_mov_b64 exec, 1', f'buffer_atomic_add v{reg}, v{V_ZERO}, {WS}, s{S_CNT} offen sc0', 's_mov_b64 exec, -1')
def static_next(a):
    a(f's_mov_b32 s{S_NX}, s{S_SU}', f's_add_u32 s{S_SU}, s{S_SU}, 32', f's_add_u32 s{S_K}, s{S_K}, 1')
def scores(a, r):
    ta = (V_T, V_T+2, V_T+3); tb = (V_T+1, V_T+4, V_T+5)
    for i in range(4):
        for u, ts in ((0, ta), (1, tb)):
            for j, t in enumerate(ts):
                c = '0' if i == 0 else f'v{t}'
                a(f'v_dot2_f32_bf16 v{t}, v{r+12*u+4*j+i}, v{V_Q+4*j+i}, {c}')
    a('s_nop 1')
    a(f'v_add_f32 v{ta[0]}, v{ta[0]}, v{ta[1]}', f'v_add_f32 v{tb[0]}, v{tb[0]}, v{tb[1]}', f'v_add_f32 v{ta[0]}, v{ta[0]}, v{ta[2]}', f'v_add_f32 v{tb[0]}, v{tb[0]}, v{tb[2]}')
    for d in ('quad_perm:[1,0,3,2]', 'quad_perm:[2,3,0,1]', 'row_half_mirror'):
        a('s_nop 0'); dpp(a, 'v_add_f32', V_T, d); dpp(a, 'v_add_f32', V_T+1, d)
    a(f'v_cvt_pk_bf16_f32 v{V_T+2}, v{V_T}, v{V_T+1}', f'v_lshlrev_b32 v{V_T}, 16, v{V_T+2}', f'v_and_b32 v{V_T+1}, 0xffff0000, v{V_T+2}',
      f'v_mul_f32 v{V_T}, s{S_SCALE}, v{V_T}', f'v_mul_f32 v{V_T+1}, s{S_SCALE}, v{V_T+1}',
      f'v_cvt_pk_bf16_f32 v{V_T+2}, v{V_T}, v{V_T+1}', f'v_lshlrev_b32 v{V_T}, 16, v{V_T+2}', f'v_and_b32 v{V_T+1}, 0xffff0000, v{V_T+2}')
def k_step(a, slot, base=None):
    scores(a, V_RING + 24*slot if base is None else base)
    dy = a.label('kd'); jn = a.label('kj')
    a(f's_cmp_lt_i32 s{S_DST+slot}, 0', f's_mov_b64 exec, s[{S_MASK}:{S_MASK+1}]', f's_cbranch_scc1 {dy}')
    a(f'v_add_u32 v{V_T+2}, s{S_DST+slot}, v{V_SCA}', f'ds_write_b64 v{V_T+2}, v[{V_T}:{V_T+1}] offset:{L_SC}', f's_branch {jn}')
    a(f'{dy}:', f's_and_b32 s{S_T0}, s{S_DST+slot}, 0x7fffffff', f'buffer_store_dwordx2 v[{V_T}:{V_T+1}], v{V_G8}, {WS}, s{S_T0} offen sc1', f'{jn}:')
    a('s_mov_b64 exec, -1')
def v_step(a, slot):
    r = V_RING + 24*slot; sa, sb = V_SC+2*slot, V_SC+2*slot+1
    t1, t2, t3, t4 = V_T, V_T+2, V_T+3, V_T+4
    a(f'v_max3_f32 v{t1}, v{V_M}, v{sa}, v{sb}', f'v_sub_f32 v{t2}, v{V_M}, v{t1}', f'v_sub_f32 v{t3}, v{sa}, v{t1}', f'v_sub_f32 v{t4}, v{sb}, v{t1}',
      f'v_mul_f32 v{t2}, s{S_LOG2E}, v{t2}', f'v_mul_f32 v{t3}, s{S_LOG2E}, v{t3}', f'v_mul_f32 v{t4}, s{S_LOG2E}, v{t4}',
      f'v_exp_f32 v{t2}, v{t2}', f'v_exp_f32 v{t3}, v{t3}', f'v_exp_f32 v{t4}, v{t4}', f'v_mov_b32 v{V_M}, v{t1}',
      f'v_fma_f32 v{V_L}, v{V_L}, v{t2}, v{t3}', f'v_cvt_pk_bf16_f32 v{t1}, v{t3}, 0', f'v_cvt_pk_bf16_f32 v{t1+1}, 0, v{t3}',
      f'v_add_f32 v{V_L}, v{V_L}, v{t4}', f'v_cvt_pk_bf16_f32 v{t4+1}, v{t4}, 0', f'v_cvt_pk_bf16_f32 v{t4}, 0, v{t4}')
    for i in range(12):
        a(f'v_pk_mul_f32 v[{V_ACC+2*i}:{V_ACC+2*i+1}], v[{V_ACC+2*i}:{V_ACC+2*i+1}], v[{t2}:{t2+1}] op_sel_hi:[1,0]')
    pv_unit(a, r, t1, t1+1)
    pv_unit(a, r+12, t4+1, t4)

def clears(a):
    for i in range(4): a(f'v_mov_b32 v{V_T+2+i}, -1')
    a(f's_lshl_b32 s{S_T0}, s{S_ROW}, 10', f's_add_u32 s{S_T0}, s{S_T0}, {OP}', f'v_lshlrev_b32 v{V_T}, 2, v0')
    a(f'buffer_store_dword v{V_T+2}, v{V_T}, {WS}, s{S_T0} offen sc1')
    a(f's_lshl_b32 s{S_T0}, s{S_ROW}, 11', f's_add_u32 s{S_T0}, s{S_T0}, {SC}', f'v_lshlrev_b32 v{V_T+1}, 3, v0')
    a(f'buffer_store_dwordx2 v[{V_T+2}:{V_T+3}], v{V_T+1}, {WS}, s{S_T0} offen sc1')
    def wclr():
        sk = a.label('wc')
        a(f's_cmp_lg_u32 s{S_WAVE}, 0', f's_cbranch_scc1 {sk}')
        a(f's_and_b32 s{S_T0}, s2, 7', f's_mul_i32 s{S_T0}, s{S_T0}, 2560', f's_lshr_b32 s{S_T1}, s2, 3', f's_lshl_b32 s{S_T1}, s{S_T1}, 7',
          f's_add_u32 s{S_T0}, s{S_T0}, s{S_T1}', f's_add_u32 s{S_T0}, s{S_T0}, {HP}')
        a('v_cmp_gt_u32 vcc, 32, v0', 's_and_saveexec_b64 s[34:35], vcc')
        for r in range(OPT['hr']):
            a(f'buffer_store_dword v{V_T+2}, v{V_T}, {WS}, s{S_T0} offen sc1')
            if r < OPT['hr']-1: a(f's_add_u32 s{S_T0}, s{S_T0}, {HPS}')
        a('s_mov_b64 exec, s[34:35]', f'{sk}:')
    def mclr():
        m_index(a)
        sk = a.label('mc')
        a(f's_cmp_ge_u32 s{S_WAVE}, 3', f's_cbranch_scc1 {sk}')
        a(f'v_lshrrev_b32 v{V_T}, 2, v0', f'v_mul_u32_u24 v{V_T}, 6144, v{V_T}', f'v_and_b32 v{V_T+1}, 3, v0', f'v_lshl_add_u32 v{V_T}, v{V_T+1}, 4, v{V_T}',
          f's_lshl_b32 s{S_T0}, s{S_M}, 6', f's_add_u32 s{S_T0}, s{S_T0}, {YP}')
        a('v_cmp_gt_u32 vcc, 160, v0', 's_and_saveexec_b64 s[34:35], vcc', f'buffer_store_dwordx4 v[{V_T+2}:{V_T+5}], v{V_T}, {WS}, s{S_T0} offen sc1', 's_mov_b64 exec, s[34:35]', f'{sk}:')
    role_branch(a, wclr, mclr)
    sk = a.label('cz')
    a(f's_lshl_b32 s{S_CNT}, s{S_HEAD}, 8', f's_add_u32 s{S_CNT}, s{S_CNT}, {CNT}')
    a(f's_or_b32 s{S_T0}, s{S_MEM}, s{S_WAVE}', f's_cmp_lg_u32 s{S_T0}, 0', f's_cbranch_scc1 {sk}', 's_mov_b64 exec, 1')
    a(f'buffer_store_dword v{V_ZERO}, v{V_ZERO}, {WS}, s{S_CNT} offen sc1', f'buffer_store_dword v{V_ZERO}, v{V_ZERO}, {WS}, s{S_CNT} offen offset:128 sc1', 's_mov_b64 exec, -1', f'{sk}:')

def startup(a):
    P = OPT['P']; NC = 2 if OPT['cpf'] else 0
    X, XF, W = 64, 70, 80
    srd(a, SRD_A, P_X, 1280); srd(a, SRD_B, P_WQ, 7864320)
    a(f'v_lshlrev_b32 v{V_T}, 2, v{V_LANE}', f's_mov_b32 s{S_T0}, {EPOCH}')
    a(f'buffer_load_dword v{V_E}, v{V_ZERO}, {WS}, s{S_T0} offen sc1')
    for j in range(5): a(f'buffer_load_dword v{X+j}, v{V_T}, {R(SRD_A)}, 0 offen offset:{256*j}')
    a(f'v_lshrrev_b32 v{V_T+1}, 3, v{V_LANE}', f'v_mul_u32_u24 v{V_T+1}, 12288, v{V_T+1}', f'v_and_b32 v{V_T+2}, 7, v{V_LANE}', f'v_lshl_add_u32 v{V_T+1}, v{V_T+2}, 4, v{V_T+1}')
    a(f's_mul_i32 s70, s{S_MEM}, 80', f's_lshl_b32 s{S_T1}, s{S_WAVE}, 3', f's_add_u32 s70, s70, s{S_T1}',
      f's_mul_i32 s{S_T1}, s70, 12288', f's_mul_i32 s{S_T2}, s{S_HEAD}, 384', f's_add_u32 s{S_T1}, s{S_T1}, s{S_T2}')
    third = a.label('q3')
    for u in range(3):
        if u == 2: a(f's_cmp_ge_u32 s{S_WAVE}, 2', f's_cbranch_scc1 {third}')
        for j in range(3): a(f'buffer_load_dwordx4 v[{W+12*u+4*j}:{W+12*u+4*j+3}], v{V_T+1}, {R(SRD_B)}, s{S_T1} offen offset:{128*j} nt')
        a(f's_add_u32 s{S_T1}, s{S_T1}, {32*12288}')
    a(f'{third}:')
    srd(a, SRD_K, P_K, KV_BYTES); srd(a, SRD_V, P_V, KV_BYTES)
    a(f's_lshl_b32 s{S_CNT}, s{S_HEAD}, 8', f's_add_u32 s{S_CNT}, s{S_CNT}, {CNT}')
    a('s_cmp_ge_u32 s2, 160')
    lmi = a.label('mi')
    a(f's_cbranch_scc0 {lmi}')
    m_index(a)
    a(f'{lmi}:')
    if not OPT['clate']: clears(a)
    a(f's_mul_i32 s{S_HB}, s{S_HEAD}, {HEAD_BYTES}', f"s_mul_i32 s{S_ROT}, s{S_HEAD}, {OPT['hrot']}")
    a(f's_lshl_b32 s{S_SU}, s{S_MEM}, 2', f's_add_u32 s{S_SU}, s{S_SU}, s{S_WAVE}', f's_mov_b32 s{S_K}, 0')
    a(f's_lshl_b32 s{S_SCB0}, s{S_HEAD}, 14', f's_add_u32 s{S_SCB0}, s{S_SCB0}, {SC}', f's_or_b32 s{S_SCB}, s{S_SCB0}, 0x80000000')
    nopf = a.label('nopf'); pfd = a.label('pfd')
    a(f's_cmp_ge_u32 s{S_WAVE}, 3', f's_cbranch_scc1 {nopf}')
    if NC: code_prefetch(a, 'L_code_start', 'L_code_end', NC, V_T)
    PE = 0 if OPT['plate'] else P
    for k in range(PE):
        static_next(a); setoff(a); issue(a, PF + 24*k)
    NST = 0 if OPT['clate'] else 1
    a(f's_waitcnt vmcnt({6+NST+NC+6*PE})', f's_branch {pfd}', f'{nopf}:', f's_waitcnt vmcnt({6+NST})', f'{pfd}:')
    a(f'v_readfirstlane_b32 s{S_TAG}, v{V_E}')
    unpack5(a, X, XF)
    a(f's_add_u32 s{S_TAG}, s{S_TAG}, 1')
    for i in range(24): a(f'v_mov_b32 v{V_ACC+i}, 0')
    layernorm(a, XF, V_T+4)
    for j in range(5): a(f'v_cvt_pk_bf16_f32 v{X+j}, v{XF+2*j}, v{XF+2*j+1}')
    a(f's_mul_i32 s{S_T2}, s{S_WAVE}, 1280', f'v_lshlrev_b32 v{V_T}, 2, v{V_LANE}', f'v_add_u32 v{V_T}, s{S_T2}, v{V_T}')
    for j in range(5): a(f'ds_write_b32 v{V_T}, v{X+j} offset:{L_XN+256*j}')
    a(f's_lshl_b32 s{S_T0}, s70, 1', f's_add_u32 s{S_T0}, s{S_T0}, s{S_T2}', f'v_lshrrev_b32 v{V_T}, 3, v{V_LANE}', f'v_lshlrev_b32 v{V_T}, 1, v{V_T}', f'v_add_u32 v{V_T}, s{S_T0}, v{V_T}')
    a('s_waitcnt lgkmcnt(0)')
    for u in range(3): a(f'ds_read_u16 v{X+u}, v{V_T} offset:{L_XN+64*u}')
    w3 = a.label('w3'); w3d = a.label('w3d')
    a(f's_cmp_ge_u32 s{S_WAVE}, 3', f's_cbranch_scc1 {w3}', f's_waitcnt lgkmcnt(0) vmcnt({NC+6*PE})', f's_branch {w3d}',
      f'{w3}:', 's_waitcnt lgkmcnt(0) vmcnt(0)', f'{w3d}:')
    NE = OPT['wsplit'] if OPT['wmode'] <= 1 else 0
    NEW = OPT['wsw'] if NE else 0
    if NE:
        ske = a.label('ske')
        role_branch(a, lambda: w_setup(a), lambda: m_setup(a))
        a(f's_cmp_ge_u32 s{S_WAVE}, 3', f's_cbranch_scc1 {ske}')
        role_branch(a, lambda: [a(l) for l in w_loads()[:NEW]], lambda: [a(l) for l in m_loads()[10:10+NE]])
        a(f'{ske}:')
    stamp(a, 12)
    skip = a.label('q3b')
    for u in range(3):
        if u == 2: a(f's_cmp_ge_u32 s{S_WAVE}, 2', f's_cbranch_scc1 {skip}')
        a(f'v_lshlrev_b32 v{X+4}, 16, v{X+u}')
        pv_unit(a, W+12*u, X+u, X+4)
    a(f'{skip}:')
    acc_reduce_write(a, L_A, V_T)
    a('s_waitcnt lgkmcnt(0)', 's_barrier')
    stamp(a, 1)
    gat = a.label('gat'); qrdy = a.label('qrdy')
    a(f's_cmp_ge_u32 s{S_WAVE}, 3', f's_cbranch_scc1 {gat}')
    a(f'v_lshlrev_b32 v{V_T}, 2, v0')
    for w in range(4): a(f'ds_read_b32 v{96+w}, v{V_T} offset:{L_A+768*w}')
    a(f's_lshl_b32 s{S_T0}, s{S_ROW}, 11', f's_add_u32 s{S_T0}, s{S_T0}, {QP2}', f'v_lshlrev_b32 v{V_T}, 3, v0', 's_waitcnt lgkmcnt(0)')
    a('v_add_f32 v96, v96, v97', 'v_add_f32 v98, v98, v99', f'v_mov_b32 v97, s{S_TAG}', 'v_add_f32 v96, v96, v98')
    a(f'buffer_store_dwordx2 v[96:97], v{V_T}, {WS}, s{S_T0} offen sc1')
    if OPT['clate']: clears(a)
    if OPT['plate']:
        for k in range(P):
            static_next(a); setoff(a); issue(a, PF + 24*k)
        if OPT['wmode'] == 1: a(f's_waitcnt vmcnt({6*P})')
    elif OPT['wmode'] == 1: a('s_waitcnt vmcnt(0)')
    if OPT['wmode'] <= 1:
        if NE:
            role_branch(a, lambda: [a(l) for l in w_loads()[NEW:]], lambda: [a(l) for l in ([] if OPT['mlate'] else m_loads()[:10]) + m_loads()[10+NE:]])
        else:
            role_branch(a, lambda: w_weights(a), lambda: m_weights(a))
    a(f's_branch {qrdy}')
    a(f'{gat}:')
    a(f's_lshl_b32 s{S_T0}, s{S_HEAD}, 14', f's_add_u32 s{S_T0}, s{S_T0}, {QP2}')
    a(f's_add_u32 s{S_T1}, s{S_T0}, 4096', f's_add_u32 s{S_T2}, s{S_T0}, 8192', f's_add_u32 s{S_T3}, s{S_T0}, 12288', f'v_lshlrev_b32 v{V_T}, 3, v{V_LANE}')
    def qissue(base):
        for s in range(8):
            for j in range(3):
                r = base + 2*(3*s+j)
                a(f'buffer_load_dwordx2 v[{r}:{r+1}], v{V_T}, {WS}, s{S_T0 + s//2} offen offset:{2048*(s&1)+512*j} sc1')
    def qcheck(base):
        tags = [base + 2*i + 1 for i in range(24)]
        a(f'v_min3_u32 v{V_T+2}, v{tags[0]}, v{tags[1]}, v{tags[2]}', f'v_max3_u32 v{V_T+3}, v{tags[0]}, v{tags[1]}, v{tags[2]}')
        for i in range(3, 23, 2):
            a(f'v_min3_u32 v{V_T+2}, v{V_T+2}, v{tags[i]}, v{tags[i+1]}', f'v_max3_u32 v{V_T+3}, v{V_T+3}, v{tags[i]}, v{tags[i+1]}')
        a(f'v_min_u32 v{V_T+2}, v{V_T+2}, v{tags[23]}', f'v_max_u32 v{V_T+3}, v{V_T+3}, v{tags[23]}')
        a(f'v_xor_b32 v{V_T+2}, s{S_TAG}, v{V_T+2}', f'v_xor_b32 v{V_T+3}, s{S_TAG}, v{V_T+3}', f'v_or_b32 v{V_T+2}, v{V_T+2}, v{V_T+3}')
        a(f'v_cmp_ne_u32 vcc, 0, v{V_T+2}')
    def qpost(base):
        for j in range(3):
            for s in range(1, 8): a(f'v_add_f32 v{base+2*j}, v{base+2*j}, v{base+2*(3*s+j)}')
            a(f'v_cvt_pk_bf16_f32 v{base+2*j}, v{base+2*j}, v{base+2*j}')
            a(f'ds_write_b16 v{V_T+6+j}, v{base+2*j} offset:{L_SM+64}')
    for j in range(3):
        a(f'v_add_u32 v{V_T+1}, {64*j}, v{V_LANE}', f'v_mul_u32_u24 v{V_T+2}, 2731, v{V_T+1}', f'v_lshrrev_b32 v{V_T+2}, 16, v{V_T+2}',
          f'v_mul_u32_u24 v{V_T+3}, 24, v{V_T+2}', f'v_sub_u32 v{V_T+3}, v{V_T+1}, v{V_T+3}',
          f'v_lshrrev_b32 v{V_T+4}, 3, v{V_T+3}', f'v_and_b32 v{V_T+3}, 7, v{V_T+3}', f'v_lshlrev_b32 v{V_T+4}, 6, v{V_T+4}',
          f'v_lshl_add_u32 v{V_T+4}, v{V_T+2}, 3, v{V_T+4}', f'v_add_lshl_u32 v{V_T+6+j}, v{V_T+4}, v{V_T+3}, 1')
    lbl = a.label('qspin'); ok = a.label('qok'); qjoin = a.label('qjoin')
    if OPT['qov']:
        okb = a.label('qokb')
        a(f's_mov_b32 s{S_SPIN}, 0')
        qissue(64)
        a(f'{lbl}:')
        qissue(116)
        a('s_waitcnt vmcnt(24)'); qcheck(64); a(f's_cbranch_vccz {ok}')
        qissue(64)
        a('s_waitcnt vmcnt(24)'); qcheck(116); a(f's_cbranch_vccz {okb}')
        a(f's_add_u32 s{S_SPIN}, s{S_SPIN}, 1', f's_cmp_lt_u32 s{S_SPIN}, 100000', f's_cbranch_scc1 {lbl}', f's_branch {ok}')
        a(f'{okb}:')
        qpost(116)
        a(f's_branch {qjoin}', f'{ok}:')
    else:
        spin_begin(a, lbl)
        qissue(64)
        a('s_waitcnt vmcnt(0)'); qcheck(64)
        a(f's_cbranch_vccz {ok}', f's_add_u32 s{S_SPIN}, s{S_SPIN}, 1', f's_cmp_lt_u32 s{S_SPIN}, 200000', f's_cbranch_scc1 {lbl}', f'{ok}:')
    qpost(64)
    a(f'{qjoin}:')
    stamp(a, 13)
    if OPT['clate']: clears(a)
    if OPT['flg']:
        a(f'v_mov_b32 v{V_T}, s{S_TAG}', f's_lshl_b32 s{S_T0}, s2, 2', f's_add_u32 s{S_T0}, s{S_T0}, {FLG}', 's_mov_b64 exec, 1',
          f'buffer_store_dword v{V_T}, v{V_ZERO}, {WS}, s{S_T0} offen sc1', 's_mov_b64 exec, -1')
    elif not OPT['dspread']:
        srd(a, SRD_A, P_DBG, 256)
        a(f'v_mov_b32 v{V_T}, 1', 's_mov_b64 exec, 1', f'buffer_atomic_add v{V_T}, v{V_ZERO}, {R(SRD_A)}, 0 offen', 's_mov_b64 exec, -1')
    if OPT['wmode'] <= 1: role_branch(a, lambda: w_weights(a), lambda: m_weights(a))
    a(f'{qrdy}:')
    a('s_waitcnt lgkmcnt(0)', 's_barrier')
    a(f'v_and_b32 v{V_T}, 7, v{V_LANE}', f'v_lshlrev_b32 v{V_T}, 4, v{V_T}')
    for j in range(3): a(f'ds_read_b128 v[{V_Q+4*j}:{V_Q+4*j+3}], v{V_T} offset:{L_SM+64+128*j}')

def pair_perm(a):
    a(f's_mov_b32 s{S_T2}, 0x05040100', f's_mov_b32 s{S_T3}, 0x07060302')
    def do(pairs):
        for A_, B_ in pairs:
            a(f'v_perm_b32 v50, v{B_}, v{A_}, s{S_T3}', f'v_perm_b32 v{A_}, v{B_}, v{A_}, s{S_T2}', f'v_mov_b32 v{B_}, v50')
    role_branch(a, lambda: do([(WGT+8*q+i, WGT+8*q+4+i) for q in range(6) for i in range(4)]),
                   lambda: do([(WGT+8*q+i, WGT+8*q+4+i) for q in range(8) for i in range(4)]))
def late_loads(a):
    sk = a.label('lx')
    a('s_cmp_lt_u32 s2, 160', f's_cbranch_scc1 {sk}')
    srd(a, SRD_D, P_X, 1280); srd(a, SRD_E, P_WR, 1280)
    a(f'v_lshlrev_b32 v50, 3, v{V_LANE}', f's_mul_i32 s{S_T0}, s{S_WAVE}, 320')
    a(f'buffer_load_dwordx2 v[{V_XW}:{V_XW+1}], v50, {R(SRD_D)}, s{S_T0} offen')
    a(f'v_lshlrev_b32 v50, 2, v{V_LANE}')
    for j in range(5): a(f'buffer_load_dword v{V_XW+5+j}, v50, {R(SRD_E)}, 0 offen offset:{256*j}')
    a(f'{sk}:')
    if OPT['cpf2']: code_prefetch(a, 'L_tail_start', 'L_code_end', 1, 50)

def stream(a):
    NS1, NS = OPT['NS1'], OPT['NS']
    NDYN1 = 2048 - 32*NS1; NDYN = 2048 - 32*NS
    P = OPT['P']
    assert NS <= NS1 <= 64 and NDYN <= 256 and P <= 3 and P < NS
    def prepare(n):
        a(f's_mov_b32 s{S_NX}, s{S_SU}', f's_add_u32 s{S_SU}, s{S_SU}, 32'); setoff(a)
        a(f's_cmp_ge_u32 s{S_K}, {n}')
    a(f'v_lshrrev_b32 v{V_G8}, 3, v{V_LANE}', f'v_lshlrev_b32 v{V_G8}, 3, v{V_G8}', f's_lshl_b32 s{S_T0}, s{S_WAVE}, 12', f'v_add_u32 v{V_SCA}, s{S_T0}, v{V_G8}')
    a(f's_mov_b32 s{S_MASK}, 0x01010101', f's_mov_b32 s{S_MASK+1}, 0x01010101')
    if OPT['dspread']:
        a(f's_and_b32 s{S_DBGK}, s2, 31', f's_add_u32 s{S_DBGK}, s{S_DBGK}, 4', f's_cmp_eq_u32 s{S_WAVE}, 3', f's_cselect_b32 s{S_DBGK}, s{S_DBGK}, 0xffff')
    a(f's_lshl_b32 s{S_DST}, s{S_K}, 6')
    static_next(a); setoff(a); issue(a, V_RING, SRD_K)
    acc_addr(a, V_T1A, 50)
    a(f'v_lshlrev_b32 v{V_T4}, 2, v0', f's_lshl_b32 s{S_OPR}, s{S_ROW}, 10', f's_add_u32 s{S_OPR}, s{S_OPR}, {OP}')
    a('s_waitcnt lgkmcnt(0)')
    if OPT['mlate']:
        skm = a.label('gul')
        a('s_cmp_lt_u32 s2, 160', f's_cbranch_scc1 {skm}', f's_cmp_ge_u32 s{S_WAVE}, 3', f's_cbranch_scc1 {skm}')
        for l in m_loads()[:10]: a(l)
        a(f'{skm}:')
    if P:
        sk = a.label('pfs')
        a(f's_cmp_ge_u32 s{S_WAVE}, 3', f's_cbranch_scc1 {sk}')
        if OPT['mlate']:
            w_ = a.label('pw'); wd_ = a.label('pwd')
            a('s_cmp_lt_u32 s2, 160', f's_cbranch_scc1 {w_}', 's_waitcnt vmcnt(16)', f's_branch {wd_}', f'{w_}:', 's_waitcnt vmcnt(6)', f'{wd_}:')
        else:
            a('s_waitcnt vmcnt(6)')
        for k in range(P):
            a(f's_mov_b32 s{S_DST+1}, {64*k}')
            k_step(a, 1, PF + 24*k)
        a(f'{sk}:')
    stamp(a, 2); dstamp(a, 6)
    prepare(NS1)
    loop = a.label('kloop'); drains = []; sws = []; dadds = []
    a(f'{loop}:')
    for t in range(2):
        o = 1 - t
        a('s_waitcnt vmcnt(0)')
        dyn = a.label('kdyn'); cont = a.label('kcont'); dl = a.label('kdrain'); sw = a.label('ksw'); drains.append((dl, t)); sws.append((sw, cont))
        a(f's_cbranch_scc1 {dyn if NDYN1 else dl}')
        issue(a, V_RING + 24*o, SRD_K)
        a(f's_lshl_b32 s{S_DST+o}, s{S_K}, 6')
        if NS1 > NS:
            a(f's_sub_u32 s{S_T0}, s{S_NX}, {32*NS}', f's_lshl_b32 s{S_T0}, s{S_T0}, 6', f's_add_u32 s{S_T0}, s{S_T0}, s{S_SCB}',
              f's_cmp_ge_u32 s{S_K}, {NS}', f's_cselect_b32 s{S_DST+o}, s{S_T0}, s{S_DST+o}')
        a(f's_add_u32 s{S_K}, s{S_K}, 1')
        if OPT['dspread']:
            da = a.label('dadd'); db = a.label('daddb'); dadds.append((da, db))
            a(f's_cmp_eq_u32 s{S_K}, s{S_DBGK}', f's_cbranch_scc1 {da}', f'{db}:')
        a(f's_cmp_eq_u32 s{S_K}, {NS1}', f's_cbranch_scc1 {sw}')
        a(f'{cont}:')
        k_step(a, t)
        prepare(NS1)
        nxt = a.label('kn') if t == 0 else loop
        a(f's_branch {nxt}')
        if NDYN1:
            a(f'{dyn}:')
            a(f'v_readfirstlane_b32 s{S_NX}, v{V_ATOM}', 's_nop 0', f's_cmp_ge_u32 s{S_NX}, {NDYN1}', f's_cbranch_scc1 {dl}')
            a(f's_add_u32 s{S_NX}, s{S_NX}, {32*NS1}', f's_sub_u32 s{S_T0}, s{S_NX}, {32*NS}', f's_lshl_b32 s{S_T0}, s{S_T0}, 6', f's_add_u32 s{S_DST+o}, s{S_T0}, s{S_SCB}')
            setoff(a); issue(a, V_RING + 24*o, SRD_K); atomic(a)
            a(f's_branch {cont}')
        if t == 0: a(f'{nxt}:')
    for da, db in dadds:
        a(f'{da}:')
        srd(a, SRD_E, P_DBG, 256)
        a(f'v_mov_b32 v50, 1', 's_mov_b64 exec, 1', f'buffer_atomic_add v50, v{V_ZERO}, {R(SRD_E)}, 0 offen', 's_mov_b64 exec, -1', f's_branch {db}')
    for sw, cont in sws:
        a(f'{sw}:')
        if NDYN1: atomic(a)
        if OPT['flg']:
            a(f'v_lshlrev_b32 v50, 4, v{V_LANE}', f's_mov_b32 s{S_T0}, {FLG}', f'buffer_load_dwordx4 v[{V_FLG}:{V_FLG+3}], v50, {WS}, s{S_T0} offen sc1')
        else:
            srd(a, SRD_E, P_DBG, 256)
            a(f'buffer_load_dword v{V_DBG}, v{V_ZERO}, {R(SRD_E)}, 0 offen sc1')
        a(f's_branch {cont}')
    ventry = [a.label('vent0'), a.label('vent1')]
    for dl, t in drains:
        o = 1 - t
        a(f'{dl}:')
        a(f's_lshl_b32 s{S_SU}, s{S_MEM}, 2', f's_add_u32 s{S_SU}, s{S_SU}, s{S_WAVE}', f's_mov_b32 s{S_K}, 0', f's_add_u32 s{S_CNT}, s{S_CNT}, 128')
        static_next(a); setoff(a); issue(a, V_RING + 24*o, SRD_V)
        k_step(a, t)
        stamp(a, 14)
        dbg_check(a)
        for i in range(24): a(f'v_mov_b32 v{V_ACC+i}, 0')
        a(f'v_mov_b32 v{V_M}, 0x{NEGBIG:08x}', f'v_mov_b32 v{V_L}, 0')
        a('s_waitcnt lgkmcnt(0)', f'ds_read_b64 v[{V_SC+2*o}:{V_SC+2*o+1}], v{V_SCA} offset:{L_SC}')
        prepare(NS)
        a(f's_branch {ventry[o]}')
    done = a.label('sdone'); vdr = []; vsw = []; rep = []
    for t in range(2):
        o = 1 - t
        a(f'{ventry[t]}:')
        LA = OPT['la']; AT = [V_ATOM, V_DBG]
        if not LA: a('s_waitcnt vmcnt(0) lgkmcnt(0)')
        dyn = a.label('vdyn'); cont = a.label('vcont'); dl = a.label('vdrain'); sw = a.label('vsw'); rp = a.label('vrp'); rb = a.label('vrb')
        vdr.append((dl, t)); vsw.append((sw, cont, t)); rep.append((rp, rb, t))
        a(f's_cbranch_scc1 {dyn}')
        if LA: a('s_waitcnt vmcnt(0) lgkmcnt(0)')
        issue(a, V_RING + 24*o, SRD_V)
        a(f's_lshl_b32 s{S_T0}, s{S_K}, 6', f'v_add_u32 v{V_T}, s{S_T0}, v{V_SCA}', f'ds_read_b64 v[{V_SC+2*o}:{V_SC+2*o+1}], v{V_T} offset:{L_SC}')
        a(f's_add_u32 s{S_K}, s{S_K}, 1', f's_cmp_eq_u32 s{S_K}, {NS}', f's_cbranch_scc1 {sw}')
        a(f'{cont}:')
        a(f'v_max_u32 v{V_T}, v{V_SC+2*t}, v{V_SC+2*t+1}', f'v_cmp_eq_u32 vcc, -1, v{V_T}', f's_cbranch_vccnz {rp}', f'{rb}:')
        v_step(a, t)
        prepare(NS)
        a(f's_branch {ventry[o]}')
        a(f'{dyn}:')
        areg = AT[t] if LA else V_ATOM
        if LA: a('s_waitcnt vmcnt(1) lgkmcnt(0)')
        a(f'v_readfirstlane_b32 s{S_NX}, v{areg}', 's_nop 0', f's_cmp_ge_u32 s{S_NX}, {NDYN}', f's_cbranch_scc1 {dl}')
        a(f's_lshl_b32 s{S_DST+o}, s{S_NX}, 6', f's_add_u32 s{S_DST+o}, s{S_DST+o}, s{S_SCB0}', f's_add_u32 s{S_NX}, s{S_NX}, {32*NS}')
        setoff(a); issue(a, V_RING + 24*o, SRD_V)
        a(f'buffer_load_dwordx2 v[{V_SC+2*o}:{V_SC+2*o+1}], v{V_G8}, {WS}, s{S_DST+o} offen sc1')
        atomic(a, areg)
        a(f's_branch {cont}')
    for sw, cont, t in vsw:
        a(f'{sw}:')
        if OPT['la']:
            if OPT['pp']: pair_perm(a)
            late_loads(a)
            atomic(a, [V_ATOM, V_DBG][1-t]); atomic(a, [V_ATOM, V_DBG][t])
        else:
            atomic(a)
            if OPT['pp']: pair_perm(a)
            late_loads(a)
        a(f's_branch {cont}')
    for rp, rb, t in rep:
        lp = a.label('rpl')
        a(f'{rp}:', f's_mov_b32 s{S_SPIN}, 0', f'{lp}:')
        a(f'buffer_load_dwordx2 v[{V_SC+2*t}:{V_SC+2*t+1}], v{V_G8}, {WS}, s{S_DST+t} offen sc1', 's_waitcnt vmcnt(0)')
        a(f'v_max_u32 v{V_T}, v{V_SC+2*t}, v{V_SC+2*t+1}', f'v_cmp_eq_u32 vcc, -1, v{V_T}', f's_cbranch_vccz {rb}')
        a(f's_add_u32 s{S_SPIN}, s{S_SPIN}, 1', f's_cmp_lt_u32 s{S_SPIN}, 200000', f's_cbranch_scc1 {lp}', f's_branch {rb}')
    for dl, t in vdr:
        a(f'{dl}:')
        rp = a.label('drp'); rb = a.label('drb'); lp = a.label('drl')
        a(f'v_max_u32 v{V_T}, v{V_SC+2*t}, v{V_SC+2*t+1}', f'v_cmp_eq_u32 vcc, -1, v{V_T}', f's_cbranch_vccz {rb}', f's_mov_b32 s{S_SPIN}, 0', f'{lp}:')
        a(f'buffer_load_dwordx2 v[{V_SC+2*t}:{V_SC+2*t+1}], v{V_G8}, {WS}, s{S_DST+t} offen sc1', 's_waitcnt vmcnt(0)')
        a(f'v_max_u32 v{V_T}, v{V_SC+2*t}, v{V_SC+2*t+1}', f'v_cmp_eq_u32 vcc, -1, v{V_T}', f's_cbranch_vccz {rb}')
        a(f's_add_u32 s{S_SPIN}, s{S_SPIN}, 1', f's_cmp_lt_u32 s{S_SPIN}, 200000', f's_cbranch_scc1 {lp}', f'{rb}:')
        v_step(a, t)
        a(f's_branch {done}')
    a(f'{done}:')

def phase_t1(a):
    t = V_T
    a('s_nop 2', f'v_mov_b32 v{t+2}, v{V_M}')
    groups_red(a, t+2, t+3, 'v_max_f32')
    a(f'v_sub_f32 v{t+4}, v{V_M}, v{t+2}', f'v_mul_f32 v{t+4}, s{S_LOG2E}, v{t+4}', f'v_exp_f32 v{t+4}, v{t+4}', 's_nop 0', f'v_mul_f32 v{V_L}, v{V_L}, v{t+4}')
    for i in range(12): a(f'v_pk_mul_f32 v[{V_ACC+2*i}:{V_ACC+2*i+1}], v[{V_ACC+2*i}:{V_ACC+2*i+1}], v[{t+4}:{t+5}] op_sel_hi:[1,0]')
    groups_red(a, V_L, t+3, 'v_add_f32')
    a(f'v_mov_b32 v{t+3}, v{V_L}', f's_lshl_b32 s{S_T1}, s{S_WAVE}, 3', f'v_mov_b32 v{t+6}, s{S_T1}', f'ds_write_b64 v{t+6}, v[{t+2}:{t+3}] offset:{L_SM}')
    acc_reduce_write(a, L_A, t+6, V_T1A)
    a('s_waitcnt lgkmcnt(0)', 's_barrier')
    a(f'ds_read_b128 v[100:103], v{V_ZERO} offset:{L_SM}', f'ds_read_b128 v[104:107], v{V_ZERO} offset:{L_SM+16}')
    for w in range(4): a(f'ds_read_b32 v{96+w}, v{V_T4} offset:{L_A+768*w}')
    a('s_waitcnt lgkmcnt(4)')
    a('v_max_f32 v108, v100, v102', 'v_max3_f32 v108, v108, v104, v106', f'v_mul_f32 v114, s{S_LOG2E}, v108')
    for w in range(4): a(f'v_fma_f32 v{110+w}, v{100+2*w}, s{S_LOG2E}, -v114')
    for w in range(4): a(f'v_exp_f32 v{110+w}, v{110+w}')
    w3 = a.label('t1w3'); jn = a.label('t1j')
    a(f's_cmp_ge_u32 s{S_WAVE}, 3', f's_cbranch_scc1 {w3}')
    a('s_waitcnt lgkmcnt(0)', 'v_mul_f32 v96, v96, v110')
    for w in range(1, 4): a(f'v_fmac_f32 v96, v{96+w}, v{110+w}')
    a(f'buffer_store_dword v96, v{V_T4}, {WS}, s{S_OPR} offen sc1', f's_branch {jn}')
    a(f'{w3}:', 'v_mul_f32 v109, v101, v110')
    for w in range(1, 4): a(f'v_fmac_f32 v109, v{101+2*w}, v{110+w}')
    a('v_mov_b32 v110, 0', 'v_mov_b32 v111, 0', 's_mov_b64 exec, 1', f'buffer_store_dwordx4 v[108:111], v{V_ZERO}, {WS}, s{S_OPR} offen offset:768 sc1', 's_mov_b64 exec, -1', 's_waitcnt lgkmcnt(0)')
    a(f'{jn}:')

def dbg_check(a):
    ok = a.label('dok'); lp = a.label('dlp')
    if OPT['flg']:
        def chk():
            a(f'v_min_u32 v{V_T}, v{V_FLG}, v{V_FLG+1}', f'v_min3_u32 v{V_T}, v{V_T}, v{V_FLG+2}, v{V_FLG+3}',
              f'v_max_u32 v{V_T+1}, v{V_FLG}, v{V_FLG+1}', f'v_max3_u32 v{V_T+1}, v{V_T+1}, v{V_FLG+2}, v{V_FLG+3}',
              f'v_xor_b32 v{V_T}, s{S_TAG}, v{V_T}', f'v_xor_b32 v{V_T+1}, s{S_TAG}, v{V_T+1}', f'v_or_b32 v{V_T}, v{V_T}, v{V_T+1}', f'v_cmp_ne_u32 vcc, 0, v{V_T}')
        chk()
        a(f's_cbranch_vccz {ok}', f's_mov_b32 s{S_SPIN}, 0', f'{lp}:')
        a(f'v_lshlrev_b32 v50, 4, v{V_LANE}', f's_mov_b32 s{S_T0}, {FLG}', f'buffer_load_dwordx4 v[{V_FLG}:{V_FLG+3}], v50, {WS}, s{S_T0} offen sc1', 's_waitcnt vmcnt(0)')
        chk()
        a(f's_cbranch_vccz {ok}', f's_add_u32 s{S_SPIN}, s{S_SPIN}, 1', f's_cmp_lt_u32 s{S_SPIN}, 200000', f's_cbranch_scc1 {lp}', f'{ok}:')
    else:
        a(f'v_readfirstlane_b32 s{S_T0}, v{V_DBG}', 's_nop 0', f's_cmp_ge_u32 s{S_T0}, 256', f's_cbranch_scc1 {ok}')
        srd(a, SRD_A, P_DBG, 256)
        a(f's_mov_b32 s{S_SPIN}, 0', f'{lp}:', f'buffer_load_dword v{V_DBG}, v{V_ZERO}, {R(SRD_A)}, 0 offen sc1', 's_waitcnt vmcnt(0)')
        a(f'v_readfirstlane_b32 s{S_T0}, v{V_DBG}', 's_nop 0', f's_cmp_ge_u32 s{S_T0}, 256', f's_cbranch_scc1 {ok}')
        a(f's_add_u32 s{S_SPIN}, s{S_SPIN}, 1', f's_cmp_lt_u32 s{S_SPIN}, 200000', f's_cbranch_scc1 {lp}', f'{ok}:')
    sk = a.label('ep')
    a(f's_or_b32 s{S_T0}, s2, s{S_WAVE}', f's_cmp_lg_u32 s{S_T0}, 0', f's_cbranch_scc1 {sk}')
    a(f'v_mov_b32 v{V_T}, s{S_TAG}', f's_mov_b32 s{S_T0}, {EPOCH}', 's_mov_b64 exec, 1', f'buffer_store_dword v{V_T}, v{V_ZERO}, {WS}, s{S_T0} offen sc1', 's_mov_b64 exec, -1', f'{sk}:')

WA_R, WA_B, WA_BR = 170, 171, 172
def phase_w(a):
    t0, t1 = V_T+3, V_T+4
    a(f'v_lshrrev_b32 v{t0}, 5, v{V_LANE}', f'v_mul_u32_u24 v{t0}, 24, v{t0}', f'v_bfe_u32 v{t1}, v{V_LANE}, 2, 3', f'v_add_lshl_u32 v{t0}, v{t0}, v{t1}, 2',
      f's_mul_i32 s4, s{S_WAVE}, 768', f'v_add_u32 v{WA_R}, s4, v{t0}')
    a(f'v_and_b32 v{t0}, 3, v{V_LANE}', f'v_lshlrev_b32 v{t0}, 5, v{t0}', f'v_bfe_u32 v{t1}, v{V_LANE}, 4, 1', f'v_lshl_add_u32 v{t0}, v{t1}, 4, v{t0}',
      f'v_lshrrev_b32 v{t1}, 5, v{V_LANE}', f'v_lshl_add_u32 v{t0}, v{t1}, 3, v{t0}', f's_lshl_b32 s4, s{S_WAVE}, 7', f'v_add_u32 v{WA_B}, s4, v{t0}')
    a(f'v_and_b32 v{t0}, 31, v0', f'v_lshlrev_b32 v{WA_BR}, 2, v{t0}')
    a('s_and_b32 s6, s2, 7', 's_mul_i32 s6, s6, 2560', 's_lshr_b32 s4, s2, 3', 's_lshl_b32 s4, s4, 7', 's_add_u32 s6, s6, s4', f's_add_u32 s6, s6, {HP}', 's_mov_b32 s7, 0x07060302')
    a(f's_and_b32 s{S_T0}, s2, 7', f's_lshl_b32 s{S_T0}, s{S_T0}, 2', f's_add_u32 s{S_T0}, s{S_T0}, s{S_WAVE}',
      f's_lshl_b32 s{S_T0}, s{S_T0}, 13', f's_add_u32 s{S_T0}, s{S_T0}, {OP}', f's_add_u32 s{S_T1}, s{S_T0}, 4096', f'v_lshlrev_b32 v{V_T}, 4, v{V_LANE}')
    a(f's_mul_i32 s{S_T2}, s{S_WAVE}, 768', f'v_add_u32 v{V_T+2}, s{S_T2}, v{V_T}')
    a('s_bfm_b64 exec, 49, 0')
    O = 108
    def w_issue(Pr):
        for s in range(8): a(f'buffer_load_dwordx4 v[{Pr+4*s}:{Pr+4*s+3}], v{V_T}, {WS}, s{S_T0 if s < 4 else S_T1} offen offset:{1024*(s&3)} sc1')
    def w_post(Pr):
        Mx, Ls, Fs = 96, 97, 98
        a(f'v_max3_f32 v{Mx}, v{Pr}, v{Pr+4}, v{Pr+8}', f'v_max3_f32 v{Mx}, v{Mx}, v{Pr+12}, v{Pr+16}', f'v_max3_f32 v{Mx}, v{Mx}, v{Pr+20}, v{Pr+24}', f'v_max_f32 v{Mx}, v{Mx}, v{Pr+28}')
        a(f'v_mul_f32 v{Mx}, s{S_LOG2E}, v{Mx}')
        for s in range(8): a(f'v_fma_f32 v{Fs+s}, v{Pr+4*s}, s{S_LOG2E}, -v{Mx}')
        for s in range(8): a(f'v_exp_f32 v{Fs+s}, v{Fs+s}')
        a(f'v_mul_f32 v{Ls}, v{Pr+1}, v{Fs}')
        for s in range(1, 8): a(f'v_fmac_f32 v{Ls}, v{Pr+4*s+1}, v{Fs+s}')
        a(f'v_rcp_f32 v{Ls}, v{Ls}', 's_nop 0')
        for s in range(8): a(f'v_mul_f32 v{Fs+s}, v{Fs+s}, v{Ls}')
        for s in range(8): a(f'v_readlane_b32 s{S_G+s}, v{Fs+s}, 48')
        a('s_nop 1')
        for e in range(4): a(f'v_mul_f32 v{O+e}, s{S_G}, v{Pr+e}')
        for s in range(1, 8):
            for e in range(4): a(f'v_fmac_f32 v{O+e}, s{S_G+s}, v{Pr+4*s+e}')
    if OPT['ov']:
        poll2(a, w_issue, 32, 64, 128, 8, w_post, V_T+1)
    else:
        lbl = a.label('wspin'); spin_begin(a, lbl); w_issue(64); a('s_waitcnt vmcnt(0)'); spin_end(a, lbl, list(range(64, 96)), V_T+1, OPT['slpw']); w_post(64)
    stamp(a, 5)
    for e in range(4): bf16r(a, O+e, O+e)
    a('s_bfm_b64 exec, 48, 0', f'ds_write_b128 v{V_T+2}, v[{O}:{O+3}] offset:{L_OV}', 's_mov_b64 exec, -1')
    a('s_waitcnt lgkmcnt(0)')
    U = 112
    for p in range(12): a(f'ds_read_b32 v{U+p}, v{WA_R} offset:{L_OV+4*(48*(p&3)+8*(p>>2))}')
    A = 160
    for q in range(6):
        a(f's_waitcnt lgkmcnt({10-2*q})', f'v_perm_b32 v{U+12+(q&1)}, v{U+2*q+1}, v{U+2*q}, s7')
        for i in range(4):
            c0 = '0' if q == 0 else f'v{A+2*i}'; c1 = '0' if q == 0 else f'v{A+2*i+1}'
            a(f'v_dot2_f32_bf16 v{A+2*i}, v{WGT+8*q+i}, v{U+12+(q&1)}, {c0}', f'v_dot2_f32_bf16 v{A+2*i+1}, v{WGT+8*q+4+i}, v{U+12+(q&1)}, {c1}')
    a('s_nop 2')
    for d in ('row_ror:4', 'row_ror:8'):
        for i in range(8): dpp(a, 'v_add_f32', A+i, d)
    swap_reduce(a, A, 4, 'v_permlane16_swap_b32')
    swap_reduce(a, A, 2, 'v_permlane32_swap_b32')
    a(f'ds_write_b64 v{WA_B}, v[{A}:{A+1}] offset:{L_B}', 's_waitcnt lgkmcnt(0)', 's_barrier')
    done = a.label('wd')
    a(f's_cmp_ge_u32 s{S_WAVE}, 1', f's_cbranch_scc1 {done}')
    for w in range(4): a(f'ds_read_b32 v{U+w}, v{WA_BR} offset:{L_B+128*w}')
    a('s_bfm_b64 exec, 32, 0', 's_waitcnt lgkmcnt(0)')
    a(f'v_add_f32 v{U}, v{U}, v{U+1}', f'v_add_f32 v{U+2}, v{U+2}, v{U+3}', f'v_add_f32 v{U}, v{U}, v{U+2}')
    a(f'buffer_store_dword v{U}, v{WA_BR}, {WS}, s6 offen sc1')
    a('s_mov_b64 exec, -1', f'{done}:')

H_HN, H_X = 70, 64
def phase_h(a):
    m_pre(a)
    a(f's_mul_i32 s{S_T0}, s{S_WAVE}, 640', f's_add_u32 s{S_T0}, s{S_T0}, {HP}', f's_add_u32 s{S_T1}, s{S_T0}, 5120', f's_add_u32 s{S_T2}, s{S_T0}, 10240', f's_add_u32 s{S_T3}, s{S_T0}, 15360')
    a(f'v_lshlrev_b32 v{V_T}, 4, v{V_LANE}')
    XF4 = 100
    a(f'v_lshlrev_b32 v{XF4}, 16, v{V_XW}', f'v_and_b32 v{XF4+1}, 0xffff0000, v{V_XW}', f'v_lshlrev_b32 v{XF4+2}, 16, v{V_XW+1}', f'v_and_b32 v{XF4+3}, 0xffff0000, v{V_XW+1}')
    a(f's_mul_i32 s{S_SPIN}, s{S_WAVE}, 320', f'v_lshlrev_b32 v{V_T+2}, 3, v{V_LANE}', f'v_add_u32 v{V_T+2}, s{S_SPIN}, v{V_T+2}')
    a('s_bfm_b64 exec, 40, 0')
    P = 64
    lbl = a.label('hspin'); spin_begin(a, lbl)
    for rb in range(8): a(f'buffer_load_dwordx4 v[{P+4*rb}:{P+4*rb+3}], v{V_T}, {WS}, s{S_T0 + rb//2} offen offset:{2560*(rb&1)} sc1')
    a('s_waitcnt vmcnt(0)')
    spin_end(a, lbl, list(range(P, P+32)), V_T+1, OPT['slph'])
    stamp(a, 7)
    def pk(d, x, y): a(f'v_pk_add_f32 v[{d}:{d+1}], v[{x}:{x+1}], v[{y}:{y+1}]')
    for h in (0, 2):
        pk(P+h, P+h, P+4+h); pk(P+8+h, P+8+h, P+12+h); pk(P+16+h, P+16+h, P+20+h); pk(P+24+h, P+24+h, P+28+h)
    for h in (0, 2):
        pk(P+h, P+h, P+8+h); pk(P+16+h, P+16+h, P+24+h)
    for h in (0, 2): pk(P+h, P+h, P+16+h)
    a(f'v_cvt_pk_bf16_f32 v{P+4}, v{P}, v{P+1}', f'v_cvt_pk_bf16_f32 v{P+5}, v{P+2}, v{P+3}')
    a(f'v_lshlrev_b32 v{P}, 16, v{P+4}', f'v_and_b32 v{P+1}, 0xffff0000, v{P+4}', f'v_lshlrev_b32 v{P+2}, 16, v{P+5}', f'v_and_b32 v{P+3}, 0xffff0000, v{P+5}')
    pk(P, P, XF4); pk(P+2, P+2, XF4+2)
    a(f'v_cvt_pk_bf16_f32 v{P+4}, v{P}, v{P+1}', f'v_cvt_pk_bf16_f32 v{P+5}, v{P+2}, v{P+3}')
    a(f'ds_write_b64 v{V_T+2}, v[{P+4}:{P+5}] offset:{L_H}', 's_mov_b64 exec, -1', f'v_lshlrev_b32 v{V_T}, 2, v{V_LANE}')
    a('s_waitcnt lgkmcnt(0)', 's_barrier')
    for j in range(5): a(f'ds_read_b32 v{H_X+j}, v{V_T} offset:{L_H+256*j}')
    a(f's_mul_i32 s{S_T0}, s{S_WAVE}, 1280', f'v_add_u32 v{V_T}, s{S_T0}, v{V_T}', 's_waitcnt lgkmcnt(0)')
    unpack5(a, H_X, H_HN)
    layernorm(a, H_HN, V_T+4)
    for j in range(5):
        a(f'v_cvt_pk_bf16_f32 v{H_X+j}, v{H_HN+2*j}, v{H_HN+2*j+1}', f'ds_write_b32 v{V_T}, v{H_X+j} offset:{L_XN+256*j}')

MA_XN, MA_D, MA_DR, MA_E, MA_ER, MA_F, MA_FR, MA_Y = 110, 111, 112, 113, 114, 115, 116, 117
S_NL2E = 4
def m_pre(a):
    t0, t1 = V_T, V_T+1
    a(f'v_and_b32 v{t0}, 127, v0', f'v_lshrrev_b32 v{t0}, 1, v{t0}', f'v_lshlrev_b32 v{t0}, 1, v{t0}', f's_mul_i32 s{S_T0}, s{S_WAVE}, 1280', f'v_add_u32 v{MA_XN}, s{S_T0}, v{t0}')
    a(f'v_and_b32 v{t0}, 1, v{V_LANE}', f'v_lshlrev_b32 v{t0}, 5, v{t0}', f'v_bfe_u32 v{t1}, v{V_LANE}, 4, 1', f'v_lshl_add_u32 v{t0}, v{t1}, 4, v{t0}',
      f'v_lshrrev_b32 v{t1}, 5, v{V_LANE}', f'v_lshl_add_u32 v{t0}, v{t1}, 3, v{t0}', f's_lshl_b32 s{S_T0}, s{S_WAVE}, 6', f'v_add_u32 v{MA_D}, s{S_T0}, v{t0}')
    a(f'v_and_b32 v{t0}, 15, v{V_LANE}', f'v_lshlrev_b32 v{MA_DR}, 2, v{t0}')
    a(f's_lshl_b32 s{S_T0}, s{S_WAVE}, 7', f'v_lshlrev_b32 v{t0}, 2, v{V_LANE}', f'v_add_u32 v{MA_E}, s{S_T0}, v{t0}')
    a(f'v_mul_u32_u24 v{t0}, 205, v0', f'v_lshrrev_b32 v{t0}, 14, v{t0}', f'v_lshl_add_u32 v{MA_ER}, v{t0}, 2, s{S_T0}')
    a(f'v_mul_u32_u24 v{t1}, 80, v{t0}', f'v_sub_u32 v{t1}, v0, v{t1}', f'v_lshlrev_b32 v{t1}, 5, v{t1}', f'v_mul_u32_u24 v{t0}, 2560, v{t0}', f'v_add_u32 v{MA_F}, v{t1}, v{t0}')
    a(f'v_lshlrev_b32 v{MA_FR}, 4, v0')
    a(f'v_lshrrev_b32 v{t0}, 2, v0', f'v_mul_u32_u24 v{t0}, 6144, v{t0}', f'v_and_b32 v{t1}, 3, v0', f'v_lshl_add_u32 v{MA_Y}, v{t1}, 4, v{t0}')
    a(f's_lshl_b32 s74, s{S_M}, 6', f's_add_u32 s74, s74, {YP}', f's_mov_b32 s{S_NL2E}, 0x{(LOG2E | 0x80000000):08x}', 's_mov_b32 s75, 0x07060302')
    a('s_movk_i32 s5, 240', 's_movk_i32 s6, 160', f'v_cmp_gt_u32 s[68:69], 16, v{V_LANE}', 'v_cmp_gt_u32 s[70:71], s5, v0', 'v_cmp_gt_u32 s[72:73], s6, v0')
def phase_m(a):
    U, A = 80, 96
    a('s_waitcnt vmcnt(0) lgkmcnt(0)')
    for p in range(10): a(f'ds_read_u16 v{U+p}, v{MA_XN} offset:{L_XN+128*p}')
    for q in range(5):
        a(f's_waitcnt lgkmcnt({8-2*q})', f'v_lshl_or_b32 v{U+10+(q&1)}, v{U+2*q+1}, 16, v{U+2*q}')
        for i in range(4):
            c0 = '0' if q == 0 else f'v{A+2*i}'; c1 = '0' if q == 0 else f'v{A+2*i+1}'
            a(f'v_dot2_f32_bf16 v{A+2*i}, v{WGT+8*q+i}, v{U+10+(q&1)}, {c0}', f'v_dot2_f32_bf16 v{A+2*i+1}, v{WGT+8*q+4+i}, v{U+10+(q&1)}, {c1}')
    a('s_nop 2')
    for d in ('quad_perm:[2,3,0,1]', 'row_ror:4', 'row_ror:8'):
        for i in range(8): dpp(a, 'v_add_f32', A+i, d)
    swap_reduce(a, A, 4, 'v_permlane16_swap_b32')
    swap_reduce(a, A, 2, 'v_permlane32_swap_b32')
    a(f'ds_write_b64 v{MA_D}, v[{A}:{A+1}] offset:{L_D}', 's_waitcnt lgkmcnt(0)', 's_barrier')
    for k in range(4): a(f'ds_read_b32 v{U+k}, v{MA_DR} offset:{L_D+64*k}')
    a('s_waitcnt lgkmcnt(0)')
    a(f'v_add_f32 v{U}, v{U}, v{U+1}', f'v_add_f32 v{U+2}, v{U+2}, v{U+3}')
    a(f'v_cvt_pk_bf16_f32 v{U+3}, v{U}, v{U+2}', f'v_lshlrev_b32 v{U}, 16, v{U+3}', f'v_and_b32 v{U+2}, 0xffff0000, v{U+3}')
    a(f'v_mul_f32 v{U+1}, s{S_NL2E}, v{U}', f'v_exp_f32 v{U+1}, v{U+1}', 's_nop 0', f'v_add_f32 v{U+1}, 1.0, v{U+1}', f'v_rcp_f32 v{U+1}, v{U+1}', 's_nop 0', f'v_mul_f32 v{U}, v{U}, v{U+1}')
    bf16r(a, U, U)
    a(f'v_mul_f32 v{U}, v{U}, v{U+2}')
    bf16r(a, U, U)
    a(f'v_cndmask_b32 v{U}, v{V_ZERO}, v{U}, s[68:69]')
    a('s_bfm_b64 exec, 18, 0', f'ds_write_b32 v{MA_E}, v{U} offset:{L_E}', 's_mov_b64 exec, -1', 's_waitcnt lgkmcnt(0)')
    for i in range(6): a(f'ds_read_b32 v{U+i}, v{MA_ER} offset:{L_E+12*i}')
    for q in range(3):
        a(f's_waitcnt lgkmcnt({4-2*q})', f'v_perm_b32 v{U+6+(q&1)}, v{U+2*q+1}, v{U+2*q}, s75')
        for e in range(4):
            c0 = '0' if q == 0 else f'v{A+2*e}'; c1 = '0' if q == 0 else f'v{A+2*e+1}'
            a(f'v_dot2_f32_bf16 v{A+2*e}, v{WGT+40+8*q+e}, v{U+6+(q&1)}, {c0}', f'v_dot2_f32_bf16 v{A+2*e+1}, v{WGT+40+8*q+4+e}, v{U+6+(q&1)}, {c1}')
    a('s_mov_b64 exec, s[70:71]', 's_nop 1')
    a(f'ds_write_b128 v{MA_F}, v[{A}:{A+3}] offset:{L_F}', f'ds_write_b128 v{MA_F}, v[{A+4}:{A+7}] offset:{L_F+16}')
    a('s_mov_b64 exec, -1', 's_waitcnt lgkmcnt(0)', 's_barrier')
    done = a.label('md')
    a(f's_cmp_ge_u32 s{S_WAVE}, 3', f's_cbranch_scc1 {done}', 's_mov_b64 exec, s[72:73]')
    for g in range(3): a(f'ds_read_b128 v[{U+4*g}:{U+4*g+3}], v{MA_FR} offset:{L_F+2560*g}')
    a('s_waitcnt lgkmcnt(0)')
    for e in (0, 2): a(f'v_pk_add_f32 v[{U+e}:{U+e+1}], v[{U+e}:{U+e+1}], v[{U+4+e}:{U+5+e}]')
    for e in (0, 2): a(f'v_pk_add_f32 v[{U+e}:{U+e+1}], v[{U+e}:{U+e+1}], v[{U+8+e}:{U+9+e}]')
    a(f'buffer_store_dwordx4 v[{U}:{U+3}], v{MA_Y}, {WS}, s74 offen sc1')
    a('s_mov_b64 exec, -1', f'{done}:')

def phase_f(a):
    U = 80
    a(f'v_dot2_f32_bf16 v{V_SIG}, v{H_X}, v{V_XW+5}, 0')
    for j in range(1, 5): a(f'v_dot2_f32_bf16 v{V_SIG}, v{H_X+j}, v{V_XW+5+j}, v{V_SIG}')
    a(f's_mul_i32 s{S_T0}, s{S_M}, 6144', f's_add_u32 s{S_T0}, s{S_T0}, {YP}', f's_add_u32 s{S_T1}, s{S_T0}, 4096', f'v_lshlrev_b32 v{V_T}, 3, v0')
    wave_red(a, [V_SIG], [V_T+1])
    bf16r(a, V_SIG, V_SIG)
    a(f'v_mul_f32 v{V_SIG}, s{S_LOG2E}, v{V_SIG}', f'v_sub_f32 v{V_SIG}, 0, v{V_SIG}', f'v_exp_f32 v{V_SIG}, v{V_SIG}', 's_nop 0',
      f'v_add_f32 v{V_SIG}, 1.0, v{V_SIG}', f'v_rcp_f32 v{V_SIG}, v{V_SIG}', 's_nop 0')
    bf16r(a, V_SIG, V_SIG)
    a(f'v_and_b32 v{V_T+2}, 15, v0', f's_lshl_b32 s{S_T2}, s{S_M}, 4', f'v_add_u32 v{V_T+2}, s{S_T2}, v{V_T+2}', f'v_lshlrev_b32 v{V_T+2}, 1, v{V_T+2}')
    HH = 126
    a(f'ds_read_u16 v{HH}, v{V_T+2} offset:{L_H}', f'ds_read_u16 v{HH+1}, v{V_T+2} offset:{L_XN}')
    srd(a, SRD_A, P_OUT, 1280)
    a(f'v_and_b32 v124, 7, v{V_LANE}', 'v_lshlrev_b32 v124, 3, v124', f'v_bfe_u32 v125, v{V_LANE}, 4, 1', 'v_lshl_add_u32 v124, v125, 2, v124',
      f's_lshl_b32 s{S_T2}, s{S_WAVE}, 6', f'v_add_u32 v124, s{S_T2}, v124', 'v_and_b32 v125, 15, v0', 'v_lshlrev_b32 v125, 2, v125')
    Y = 100
    def f_issue(P):
        a(f'buffer_load_dwordx2 v[{P}:{P+1}], v{V_T}, {WS}, s{S_T0} offen sc1', f'buffer_load_dwordx2 v[{P+2}:{P+3}], v{V_T}, {WS}, s{S_T0} offen offset:2048 sc1',
          f'buffer_load_dwordx2 v[{P+4}:{P+5}], v{V_T}, {WS}, s{S_T1} offen sc1')
    def f_post(P):
        a(f'v_add_f32 v{Y}, v{P}, v{P+2}', f'v_add_f32 v{Y+1}, v{P+1}, v{P+3}', f'v_add_f32 v{Y}, v{Y}, v{P+4}', f'v_add_f32 v{Y+1}, v{Y+1}, v{P+5}')
    if OPT['ov']:
        poll2(a, f_issue, 6, 80, 88, 3, f_post, V_T+1)
    else:
        lbl = a.label('fspin'); spin_begin(a, lbl); f_issue(80); a('s_waitcnt vmcnt(0)'); spin_end(a, lbl, list(range(80, 86)), V_T+1); f_post(80)
    stamp(a, 10)
    a('s_nop 1'); dpp(a, 'v_add_f32', Y, 'row_ror:8'); dpp(a, 'v_add_f32', Y+1, 'row_ror:8')
    swap_reduce(a, Y, 1, 'v_permlane16_swap_b32')
    a(f'v_mov_b32 v{Y+1}, v{Y}', 's_nop 1', f'v_permlane32_swap_b32 v{Y}, v{Y+1}', 's_nop 0', f'v_add_f32 v{Y}, v{Y}, v{Y+1}')
    a(f'ds_write_b32 v124, v{Y} offset:{L_G}', 's_waitcnt lgkmcnt(0)', 's_barrier')
    done = a.label('fd')
    a(f's_cmp_ge_u32 s{S_WAVE}, 1', f's_cbranch_scc1 {done}')
    U = 104
    for w in range(4): a(f'ds_read_b32 v{U+w}, v125 offset:{L_G+64*w}')
    a(f'v_lshlrev_b32 v{U+16}, 16, v{HH}', f'v_lshlrev_b32 v{U+17}, 16, v{HH+1}', 's_bfm_b64 exec, 16, 0', 's_waitcnt lgkmcnt(0)')
    a(f'v_add_f32 v{U}, v{U}, v{U+1}', f'v_add_f32 v{U+2}, v{U+2}, v{U+3}', f'v_add_f32 v{U}, v{U}, v{U+2}')
    bf16r(a, U, U)
    a(f'v_mul_f32 v{U}, v{U}, v{V_SIG}')
    bf16r(a, U, U)
    a(f'v_add_f32 v{U}, v{U+17}, v{U}')
    bf16r(a, U, U)
    a(f'v_add_f32 v{U}, v{U+16}, v{U}', f'v_cvt_pk_bf16_f32 v{U}, v{U}, v{U}')
    a(f'buffer_store_short v{U}, v{V_T+2}, {R(SRD_A)}, 0 offen', 's_mov_b64 exec, -1', f'{done}:')

DOC = """; ---------------------------------------------------------------------------------------------------------------
;  startup : LN(x); partial q over 80 rows of wq per workgroup; the 8 members of a head exchange the partials through the
;            workspace ({value, tag} granules, tag = epoch word + 1); hand-off areas are reset to a sentinel (0xffffffff), then
;            stay in LDS, the others go through the workspace.
; ---------------------------------------------------------------------------------------------------------------"""
def build():
    a = Asm()
    name = NAME_BASE + '_kernel'
    hdr = header([f'; @launch grid=(256,1,1) block=(256,1,1) lds={LDS_BYTES}'])
    hdr += DOC.split('\n')
    a('.amdgcn_target "amdgcn-amd-amdhsa--gfx950"', '.text')
    end = a.label('end')
    a(f'.globl {name}', '.p2align 8', f'.type {name},@function', f'{name}:', 'L_code_start:')
    prologue(a, end)
    stamp(a, 0); dstamp(a, 4, True)
    startup(a)
    stream(a)
    stamp(a, 3); dstamp(a, 7)
    a('L_tail_start:')
    phase_t1(a)
    stamp(a, 4)
    rm = a.label('rolem'); fin = a.label('fin')
    a('s_cmp_ge_u32 s2, 160', f's_cbranch_scc1 {rm}')
    phase_w(a); stamp(a, 6)
    a(f's_branch {fin}', f'{rm}:')
    phase_h(a); stamp(a, 8)
    phase_m(a); stamp(a, 9)
    a(f's_cmp_ge_u32 s{S_M}, 40', f's_cbranch_scc1 {fin}')
    phase_f(a); stamp(a, 11)
    a(f'{fin}:', 's_waitcnt vmcnt(0) lgkmcnt(0)')
    stamp(a, 15); dstamp(a, 5)
    a('s_waitcnt vmcnt(0)')
    a(f'{end}:', 's_endpgm', 'L_code_end:')
    a('.section .rodata,"a"', '.p2align 6')
    a.lines.append(kernel_desc(name, 256, 102))
    return '\n'.join(hdr) + '\n' + a.text()

if __name__ == '__main__':
    for x in sys.argv[1:]:
        if x == 'stamp': OPT['stamp'] = 1
        elif '=' in x:
            k, v = x.split('='); assert k in OPT, k; OPT[k] = int(v)
    sys.stdout.write(build())
```
